```python
import torch

def _softmax(x, axis=-1):
    return torch.softmax(x, dim=axis)
def _gelu(x):
    return torch.nn.functional.gelu(x, approximate="tanh")
def _silu(x):
    return torch.nn.functional.silu(x)
def _sigmoid(x):
    return torch.sigmoid(x)
def _layernorm(x, axis=-1, eps=1e-5):
    m = x.mean(dim=axis, keepdim=True)
    v = x.var(dim=axis, keepdim=True, unbiased=False)
    return (x - m) / torch.sqrt(v + eps)
def _scatter_add(tgt, idx, src, axis=0):
    return tgt.clone().index_add_(axis, idx, src)
def _segment_sum(src, seg, n):
    out = torch.zeros((n,) + src.shape[1:], dtype=src.dtype)
    return out.index_add_(0, seg, src)
def _pad(x, pw):
    flat = tuple(v for pair in reversed(pw) for v in pair)
    return torch.nn.functional.pad(x, flat)

kernel_name = 'concat_heads__mha_block_cached__mha_block_cached__near_ridge'

def setup_inputs():

    _w = (lambda a: (lambda t: t.to(torch.bfloat16) if t.is_floating_point() else t)(torch.as_tensor(a)))
    def _A_setup():
        B, Sq, D = 16, 96, 576
        H, Sk, Dh = 32, 512, 128
        return {
            "x": _w((lambda *s: torch.randn(*s, dtype=torch.bfloat16) * 0.8)(B, Sq, D)),
            "k_cache": _w((lambda *s: torch.randn(*s, dtype=torch.bfloat16) * 0.8)(B, H, Sk, Dh)),
            "v_cache": _w((lambda *s: torch.randn(*s, dtype=torch.bfloat16) * 0.05)(B, H, Sk, Dh)),
            "wq": _w((lambda *s: torch.randn(*s, dtype=torch.bfloat16) * 0.8)(D, H * Dh) * (D ** -0.5)),
            "wo": _w((lambda *s: torch.randn(*s, dtype=torch.bfloat16) * 0.05)(H * Dh, D) * ((H * Dh) ** -0.5)),
        }
    _A_in = _A_setup()

    def _B_setup():
        B, Sq, D = 16, 96, 576
        H, Sk, Dh = 32, 512, 128
        return {
            "x": _w((lambda *s: torch.randn(*s, dtype=torch.bfloat16) * 0.8)(B, Sq, D)),
            "k_cache": _w((lambda *s: torch.randn(*s, dtype=torch.bfloat16) * 0.8)(B, H, Sk, Dh)),
            "v_cache": _w((lambda *s: torch.randn(*s, dtype=torch.bfloat16) * 0.05)(B, H, Sk, Dh)),
            "wq": _w((lambda *s: torch.randn(*s, dtype=torch.bfloat16) * 0.8)(D, H * Dh) * (D ** -0.5)),
            "wo": _w((lambda *s: torch.randn(*s, dtype=torch.bfloat16) * 0.05)(H * Dh, D) * ((H * Dh) ** -0.5)),
        }
    _B_in = _B_setup()

    return {
        "A_x": _A_in["x"],
        "A_k_cache": _A_in["k_cache"],
        "A_v_cache": _A_in["v_cache"],
        "A_wq": _A_in["wq"],
        "A_wo": _A_in["wo"],
        "B_x": _B_in["x"],
        "B_k_cache": _B_in["k_cache"],
        "B_v_cache": _B_in["v_cache"],
        "B_wq": _B_in["wq"],
        "B_wo": _B_in["wo"],
    }

def reference(A_x, A_k_cache, A_v_cache, A_wq, A_wo, B_x, B_k_cache, B_v_cache, B_wq, B_wo):
    def _A_ref(x, k_cache, v_cache, wq, wo):
        B, Sq, D = x.shape
        H, Dh = 32, 128
        q = (lambda x, *d: x.permute(*d))((x @ wq).reshape(B, Sq, H, Dh), 0, 2, 1, 3)
        scores = torch.einsum("bhqd,bhkd->bhqk", q, k_cache) * (Dh ** -0.5)
        p = _softmax(scores, axis=-1)
        o = torch.einsum("bhqk,bhkd->bhqd", p, v_cache)
        return (lambda x, *d: x.permute(*d))(o, 0, 2, 1, 3).reshape(B, Sq, H * Dh) @ wo

    def _B_ref(x, k_cache, v_cache, wq, wo):
        B, Sq, D = x.shape
        H, Dh = 32, 128
        q = (lambda x, *d: x.permute(*d))((x @ wq).reshape(B, Sq, H, Dh), 0, 2, 1, 3)
        scores = torch.einsum("bhqd,bhkd->bhqk", q, k_cache) * (Dh ** -0.5)
        p = _softmax(scores, axis=-1)
        o = torch.einsum("bhqk,bhkd->bhqd", p, v_cache)
        return (lambda x, *d: x.permute(*d))(o, 0, 2, 1, 3).reshape(B, Sq, H * Dh) @ wo

    a = _A_ref(A_x, A_k_cache, A_v_cache, A_wq, A_wo)
    b = _B_ref(B_x, B_k_cache, B_v_cache, B_wq, B_wo)
    return torch.concatenate([a, b], axis=-1)
```

```python
import re

def regs(spec):
    m = re.fullmatch(r'([vas])\[(\d+):(\d+)\]', spec)
    if m: return [(m.group(1), i) for i in range(int(m.group(2)), int(m.group(3)) + 1)]
    m = re.fullmatch(r'([vas])(\d+)', spec)
    if m: return [(m.group(1), int(m.group(2)))]
    if spec in ('vcc', 'm0', 'exec', 'scc'): return [(spec, 0)]
    return []

def R(kind, base, n=1):
    return f"{kind}{base}" if n == 1 else f"{kind}[{base}:{base+n-1}]"

class I:
    __slots__ = ('txt', 'kind', 'rd', 'wr', 'srcC', 'tag', 'slot', 'note', 'perm', 'wide_store')
    def __init__(s, txt, kind, rd=(), wr=(), srcC=(), tag=None, slot=None, perm=False, wide_store=False):
        s.txt = txt; s.kind = kind
        s.rd = set(r for x in rd for r in regs(x)); s.wr = set(r for x in wr for r in regs(x))
        s.srcC = tuple(r for x in srcC for r in regs(x))
        s.tag = tag; s.slot = slot; s.perm = perm; s.wide_store = wide_store

def mfma(d, a, b, c, op="v_mfma_f32_16x16x32_bf16"):
    return I(f"{op} {d}, {a}, {b}, {c}", 'M', rd=[a, b, c], wr=[d], srcC=[c])
def valu(op, d, *src, extra="", wr_extra=(), rd_extra=()):
    k = 'E' if op in ('v_exp_f32', 'v_rcp_f32', 'v_log_f32', 'v_rsq_f32') else 'V'
    perm = op.startswith('v_permlane')
    rd = list(src) + list(rd_extra); wr = [d] + list(wr_extra)
    if perm: rd = [d] + list(src); wr = [d] + list(src)
    rd = [x.lstrip('-') for x in rd]
    return I(f"{op} {d}, " + ", ".join(src) + extra, k, rd=rd, wr=wr, perm=perm)
def salu(op, d, *src):
    return I(f"{op} {d}" + "".join(", " + x for x in src), 'S', rd=list(src), wr=[d])
def ds_read(op, d, addr, off, slot=None):
    assert 0 <= off <= 65535, off
    return I(f"{op} {d}, {addr} offset:{off}", 'L', rd=[addr], wr=[d], slot=slot)
def ds_write(op, addr, data, off, slot=None):
    assert 0 <= off <= 65535, off
    return I(f"{op} {addr}, {data} offset:{off}", 'L', rd=[addr, data], wr=[], slot=slot)
def dma(voff, srd, soff, imm, flags="", tag=None, slot=None):
    assert 0 <= imm <= 4095
    return I(f"buffer_load_dwordx4 {voff}, {srd}, {soff} offen offset:{imm} {flags} lds".replace("  ", " "), 'D', rd=[voff, srd, soff, 'm0'], wr=[], tag=tag, slot=slot)
def raw(txt, kind='X', rd=(), wr=(), **kw):
    return I(txt, kind, rd=rd, wr=wr, **kw)

class Prog:
    def __init__(s):
        s.out = []
        s.lgkm = []
        s.vm = []
        s.slot_reads_pending = {}
        s.unsafe = {}
        s.nops = 0
        s.stats = {}
    def _need(s, new):
        need = 0
        dist = 0
        for prev in reversed(s.out):
            if prev.kind == 'X' and prev.txt.endswith(':'):
                continue
            if dist >= 20: break
            req = 0
            pk, nk = prev.kind, new.kind
            if pk in 'VE':
                vw = {r for r in prev.wr if r[0] in 'va'}
                sw = {r for r in prev.wr if r[0] in ('s', 'vcc')}
                if nk == 'M' and vw & new.rd: req = max(req, 2)
                if new.perm and vw & new.rd: req = max(req, 2)
                if new.txt.startswith(('v_readfirstlane', 'v_readlane')) and vw & new.rd: req = max(req, 1)
                if pk == 'E' and nk in 'V' and vw & (new.rd | new.wr): req = max(req, 1)
                if pk == 'E' and nk in 'LD' and vw & new.rd: req = max(req, 1)
                if nk == 'D' and sw & new.rd: req = max(req, 5)
                if nk in 'VE' and sw & new.rd: req = max(req, 2)
                if ('exec', 0) in prev.wr and nk == 'M': req = max(req, 4)
            if pk == 'M':
                p8 = '32x32' in prev.txt
                d = prev.wr
                if nk == 'M':
                    ab = new.rd - set(new.srcC)
                    if d & ab: req = max(req, 12 if p8 else 8)
                    if d & set(new.srcC):
                        if set(new.srcC) != d: req = max(req, 10 if p8 else 6)
                    elif d & new.wr: req = max(req, 10 if p8 else 6)
                elif nk in 'VELD':
                    if d & (new.rd | new.wr): req = max(req, 12 if p8 else 8)
                if nk in 'VE' and set(prev.srcC) & new.wr: req = max(req, 7 if p8 else 3)
            if pk == 'S' and ('m0', 0) in prev.wr and nk == 'D' and ('m0', 0) in new.rd: req = max(req, 1)
            if pk == 'D' and prev.wide_store and nk in 'VEL' and (prev.rd & new.wr): req = max(req, 2)
            if pk == 'L' and prev.txt.startswith('ds_write_b128') and nk in 'VE' and (prev.rd & new.wr): req = max(req, 2)
            need = max(need, req - dist)
            m = re.match(r's_nop (\d+)', prev.txt)
            dist += (int(m.group(1)) + 1) if m else 1
        return max(0, need)
    def _push(s, ins):
        n = s._need(ins)
        if n > 0:
            s.nops += n
            while n > 0:
                k = min(n, 16)
                s.out.append(I(f"s_nop {k-1}", 'W')); n -= k
        s.out.append(ins)
        s.stats[ins.kind] = s.stats.get(ins.kind, 0) + 1
    def wait_lgkm(s, n):
        n = min(n, 15)
        if len(s.lgkm) > n:
            done = s.lgkm[:len(s.lgkm) - n]
            s.lgkm = s.lgkm[len(s.lgkm) - n:]
            s._push(I(f"s_waitcnt lgkmcnt({n})", 'W'))
            s._update_unsafe()
    def _update_unsafe(s):
        pend = {op.slot for op in s.lgkm if op.slot is not None}
        for sl, st in list(s.unsafe.items()):
            if st == 'issued' and sl not in pend: s.unsafe[sl] = 'waited'
    def wait_vm_tag(s, tag):
        idx = max((i for i, op in enumerate(s.vm) if op.tag == tag), default=-1)
        if idx < 0: return
        n = len(s.vm) - 1 - idx
        n = min(n, 63)
        s.vm = s.vm[len(s.vm) - n:] if n else []
        s._push(I(f"s_waitcnt vmcnt({n})", 'W'))
    def wait_vm_all(s):
        s.vm = []
        s._push(I("s_waitcnt vmcnt(0)", 'W'))
    def barrier(s):
        s._push(I("s_barrier", 'B'))
        for sl, st in list(s.unsafe.items()):
            if st == 'waited': del s.unsafe[sl]
    def emit(s, ins):
        if isinstance(ins, (list, tuple)):
            for x in ins: s.emit(x)
            return
        if callable(ins):
            ins(s); return
        touch = ins.rd | ins.wr
        last = -1
        for i, op in enumerate(s.lgkm):
            if op.wr & touch: last = i
            elif ins.kind != 'L' and not op.wr and (op.rd & ins.wr) and False: last = i
        if last >= 0: s.wait_lgkm(len(s.lgkm) - 1 - last)
        last = -1
        for i, op in enumerate(s.vm):
            if op.wr & touch: last = i
        if last >= 0:
            n = min(len(s.vm) - 1 - last, 63)
            s.vm = s.vm[len(s.vm) - n:] if n else []
            s._push(I(f"s_waitcnt vmcnt({n})", 'W'))
        if ins.kind == 'D' and ins.slot is not None:
            assert ins.slot not in s.unsafe, f"DMA into slot {ins.slot} while reads not fenced ({s.unsafe[ins.slot]}): {ins.txt}"
        if ins.kind == 'L' and len(s.lgkm) >= 15:
            s.wait_lgkm(14)
        s._push(ins)
        if ins.kind == 'L':
            s.lgkm.append(ins)
            if ins.slot is not None: s.unsafe[ins.slot] = 'issued'
        if ins.kind == 'D':
            s.vm.append(ins)
            assert len(s.vm) <= 63 + 64
    def text(s):
        return "\n".join(i.txt for i in s.out)

class Fill:
    __slots__ = ('ops', 'earliest', 'deadline', 'want', 'cost', 'excl', 'after', 'done', 'name')
    def __init__(s, ops, earliest, deadline, want=None, after=(), name=""):
        s.ops = ops if isinstance(ops, list) else [ops]
        s.earliest = earliest
        s.deadline = deadline
        s.want = deadline if want is None else want
        s.after = list(after); s.done = False; s.name = name
        c = 0; ex = False
        for o in s.ops:
            if callable(o): c += 1; continue
            if o.kind == 'E': ex = True; c += 2
            elif o.kind in 'W': c += 0
            else: c += 1
        s.cost = c; s.excl = ex

def weave(prog, mf, fills, cap=2, horizon=10**9):
    pend = list(fills)
    over = 0
    for g in range(-1, len(mf)):
        if g >= 0: prog.emit(mf[g])
        used = 0; had_e = False
        while True:
            avail = [f for f in pend if f.earliest <= g and all(a.done for a in f.after)]
            if not avail: break
            forced = [f for f in avail if f.deadline <= g]
            if forced:
                forced.sort(key=lambda f: (f.excl, f.want))
                f = forced[0]
            else:
                if g == -1 or used >= cap or had_e: break
                cand = [f for f in avail if f.want - g <= horizon and used + f.cost <= cap]
                if not cand: break
                f = min(cand, key=lambda f: f.want)
            prog.emit(f.ops); f.done = True; pend.remove(f)
            used += f.cost; had_e = had_e or f.excl
        if used > cap and g >= 0: over += used - cap
    assert not pend, [(f.name, f.earliest, f.deadline) for f in pend]
    return over
```

```python
import sys, math
from asmlib import *

NAME = "concat_heads__mha_block_cached__mha_block_cached__near_ridge"
OPT = dict(LA=9, nt_kv=1)
for a in sys.argv[2:]:
    k, v = a.split('='); OPT[k] = int(v)
LA = OPT['LA']

V_LANE, V_AW0, V_AO0, V_WQ0 = 0, 1, 2, 3
V_AK, V_AV = 4, 8
V_KA, V_KB, V_VA, V_VB = 16, 17, 18, 19
V_L = 20
V_WO0 = 24
V_T = 25
V_QF = 28; V_O = 76; V_S = 172; V_P = 220; V_NM = 244
V_LA = 220
A_X = 0; A_L = 216; A_ONE = 228; A_FR = 232; NFR = 6
def QF(ks, qt): return R('v', V_QF + 4 * (ks * 3 + qt), 4)
def Oacc(dt, qt): return V_O + 4 * (dt * 3 + qt)
def Sreg(buf, t, qt): return V_S + 24 * buf + 4 * (t * 3 + qt)
def Preg(buf, qt): return V_P + 12 * buf + 4 * qt
def NM(qt): return V_NM + 4 * qt
def XF(ks, qt): return R('a', A_X + 4 * (ks * 3 + qt), 4)
def OA(nb, ntl, qt): return A_X + 4 * ((nb * 2 + ntl) * 3 + qt)
def Qacc(dt, qt):
    return (V_QF + 4 * ((dt >> 1) * 3 + qt)) if dt % 2 == 0 else (V_S + 4 * ((dt >> 1) * 3 + qt))
S_W, S_W4K, S_W3K = 3, 4, 5
SK, SV, SWQ, SWO, SX, SWS = 's[8:11]', 's[12:15]', 's[16:19]', 's[20:23]', 's[24:27]', 's[28:31]'
S_OFF, S_C, S_T0, S_T1, S_HD, S_QH = 32, 34, 35, 36, 37, 38
SLOT = 16384
LAM = [8, 9, 5, 3, 6, 7]
LAMP = [5, 3, 6, 7, 8, 9]
def lset(slot):
    return (0, (slot - 3) * SLOT) if slot <= 6 else (1, (slot - 7) * SLOT)

P = Prog()
E = P.emit
def lit(x): return hex(x & 0xffffffff)

E(raw("s_cmp_ge_u32 s2, 256", 'S')); E(raw("s_cbranch_scc1 L_end", 'S'))
E(raw("s_load_dwordx16 s[48:63], s[0:1], 0", 'S'))
E(raw("s_load_dwordx8 s[64:71], s[0:1], 64", 'S'))
E(raw("s_load_dwordx2 s[72:73], s[0:1], 96", 'S'))
E(valu("v_lshrrev_b32", "v1", "6", "v0"))
E(valu("v_and_b32", "v0", "63", "v0"))
E(valu("v_readfirstlane_b32", f"s{S_W}", "v1"))
E(salu("s_and_b32", "s40", "s2", "7"))
E(salu("s_lshr_b32", "s41", "s2", "3"))
E(salu("s_lshr_b32", "s42", "s40", "2"))
E(salu("s_and_b32", "s43", "s40", "3"))
E(salu("s_lshr_b32", "s44", "s41", "1"))
E(salu("s_and_b32", "s45", "s41", "1"))
E(salu("s_lshl_b32", "s46", "s43", "1"))
E(salu("s_add_u32", "s46", "s46", "s45"))
E(salu("s_lshl_b32", f"s{S_W4K}", f"s{S_W}", "12"))
E(salu("s_mul_i32", f"s{S_W3K}", f"s{S_W}", "3072"))
E(salu("s_lshr_b32", f"s{S_HD}", f"s{S_W}", "1"))
E(salu("s_and_b32", f"s{S_QH}", f"s{S_W}", "1"))
E(salu("s_mov_b32", f"s{S_C}", lit(0x3e0293ee)))
import struct
cval = struct.unpack('<I', struct.pack('<f', math.log2(math.e) / math.sqrt(128.0)))[0]
P.out[-1].txt = f"s_mov_b32 s{S_C}, {hex(cval)}"
T = V_S
i16, g4, r4, c4, i5, t0, t1, t2 = (f"v{T+k}" for k in range(8))
E(valu("v_and_b32", i16, "15", "v0"))
E(valu("v_lshrrev_b32", g4, "4", "v0"))
E(valu("v_bfe_u32", r4, "v0", "2", "2"))
E(valu("v_and_b32", c4, "3", "v0"))
E(valu("v_lshrrev_b32", i5, "5", "v0"))
for j in range(3):
    E(valu("v_lshrrev_b32", t0, "3", "v0"))
    E(salu("s_mul_i32", f"s{S_T0}", f"s{S_W}", "24"))
    E(salu("s_add_u32", f"s{S_T0}", f"s{S_T0}", str(8 * j)))
    E(valu("v_add_u32", t0, f"s{S_T0}", t0))
    E(valu("v_bfe_u32", t1, t0, "1", "3"))
    E(valu("v_and_b32", t2, "7", "v0"))
    E(valu("v_xor_b32", t1, t1, t2))
    E(valu("v_mul_u32_u24", t0, "1152", t0))
    E(valu("v_lshl_add_u32", t0, t1, "4", t0))
    E(valu("v_subrev_u32", f"v{V_T+j}", str(1024 * j), t0) if j else valu("v_mov_b32", f"v{V_T}", t0))
E(salu("s_lshl_b32", f"s{S_T0}", f"s{S_W}", "3"))
E(valu("v_add_u32", t0, f"s{S_T0}", i5))
E(valu("v_lshlrev_b32", t0, "13", t0))
E(valu("v_and_b32", t1, "31", "v0"))
E(valu("v_lshlrev_b32", t2, "2", i5))
E(valu("v_xor_b32", t1, t1, t2))
E(valu("v_lshl_add_u32", f"v{V_WQ0}", t1, "4", t0))
def set_L_wq():
    ops = [valu("v_mov_b32", f"v{V_L}", f"v{V_WQ0}"),
           valu("v_xor_b32", f"v{V_L+1}", "0x80", f"v{V_WQ0}"),
           valu("v_add_u32", f"v{V_L+2}", str(2 * 15360), f"v{V_WQ0}"),
           valu("v_add_u32", f"v{V_L+3}", str(3 * 15360), f"v{V_L+1}"),
           valu("v_add_u32", f"v{V_L+1}", str(15360), f"v{V_L+1}")]
    return ops
def set_L_wo():
    return [valu("v_mov_b32", f"v{V_L}", f"v{V_WO0}")] + [valu("v_add_u32", f"v{V_L+j}", str(8192 * j), f"v{V_WO0}") for j in (1, 2, 3)]
E(set_L_wq())
E(raw("s_waitcnt lgkmcnt(0)", 'W'))
E(raw("s_cmp_eq_u32 s42, 0", 'S'))
for k, (d, a, b) in enumerate([(24, 48, 58), (8, 50, 60), (12, 52, 62), (16, 54, 64), (20, 56, 66)]):
    E(raw(f"s_cselect_b64 s[{d}:{d+1}], s[{a}:{a+1}], s[{b}:{b+1}]", 'S', wr=[f"s[{d}:{d+1}]"]))
def srd_finish(d, off_s, size):
    E(salu("s_add_u32", f"s{d}", f"s{d}", off_s))
    E(salu("s_addc_u32", f"s{d+1}", f"s{d+1}", "0"))
    E(salu("s_and_b32", f"s{d+1}", f"s{d+1}", "0xffff"))
    if isinstance(size, int): E(salu("s_mov_b32", f"s{d+2}", lit(size)))
    else: size()
    E(salu("s_mov_b32", f"s{d+3}", "0x20000"))
E(salu("s_mul_i32", f"s{S_T0}", "s44", "110592")); srd_finish(24, f"s{S_T0}", 110592)
E(salu("s_lshl_b32", f"s{S_T0}", "s46", "10"))
srd_finish(16, f"s{S_T0}", lambda: E(salu("s_sub_u32", "s18", lit(576 * 8192), f"s{S_T0}")))

class Tile:
    def __init__(s, name, slot, ops): s.name = name; s.slot = slot; s.ops = ops; s.last_use = None; s.first_need = None
NT = "nt" if OPT['nt_kv'] else ""
def tile_x(i, slot):
    n = f"X{i}"
    ops = [salu("s_add_u32", "m0", f"s{S_W3K}", lit(slot * SLOT)), salu("s_mov_b32", f"s{S_OFF}", lit(i * 128))]
    ops += [dma(f"v{V_T+j}", SX, f"s{S_OFF}", 1024 * j, tag=n, slot=slot) for j in range(3)]
    return Tile(n, slot, ops)
def tile_wq(r, t, slot):
    n = f"WQ{r}_{t}"
    ops = [salu("s_add_u32", "m0", f"s{S_W4K}", lit(slot * SLOT)), salu("s_mov_b32", f"s{S_OFF}", lit(t * 32 * 8192 + r * 512))]
    ops += [dma(f"v{V_L+j}", SWQ, f"s{S_OFF}", 1024 * j, tag=n, slot=slot) for j in range(4)]
    return Tile(n, slot, ops)
def tile_wo(r, t, slot):
    nb, hh = t >> 1, t & 1
    n = f"WO{r}_{t}"
    ops = [salu("s_add_u32", "m0", f"s{S_W4K}", lit(slot * SLOT)), salu("s_mov_b32", f"s{S_OFF}", lit((r * 256 + hh * 128) * 1152 + nb * 128))]
    ops += [dma(f"v{V_L+j}", SWO, f"s{S_OFF}", 1024 * j, tag=n, slot=slot) for j in range(4)]
    return Tile(n, slot, ops)
def tile_kv(kind, r, n_, slot):
    n = f"{kind}{r}_{n_}"
    va, vb, srd = (V_KA, V_KB, SK) if kind == 'K' else (V_VA, V_VB, SV)
    ops = [salu("s_add_u32", "m0", f"s{S_W4K}", lit(slot * SLOT)), salu("s_mov_b32", f"s{S_OFF}", lit(r * 262144 + n_ * 8192))]
    ops += [dma(f"v{va}", srd, f"s{S_OFF}", 0, NT, tag=n, slot=slot), dma(f"v{va}", srd, f"s{S_OFF}", 1024, NT, tag=n, slot=slot),
            dma(f"v{vb}", srd, f"s{S_OFF}", 2048, NT, tag=n, slot=slot), dma(f"v{vb}", srd, f"s{S_OFF}", 3072, NT, tag=n, slot=slot)]
    return Tile(n, slot, ops)

q0 = []
for i in range(9):
    q0 += [('X', i), ('W', 2 * i), ('W', 2 * i + 1)]
Q0T = []
for p, (k, i) in enumerate(q0):
    sl = LAMP[(p + 3) % 6]
    Q0T.append(tile_x(i, sl) if k == 'X' else tile_wq(0, i, sl))
XT = [t for t in Q0T if t.name[0] == 'X']; WQT = {0: [t for t in Q0T if t.name[0] == 'W']}
WQT[1] = [tile_wq(1, t, LAM[t % 6]) for t in range(18)]
WOT = {r: [tile_wo(r, t, LAM[t % 6]) for t in range(18)] for r in (0, 1)}
KT = {r: [tile_kv('K', r, n, n & 3) for n in range(16)] for r in (0, 1)}
VT = {r: [tile_kv('V', r, n, 4 + (n & 3)) for n in range(16)] for r in (0, 1)}

issued = set()
for t in Q0T[:3]:
    E(t.ops); issued.add(t.name)
E(salu("s_lshl_b32", f"s{S_T0}", "s44", "22"))
E(salu("s_lshl_b32", f"s{S_T1}", "s46", "19"))
E(salu("s_add_u32", f"s{S_T0}", f"s{S_T0}", f"s{S_T1}"))
srd_finish(8, f"s{S_T0}", 524288); srd_finish(12, f"s{S_T0}", 524288)
for t in Q0T[3:6]:
    E(t.ops); issued.add(t.name)
E(salu("s_mul_i32", f"s{S_T0}", "s46", str(512 * 1152))); srd_finish(20, f"s{S_T0}", 512 * 1152)
E(salu("s_lshl_b32", f"s{S_T0}", "s42", "4")); E(salu("s_add_u32", f"s{S_T0}", f"s{S_T0}", "s44"))
E(salu("s_lshl_b32", f"s{S_T0}", f"s{S_T0}", "3")); E(salu("s_add_u32", f"s{S_T0}", f"s{S_T0}", "s46"))
E(salu("s_mul_i32", f"s{S_T0}", f"s{S_T0}", str(108 * 1024)))
E(salu("s_mul_i32", f"s{S_T1}", f"s{S_W}", str(27 * 1024)))
E(salu("s_add_u32", f"s{S_T0}", f"s{S_T0}", f"s{S_T1}"))
E(raw("s_mov_b64 s[28:29], s[72:73]", 'S', wr=["s[28:29]"])); srd_finish(28, f"s{S_T0}", 27 * 1024)
E(salu("s_lshl_b32", f"s{S_T0}", f"s{S_W}", "3"))
E(valu("v_add_u32", t0, f"s{S_T0}", g4)); E(valu("v_lshlrev_b32", t0, "8", t0))
E(salu("s_lshl_b32", f"s{S_T1}", f"s{S_W}", "2"))
E(valu("v_or_b32", t1, f"s{S_T1}", g4)); E(valu("v_xor_b32", t1, t1, i16))
E(valu("v_lshl_add_u32", f"v{V_KA}", t1, "4", t0))
E(valu("v_add_u32", f"v{V_KB}", str(131072 - 2048), f"v{V_KA}"))
E(salu("s_lshl_b32", f"s{S_T1}", f"s{S_QH}", "2"))
E(valu("v_or_b32", t1, f"s{S_T1}", g4)); E(valu("v_lshlrev_b32", t1, "1", t1)); E(valu("v_xor_b32", t1, t1, i16))
E(valu("v_lshl_add_u32", f"v{V_VA}", t1, "4", t0))
E(valu("v_add_u32", f"v{V_VB}", str(131072 - 2048), f"v{V_VA}"))
for t in (KT[0][0], KT[0][1], VT[0][0], KT[0][2]):
    E(t.ops); issued.add(t.name)
E(salu("s_lshl_b32", f"s{S_T0}", f"s{S_W}", "5"))
E(valu("v_lshrrev_b32", t0, "3", "v0")); E(valu("v_add_u32", t0, f"s{S_T0}", t0)); E(valu("v_mul_u32_u24", t0, "1152", t0))
E(valu("v_lshlrev_b32", t1, "1", g4)); E(valu("v_and_b32", t2, "7", "v0")); E(valu("v_xor_b32", t1, t1, t2))
E(valu("v_lshl_add_u32", f"v{V_WO0}", t1, "4", t0))
E(salu("s_lshl_b32", f"s{S_T0}", f"s{S_HD}", "11"))
E(valu("v_lshrrev_b32", t0, "2", i16)); E(valu("v_lshlrev_b32", t0, "12", t0)); E(valu("v_add_u32", t0, f"s{S_T0}", t0))
E(valu("v_lshl_add_u32", t0, c4, "8", t0))
E(valu("v_xor_b32", t1, g4, i16)); E(valu("v_lshl_add_u32", f"v{V_AK}", t1, "4", t0))
for ks in (1, 2, 3): E(valu("v_xor_b32", f"v{V_AK+ks}", str(ks << 6), f"v{V_AK}"))
E(valu("v_lshlrev_b32", t0, "12", g4)); E(valu("v_add_u32", t0, f"s{S_T0}", t0)); E(valu("v_lshl_add_u32", t0, r4, "8", t0))
E(valu("v_lshl_add_u32", t0, c4, "3", t0))
E(valu("v_and_b32", t1, "1", g4)); E(valu("v_lshl_or_b32", t1, t1, "2", r4))
E(valu("v_lshl_add_u32", t0, t1, "5", t0)); E(valu("v_add_u32", f"v{V_AV}", "0x10000", t0))
for dt in range(1, 8): E(valu("v_xor_b32", f"v{V_AV+dt}", str(dt << 5), f"v{V_AV}"))
E(valu("v_lshl_add_u32", t0, g4, "3", r4)); E(valu("v_lshlrev_b32", t0, "9", t0))
E(valu("v_lshl_add_u32", t1, r4, "2", c4)); E(valu("v_lshl_add_u32", t0, t1, "4", t0))
E(salu("s_lshl_b32", f"s{S_T0}", f"s{S_HD}", "8")); E(salu("s_add_u32", f"s{S_T0}", f"s{S_T0}", "0xc000"))
E(valu("v_add_u32", f"v{V_AW0}", f"s{S_T0}", t0))
E(valu("v_lshl_add_u32", t0, g4, "2", r4))
E(valu("v_bfe_u32", t1, t0, "1", "2"))
E(salu("s_lshl_b32", f"s{S_T0}", f"s{S_HD}", "1"))
E(valu("v_xor_b32", t1, f"s{S_T0}", t1))
E(valu("v_lshlrev_b32", t0, "7", t0)); E(valu("v_lshl_add_u32", t0, t1, "5", t0)); E(valu("v_lshl_add_u32", t0, c4, "3", t0))
E(valu("v_add_u32", f"v{V_AO0}", "0xc000", t0))
E(salu("s_mul_i32", f"s{S_T0}", f"s{S_QH}", str(48 * 128))); E(salu("s_add_u32", f"s{S_T0}", f"s{S_T0}", "0xc000"))
E(valu("v_lshlrev_b32", t0, "7", i16)); E(valu("v_add_u32", t0, f"s{S_T0}", t0))
E(valu("v_lshrrev_b32", t1, "1", i16)); E(valu("v_xor_b32", t1, t1, g4)); E(valu("v_lshl_add_u32", f"v{V_LA+8}", t1, "4", t0))
E(valu("v_xor_b32", f"v{V_LA+9}", "64", f"v{V_LA+8}"))
E(valu("v_xor_b32", f"v{V_LA+10}", "0x10000", f"v{V_LA+8}")); E(valu("v_xor_b32", f"v{V_LA+11}", "0x10040", f"v{V_LA+8}"))
def set_addr_w():
    return [valu("v_xor_b32", f"v{V_LA+4*s+k}", lit((k << 6) ^ (s << 16)), f"v{V_AW0}") for s in (1, 0) for k in range(4)]
def set_addr_o():
    return [valu("v_xor_b32", f"v{V_LA+2*s+k}", lit((k << 5) ^ (s << 16)), f"v{V_AO0}") for s in (1, 0) for k in range(2)]
E(set_addr_w())
E(valu("v_mov_b32", t0, "0x3f803f80"))
for k in range(4): E(valu("v_accvgpr_write_b32", f"a{A_ONE+k}", t0))

MF = []; FL = []
frags = []
bars = []
rd_chain = [None]
def add_frag(tile, mk_reads, mk_mfmas, pre=None):
    f = len(frags)
    base = A_FR + 4 * (f % NFR)
    u0 = len(MF)
    MF.extend(mk_mfmas(R('a', base, 4)))
    u1 = len(MF) - 1
    frags.append(dict(reads=mk_reads(base), u0=u0, u1=u1, tile=tile, pre=pre))
    tile.last_use = u1
    if tile.first_need is None: tile.first_need = u0
def forced(ops, gap=None, name=""):
    g = len(MF) - 1 if gap is None else gap
    fl = Fill(ops, g, g, want=-10**9 + len(FL), name=name); fl.excl = False
    FL.append(fl); return fl
bar_req = []
def want_bar(tiles): bar_req.append((len(MF), tiles))

def phase_q(r):
    for t in range(18):
        T_ = WQT[r][t]
        tl = [T_]
        if r == 0 and t % 2 == 0: tl = [XT[t // 2], T_]
        want_bar(tl)
        if r == 0 and t % 2 == 0:
            X_ = XT[t // 2]
            s_, ib = lset(X_.slot)
            u = len(MF)
            for ksl in range(2):
                for qt in range(3):
                    xreads.append((ds_read("ds_read_b128", XF(t + ksl, qt), f"v{V_LA+8+2*s_+ksl}", ib + qt * 2048, slot=X_.slot), X_, u + 24 * ksl))
            X_.first_need = u; X_.last_use = u + 24 + 2
        s_, ib = lset(T_.slot)
        for dt in range(8):
            ksp, odd = dt >> 1, dt & 1
            add_frag(T_,
                     lambda b: [ds_read("ds_read_b64_tr_b16", R('a', b + 2 * hf, 2), f"v{V_LA+4*s_+ksp}", ib + hf * 2048 + odd * 8, slot=T_.slot) for hf in range(2)],
                     lambda a: [mfma(R('v', Qacc(dt, qt), 4), a, XF(t, qt), "0" if t == 0 else R('v', Qacc(dt, qt), 4)) for qt in range(3)])
def conv_pairs(even, odd, scale):
    ops = []
    for k in range(4):
        ops.append(valu("v_mul_f32", f"v{even+k}", scale, f"v{even+k}"))
        ops.append(valu("v_mul_f32", f"v{odd+k}", scale, f"v{odd+k}"))
    ops.append(valu("v_cvt_pk_bf16_f32", f"v{even}", f"v{even}", f"v{even+1}"))
    ops.append(valu("v_cvt_pk_bf16_f32", f"v{even+1}", f"v{even+2}", f"v{even+3}"))
    ops.append(valu("v_cvt_pk_bf16_f32", f"v{even+2}", f"v{odd}", f"v{odd+1}"))
    ops.append(valu("v_cvt_pk_bf16_f32", f"v{even+3}", f"v{odd+2}", f"v{odd+3}"))
    return ops
def q_convert():
    ops = []
    for ks in range(4):
        for qt in range(3): ops += conv_pairs(Qacc(2 * ks, qt), Qacc(2 * ks + 1, qt), f"s{S_C}")
    return ops
def k_frag(r, n, t, ks, dst, cinit):
    T_ = KT[r][n]
    add_frag(T_, lambda b: [ds_read("ds_read_b128", R('a', b, 4), f"v{V_AK+ks}", T_.slot * SLOT + t * 1024, slot=T_.slot)],
             lambda a: [mfma(R('v', dst(qt), 4), a, QF(ks, qt), cinit(qt) if ks == 0 else R('v', dst(qt), 4)) for qt in range(3)])
def phase_a(r):
    want_bar([KT[r][0]])
    for ks in range(4): k_frag(r, 0, 0, ks, lambda qt: Sreg(1, 0, qt), lambda qt: "0")
    ops = []
    for qt in range(3):
        s = Sreg(1, 0, qt); a, b = f"v{s}", f"v{s+1}"
        ops += [valu("v_max3_f32", a, a, b, f"v{s+2}"), valu("v_max_f32", a, a, f"v{s+3}"), valu("v_mov_b32", b, a)]
    for qt in range(3):
        s = Sreg(1, 0, qt); a, b = f"v{s}", f"v{s+1}"
        ops += [valu("v_permlane16_swap_b32", a, b)]
    for qt in range(3):
        s = Sreg(1, 0, qt); a, b = f"v{s}", f"v{s+1}"
        ops += [valu("v_max_f32", a, a, b), valu("v_mov_b32", b, a)]
    for qt in range(3):
        s = Sreg(1, 0, qt); a, b = f"v{s}", f"v{s+1}"
        ops += [valu("v_permlane32_swap_b32", a, b)]
    for qt in range(3):
        s = Sreg(1, 0, qt); a, b = f"v{s}", f"v{s+1}"
        ops += [valu("v_max_f32", a, a, b)]
        ops += [valu("v_sub_f32", f"v{NM(qt)+k}", "0", a) for k in range(4)]
    forced(ops, name="m0")
    done_at = {}
    def qk(n):
        for t in range(2):
            for ks in range(4):
                k_frag(r, n, t, ks, lambda qt: Sreg(n & 1, t, qt), lambda qt: R('v', NM(qt), 4))
            for qt in range(3): done_at[(n, t, qt)] = len(MF) - 3 + qt
    qk(0)
    win0 = len(MF)
    for n in range(16):
        want_bar(([KT[r][n + 1]] if n < 15 else []) + [VT[r][n]])
        if n < 15: qk(n + 1)
        pv0 = len(MF)
        k = 0; span = max(pv0 - win0 - 3, 1)
        for t in range(2):
            for qt in range(3):
                s = Sreg(n & 1, t, qt); ef = []
                for c in range(4):
                    w = win0 + (k * span) // 24; k += 1
                    fl = Fill(valu("v_exp_f32", f"v{s+c}", f"v{s+c}"), done_at[(n, t, qt)] + 3, pv0 - 2, want=w, name="exp")
                    FL.append(fl); ef.append(fl)
                    if c & 1:
                        FL.append(Fill(valu("v_cvt_pk_bf16_f32", f"v{Preg(n&1,qt)+2*t+(c>>1)}", f"v{s+c-1}", f"v{s+c}"), done_at[(n, t, qt)] + 3, pv0 - 1, want=w + 1, after=ef[-2:], name="cvt"))
        for qt in range(3):
            l = R('a', A_L + 4 * qt, 4)
            MF.append(mfma(l, R('a', A_ONE, 4), R('v', Preg(n & 1, qt), 4), "0" if n == 0 else l))
        T_ = VT[r][n]
        for dt in range(8):
            add_frag(T_, lambda b: [ds_read("ds_read_b64_tr_b16", R('a', b + 2 * t, 2), f"v{V_AV+dt}", (T_.slot - 4) * SLOT + t * 1024, slot=T_.slot) for t in range(2)],
                     lambda a: [mfma(R('v', Oacc(dt, qt), 4), a, R('v', Preg(n & 1, qt), 4), "0" if n == 0 else R('v', Oacc(dt, qt), 4)) for qt in range(3)])
        win0 = pv0
def o_convert():
    ops = []
    for qt in range(3):
        ops += [valu("v_accvgpr_read_b32", f"v{V_T+qt}", f"a{A_L+4*qt}")]
    for qt in range(3):
        ops += [valu("v_rcp_f32", f"v{V_T+qt}", f"v{V_T+qt}")]
    for ks in range(4):
        for qt in range(3): ops += conv_pairs(Oacc(2 * ks, qt), Oacc(2 * ks + 1, qt), f"v{V_T+qt}")
    return ops
def phase_o(r):
    for t in range(18):
        T_ = WOT[r][t]; nb, hh = t >> 1, t & 1
        want_bar([T_])
        s_, ib = lset(T_.slot)
        for ks in range(4):
            for ntl in range(2):
                first = (r == 0 and hh == 0 and ks == 0)
                add_frag(T_,
                         lambda b: [ds_read("ds_read_b64_tr_b16", R('a', b + 2 * hf, 2), f"v{V_LA+2*s_+ntl}", ib + ks * 4096 + hf * 2048, slot=T_.slot) for hf in range(2)],
                         lambda a: [mfma(R('a', OA(nb, ntl, qt), 4), a, R('v', OB(hh, ks, qt), 4), "0" if first else R('a', OA(nb, ntl, qt), 4)) for qt in range(3)])
        if r == 1 and hh == 1:
            done = len(MF) - 1
            for qt in range(3):
                tmp = V_S + 8 * ((nb * 3 + qt) % 6)
                ops = []
                for ntl in range(2):
                    for k in range(4): ops.append(valu("v_accvgpr_read_b32", f"v{tmp+4*ntl+k}", f"a{OA(nb,ntl,qt)+k}"))
                ops += [valu("v_cvt_pk_bf16_f32", f"v{tmp+k}", f"v{tmp+2*k}", f"v{tmp+2*k+1}") for k in range(4)]
                idx = nb * 3 + qt
                ops += [salu("s_mov_b32", f"s{S_T0}", lit(idx * 1024))]
                ops += [raw(f"buffer_store_dwordx4 v[{tmp}:{tmp+3}], v{V_QF}, {SWS}, s{S_T0} offen", 'D', rd=[f"v[{tmp}:{tmp+3}]", f"v{V_QF}", SWS, f"s{S_T0}"], tag="st", wide_store=True)]
                stores.append((ops, done + 4, done + 4 + 14 * qt))
def OB(hh, ks, qt): return Oacc(2 * ks + hh, qt)
def exchange(slots):
    base = slots[0] * SLOT
    ops = [valu("v_lshlrev_b32", f"v{V_T}", "4", "v0"),
           salu("s_mul_i32", f"s{S_T0}", f"s{S_W}", str(12288)),
           valu("v_add_u32", f"v{V_T+1}", f"s{S_T0}", f"v{V_T}"),
           salu("s_mul_i32", f"s{S_T0}", f"s{S_QH}", str(12288)),
           valu("v_add_u32", f"v{V_T+2}", f"s{S_T0}", f"v{V_T}")]
    for ks in range(4):
        for qt in range(3):
            ops.append(ds_write("ds_write_b128", f"v{V_T+1}", R('v', Oacc(2 * ks, qt), 4), base + (ks * 3 + qt) * 1024))
    ops.append(lambda p: p.wait_lgkm(0)); ops.append(lambda p: p.barrier())
    for hh in range(2):
        for ks in range(4):
            for qt in range(3):
                o = ds_read("ds_read_b128", R('v', OB(hh, ks, qt), 4), f"v{V_T+2}", base + hh * 24576 + (ks * 3 + qt) * 1024, slot=slots[0])
                ops.append(o)
    return ops

xreads = []; stores = []
extra_after = {}
phase_q(0)
forced(q_convert(), name="qcvt0")
phase_a(0)
gA0 = len(MF) - 1
addr_w1 = Fill(set_addr_w(), gA0 - 26, gA0 - 20, name="addrw")
FL.append(addr_w1)
forced(o_convert() + exchange([0, 1, 2]), name="ocvt0")
xch0 = len(MF) - 1
phase_q(1)
gQ1 = len(MF) - 1
forced(q_convert() + set_addr_o(), name="qcvt1")
firstO0 = len(frags)
phase_o(0)
phase_a(1)
gA1 = len(MF) - 1
addr_o1 = Fill(set_addr_o(), gA1 - 26, gA1 - 20, name="addro")
FL.append(addr_o1)
forced(o_convert() + exchange([0, 1, 2]) + [valu("v_lshlrev_b32", f"v{V_QF}", "4", "v0")], name="ocvt1")
firstO1 = len(frags)
phase_o(1)
NG = len(MF)

tile_bar = {}
prev = -2
for (need, tiles) in bar_req:
    g = max(need - LA - 1, prev + 1, -1)
    def mk(tiles):
        def f(p):
            for t in tiles: pass
            names = [t.name for t in tiles]
            idx = max((i for i, op in enumerate(p.vm) if op.tag in names), default=-1)
            for t in tiles: assert t.name in issued, t.name
            if idx >= 0: p.wait_vm_tag(p.vm[idx].tag)
            p.barrier()
        return f
    fl = Fill([mk(tiles)], g, g, want=-10**9, name="bar")
    FL.append(fl); bars.append((g, fl))
    for t in tiles: tile_bar[t.name] = fl
    prev = g
last = None
special_after = {}
for f, fr in enumerate(frags):
    e = -1
    if f >= NFR: e = frags[f - NFR]['u1']
    b = tile_bar[fr['tile'].name]
    e = max(e, b.earliest)
    aft = [b] + ([last] if last else [])
    nm = fr['tile'].name
    if nm.startswith("WQ1"): aft.append(addr_w1)
    if nm.startswith("WO1"): aft.append(addr_o1)
    if nm.startswith("WO0"): e = max(e, gQ1)
    for k, op in enumerate(fr['reads']):
        fl = Fill(op, e, fr['u0'] - 1, want=fr['u0'] - LA + k, after=aft, name="rd")
        if nm.startswith("WO0") and fr['u0'] - 1 <= gQ1: fl.want = 10**9
        FL.append(fl); last = fl; aft = [fl]
for (op, X_, u) in xreads:
    b = tile_bar[X_.name]
    FL.append(Fill(op, b.earliest, u - 1, want=u - LA - 2, after=[b], name="xrd"))
for (ops, e, w) in stores:
    prevf = None
    for k, op in enumerate(ops):
        fl = Fill(op, min(e, NG - 1), NG - 1, want=w + k // 2, after=[prevf] if prevf else [], name="st")
        FL.append(fl); prevf = fl
order = Q0T + [t for n in range(16) for t in (KT[0][n], VT[0][n])] + WQT[1] + WOT[0] + [t for n in range(16) for t in (KT[1][n], VT[1][n])] + WOT[1]
order.sort(key=lambda t: t.first_need)
occ = {}
plan = []
for t in order:
    pv = occ.get(t.slot)
    occ[t.slot] = t
    if t.name in issued: continue
    lu = pv.last_use
    if t.name in ("K1_0", "K1_1", "K1_2"): lu = max(lu, xch0 + 30)
    bg = next((g, fl) for (g, fl) in bars if g >= lu)
    plan.append((bg[0], t.first_need, t, bg[1]))
plan.sort(key=lambda x: (x[0], x[1]))
lastd = None
cur_stream = 'WQ'
for i, (g, need, t, bf) in enumerate(plan):
    ops = list(t.ops)
    if t.name.startswith('WO') and cur_stream == 'WQ':
        ops = set_L_wo() + ops; cur_stream = 'WO'
    assert not (t.name.startswith('WQ') and cur_stream == 'WO')
    same = [x for x in plan if x[0] == g]
    k0 = same.index(plan[i])
    nextbar = next((gg for (gg, _) in bars if gg > g), NG)
    span = max(nextbar - g - 2, 1)
    tot = sum(len(x[2].ops) for x in same)
    dl = tile_bar[t.name].earliest - 1
    for k, op in enumerate(ops):
        w = g + 1 + ((k0 * 6 + k) * span) // max(tot, 1)
        o = [op]
        if k == len(ops) - 1:
            o = [op, (lambda nm: (lambda p: issued.add(nm)))(t.name)]
        fl = Fill(o, g, max(dl, g), want=w, after=[bf] + ([lastd] if lastd else []), name="dma " + t.name)
        fl.cost = 1
        FL.append(fl); lastd = fl

def fast_weave(prog, mf, fills, cap=2):
    import heapq
    by_e = {}
    for k, f in enumerate(fills): by_e.setdefault(max(f.earliest, -1), []).append(f)
    act = []
    over = 0
    for g in range(-1, len(mf)):
        if g >= 0: prog.emit(mf[g])
        act += by_e.get(g, [])
        used = 0; had_e = False
        while True:
            avail = [f for f in act if all(a.done for a in f.after)]
            forced_ = [f for f in act if f.deadline <= g]
            if forced_:
                def pick(f):
                    for a in f.after:
                        if not a.done: return pick(a)
                    return f
                forced_.sort(key=lambda f: (f.excl, f.want))
                f = pick(forced_[0])
                assert f in act, (f.name, f.earliest, g, forced_[0].name)
            else:
                if g == -1 or used >= cap or had_e: break
                cand = [f for f in avail if used + f.cost <= cap and f.want <= g + 6]
                if not cand: break
                f = min(cand, key=lambda f: f.want)
            prog.emit(f.ops); f.done = True; act.remove(f)
            used += f.cost; had_e = had_e or f.excl
        if used > cap and g >= 0: over += used - cap
    assert not act, [(f.name, f.earliest, f.deadline) for f in act]
    return over
over = fast_weave(P, MF, FL)
E(raw("L_end:", 'X')); E(raw("s_endpgm", 'X'))
sys.stderr.write(f"MFMA {len(MF)} instrs {len(P.out)} nops {P.nops} overfill {over} stats {P.stats}\n")

red = f"""
.p2align 8
reduce_kernel:
s_cmp_ge_u32 s2, 864
s_cbranch_scc1 L_rend
s_load_dwordx2 s[4:5], s[0:1], 96
s_load_dwordx2 s[6:7], s[0:1], 80
v_lshrrev_b32 v1, 6, v0
v_and_b32 v0, 63, v0
s_nop 0
v_readfirstlane_b32 s3, v1
s_lshl_b32 s8, s2, 2
s_add_u32 s8, s8, s3
s_mul_hi_u32 s9, s8, {(2**32 + 107) // 108}   ; group
s_mul_i32 s10, s9, 108
s_sub_u32 s10, s8, s10          ; f in [0,108)
s_mul_i32 s11, s9, {8 * 108 * 1024}
s_lshl_b32 s12, s10, 10
s_add_u32 s11, s11, s12
s_waitcnt lgkmcnt(0)
s_add_u32 s16, s4, s11
s_addc_u32 s17, s5, 0
s_and_b32 s17, s17, 0xffff
s_mov_b32 s18, {8 * 108 * 1024}
s_mov_b32 s19, 0x20000
v_lshlrev_b32 v2, 4, v0
"""
for j in range(8):
    red += f"s_mov_b32 s20, {j * 108 * 1024}\nbuffer_load_dwordx4 v[{8+4*j}:{11+4*j}], v2, s[16:19], s20 offen\n"
red += f"""
s_mul_hi_u32 s21, s10, {(2**32 + 26) // 27}   ; w
s_mul_i32 s22, s21, 27
s_sub_u32 s22, s10, s22         ; nb*3+qt
s_mul_hi_u32 s23, s22, {(2**32 + 2) // 3}     ; nb
s_mul_i32 s24, s23, 3
s_sub_u32 s24, s22, s24         ; qt
s_lshr_b32 s25, s21, 1          ; hd
s_and_b32 s26, s21, 1           ; qh
s_lshr_b32 s27, s9, 4           ; branch
s_and_b32 s28, s9, 15           ; b
s_mul_i32 s29, s28, 96
s_mul_i32 s30, s26, 48
s_add_u32 s29, s29, s30
s_lshl_b32 s30, s24, 4
s_add_u32 s29, s29, s30
s_mul_i32 s29, s29, 2304
s_mul_i32 s30, s27, 1152
s_add_u32 s29, s29, s30
s_lshl_b32 s30, s23, 7
s_add_u32 s29, s29, s30
s_lshl_b32 s30, s25, 6
s_add_u32 s29, s29, s30
s_mov_b32 s32, s6
s_and_b32 s33, s7, 0xffff
s_mov_b32 s34, {16 * 96 * 1152 * 2}
s_mov_b32 s35, 0x20000
v_and_b32 v3, 15, v0
v_mul_u32_u24 v3, 2304, v3
v_lshrrev_b32 v4, 4, v0
v_lshl_add_u32 v3, v4, 3, v3
"""
for j in range(8):
    red += f"s_waitcnt vmcnt({7-j})\n"
    for k in range(4):
        src = 8 + 4 * j + k
        if j == 0:
            red += f"v_lshlrev_b32 v{48+2*k}, 16, v{src}\nv_and_b32 v{49+2*k}, 0xffff0000, v{src}\n"
        else:
            red += f"v_lshlrev_b32 v5, 16, v{src}\nv_and_b32 v6, 0xffff0000, v{src}\nv_add_f32 v{48+2*k}, v{48+2*k}, v5\nv_add_f32 v{49+2*k}, v{49+2*k}, v6\n"
for k in range(4):
    red += f"v_cvt_pk_bf16_f32 v{56+k}, v{48+2*k}, v{49+2*k}\n"
red += """buffer_store_dwordx2 v[56:57], v3, s[32:35], s29 offen
buffer_store_dwordx2 v[58:59], v3, s[32:35], s29 offen offset:32
L_rend:
s_endpgm
"""

def kd(name, vg, acc):
    return f""".amdhsa_kernel {name}
  .amdhsa_next_free_vgpr {vg}
  .amdhsa_next_free_sgpr 102
  .amdhsa_accum_offset {acc}
  .amdhsa_group_segment_fixed_size 0
  .amdhsa_kernarg_size 104
  .amdhsa_user_sgpr_count 2
  .amdhsa_user_sgpr_kernarg_segment_ptr 1
  .amdhsa_system_sgpr_workgroup_id_x 1
.end_amdhsa_kernel
"""
txt = f"""; generated by gen/gen1.py
; @launch kernel={NAME}_kernel grid=(256,1,1) block=(256,1,1) lds=163840
; @launch kernel=reduce_kernel grid=(864,1,1) block=(256,1,1) lds=0
.amdgcn_target "amdgcn-amd-amdhsa--gfx950"
.text
.globl {NAME}_kernel
.p2align 8
.type {NAME}_kernel,@function
{NAME}_kernel:
""" + P.text() + "\n.globl reduce_kernel\n.type reduce_kernel,@function\n" + red + '\n.section .rodata,"a"\n.p2align 6\n' + kd(NAME + "_kernel", 512, 256) + ".p2align 6\n" + kd("reduce_kernel", 64, 64)
open(sys.argv[1], "w").write(txt)
```

```python
import sys, math, struct, re
from asmlib import *

NAME = "concat_heads__mha_block_cached__mha_block_cached__near_ridge"
OPT = dict(LA=13, LAT=7, dlate=8, llate=3, wah=4, hz=5, nt_kv=1, stamp=0, cpf=1, fake=0, slow=1, forceslow=0, compact=1, rot=1, psleep=8,
           leadh=110, ntq0=0, pfw=0, pft0=6, pfd=2, early=0, e0=150, estep=48, pft=0, pfs=10, ntx=0, npl0=3, npl1=0, hb=0, h0=1, h1=30, l0=45, l1=62, stf=1, ldf=1, wb=0, maxlead=260, o0start=2)
for a in sys.argv[2:]:
    k, v = a.split('='); OPT[k] = int(v) if k != 'at' else [int(x) for x in v.split(',')]
LA, LAT = OPT['LA'], OPT['LAT']

V_TA, V_AO0, V_TB = 1, 2, 3
V_AK, V_AV = 4, 8
V_KA, V_KB, V_VA, V_VB = 16, 17, 18, 19
V_L = 20; V_WO0 = 24; V_T = 25
V_QF = 28; V_O = 76; V_S = 172; V_P = 220; V_NM = 244; V_H = 248
A_L = 216; A_ONE = 228; A_FR = 232; NFR = 6
def QFr(ks, qt): return V_QF + 4 * (ks * 3 + qt)
def QF(ks, qt): return R('v', QFr(ks, qt), 4)
def Oacc(dt, qt): return V_O + 4 * (dt * 3 + qt)
def Sreg(buf, t, qt): return V_S + 24 * buf + 4 * (t * 3 + qt)
def Preg(buf, qt): return V_P + 12 * buf + 4 * qt
NMR = R('v', V_NM, 4)
RL = [V_NM, V_NM + 2, V_H + 6]
def XFr(p, qt): return 12 * p + 4 * qt
def QaccQS(dt, qt): return QFr(dt >> 1, qt) if dt % 2 == 0 else (V_S + 4 * ((dt >> 1) * 3 + qt))
OBA = [96 + 4 * i for i in range(18)] + [192 + 4 * i for i in range(6)]
def OBa(hh, ks, qt): return OBA[(hh * 4 + ks) * 3 + qt]
ACCB = [0, 24]
PARK = [48, 60, 72, 84, 168, 180]
S_W, S_W4K, S_W3K = 3, 4, 5
SK, SV, SWQ, SWO, SX, SWS = 's[8:11]', 's[12:15]', 's[16:19]', 's[20:23]', 's[24:27]', 's[28:31]'
S_OFF, S_C, S_T0, S_T1, S_HD, S_QH, S_ST = 32, 34, 36, 37, 38, 39, 33
S_RET = 's[6:7]'
SLOT = 16384
KPW = [52 + p for p in range(9)]
KPX = [61, 62, 63, 64, 65, 66, 67, 43, 45]
def lit(x): return hex(x & 0xffffffff)
cval = struct.unpack('<I', struct.pack('<f', math.log2(math.e) / math.sqrt(128.0)))[0]
NT = "nt" if OPT['nt_kv'] else ""
def win(slot): return (2, (slot - 6) * SLOT) if slot >= 6 else ((1, (slot - 3) * SLOT) if slot >= 3 else (0, slot * SLOT))
WBASE = [0, 3 * SLOT, 6 * SLOT]
AW = {2: V_H, 1: V_P}
AX = {2: V_H + 4, 0: V_P + 4}
AO = {2: V_H, 1: V_H + 2, 0: V_H + 4}

class Tile:
    def __init__(s, name, slot, ops, cands=None, lead=None):
        s.name = name; s.slot = slot; s.ops = ops; s.cands = cands; s.lead = lead
        s.last_use = None; s.first_need = None
def x_ops(n, i, slot):
    return [salu("s_add_u32", "m0", f"s{S_W3K}", lit(slot * SLOT))] + [dma(f"v{V_T+j}", SX, f"s{KPX[i]}", 1024 * j, "nt" if (OPT['ntx'] or (OPT['ntq0'] and n.startswith("X0"))) else "", tag=n, slot=slot) for j in range(3)]
def w_ops(srd, n, sreg, off, slot):
    ops = [salu("s_add_u32", "m0", f"s{S_W4K}", lit(slot * SLOT))]; so = f"s{sreg}"
    if off: ops.append(salu("s_add_u32", f"s{S_OFF}", so, lit(off))); so = f"s{S_OFF}"
    return ops + [dma(f"v{V_L+j}", srd, so, 1024 * j, "nt" if (OPT['ntq0'] and n.startswith("WQ0")) else "", tag=n, slot=slot) for j in range(4)]
def wq_ops(r, p, slot): return w_ops(SWQ, f"WQ{r}_{p}", KPW[p >> 1], (p & 1) * 262144 + r * 512, slot)
def wo_ops(h4, nb, slot): return w_ops(SWO, f"WO{h4}_{nb}", KPX[nb], h4 * 128 * 1152, slot)
def kv_ops(kind, r, n_, slot):
    n = f"{kind}{r}_{n_}"
    va, vb, srd = (V_KA, V_KB, SK) if kind == 'K' else (V_VA, V_VB, SV)
    ops = [salu("s_add_u32", "m0", f"s{S_W4K}", lit(slot * SLOT)), salu("s_mov_b32", f"s{S_OFF}", lit((n_ & 1) * 8192 if OPT['fake'] else r * 262144 + n_ * 8192))]
    return ops + [dma(f"v{va}", srd, f"s{S_OFF}", 0, NT, tag=n, slot=slot), dma(f"v{va}", srd, f"s{S_OFF}", 1024, NT, tag=n, slot=slot),
                  dma(f"v{vb}", srd, f"s{S_OFF}", 2048, NT, tag=n, slot=slot), dma(f"v{vb}", srd, f"s{S_OFF}", 3072, NT, tag=n, slot=slot)]
def set_L_wo():
    return [valu("v_mov_b32", f"v{V_L}", f"v{V_WO0}")] + [valu("v_add_u32", f"v{V_L+j}", str(8192 * j), f"v{V_WO0}") for j in (1, 2, 3)]
def set_addr_o(w):
    return [valu("v_add_u32", f"v{AO[w]}", lit(WBASE[w]), f"v{V_AO0}"), valu("v_xor_b32", f"v{AO[w]+1}", "32", f"v{AO[w]}")]
def stamp_ops(k):
    if not OPT['stamp']: return []
    return [lambda p: p.wait_lgkm(0), raw("s_memrealtime s[74:75]", 'S'), raw("s_memtime s[76:77]", 'S'), raw("s_waitcnt lgkmcnt(0)", 'W'),
            raw(f"s_mov_b32 s{78+k}, s74", 'S'), raw(f"s_mov_b32 s{89+k}, s76", 'S')]
PRE = {"X0_0": 0, "WQ0_0": 6, "WQ0_1": 7, "X0_1": 1}

P0 = Prog(); E = P0.emit
E(raw("s_cmp_ge_u32 s2, 256", 'S')); E(raw("s_cbranch_scc1 L_end0", 'S'))
E(raw("s_load_dwordx16 s[80:95], s[0:1], 0", 'S'))
E(raw("s_load_dwordx4 s[96:99], s[0:1], 64", 'S'))
E(raw("s_load_dwordx4 s[68:71], s[0:1], 80", 'S'))
E(raw("s_load_dwordx2 s[72:73], s[0:1], 96", 'S'))
if OPT['stamp']: E(raw("s_memrealtime s[74:75]", 'S')); E(raw("s_memtime s[76:77]", 'S'))
E(valu("v_lshrrev_b32", "v1", "6", "v0")); E(valu("v_and_b32", "v0", "63", "v0"))
E(valu("v_readfirstlane_b32", f"s{S_W}", "v1"))
E(salu("s_and_b32", "s40", "s2", "7")); E(salu("s_lshr_b32", "s41", "s2", "3"))
E(salu("s_lshr_b32", "s42", "s40", "2")); E(salu("s_and_b32", "s43", "s40", "3"))
E(salu("s_lshr_b32", "s44", "s41", "1")); E(salu("s_and_b32", "s45", "s41", "1"))
E(salu("s_lshl_b32", "s46", "s43", "1")); E(salu("s_add_u32", "s46", "s46", "s45"))
E(salu("s_mul_i32", "s48", "s45", "5")); E(salu("s_add_u32", "s48", "s48", "s44"))
for _ in range(2):
    E(salu("s_sub_u32", "s49", "s48", "9")); E(raw("s_cmp_ge_u32 s48, 9", 'S')); E(raw("s_cselect_b32 s48, s49, s48", 'S', wr=["s48"]))
if not OPT['rot'] or OPT['fake'] > 1: E(salu("s_mov_b32", "s48", "0"))
E(salu("s_lshl_b32", f"s{KPW[0]}", "s48", "19")); E(salu("s_lshl_b32", f"s{KPX[0]}", "s48", "7"))
E(salu("s_lshl_b32", f"s{S_W4K}", f"s{S_W}", "12")); E(salu("s_mul_i32", f"s{S_W3K}", f"s{S_W}", "3072"))
T = V_S
i16, g4, r4, c4, i5, t0, t1, t2 = (f"v{T+k}" for k in range(8))
E(valu("v_lshrrev_b32", i5, "5", "v0")); E(valu("v_and_b32", t2, "7", "v0"))
E(salu("s_mul_i32", f"s{S_T0}", f"s{S_W}", "24"))
for j in range(3):
    E(valu("v_lshrrev_b32", t0, "3", "v0")); E(valu("v_add3_u32", t0, t0, f"s{S_T0}", str(8 * j)))
    E(valu("v_bfe_u32", t1, t0, "1", "3")); E(valu("v_xor_b32", t1, t1, t2))
    E(valu("v_mul_u32_u24", t0, "1152", t0)); E(valu("v_lshl_add_u32", f"v{V_T+j}", t1, "4", t0))
    if j: E(valu("v_subrev_u32", f"v{V_T+j}", str(1024 * j), f"v{V_T+j}"))
E(salu("s_lshl_b32", f"s{S_T0}", f"s{S_W}", "3"))
E(valu("v_add_u32", t0, f"s{S_T0}", i5)); E(valu("v_lshlrev_b32", t0, "13", t0))
E(valu("v_and_b32", t1, "31", "v0")); E(valu("v_lshlrev_b32", t2, "2", i5)); E(valu("v_xor_b32", t1, t1, t2))
E(valu("v_lshl_add_u32", f"v{V_L}", t1, "4", t0))
E(valu("v_xor_b32", f"v{V_L+1}", "0x80", f"v{V_L}")); E(valu("v_add_u32", f"v{V_L+2}", str(2 * 15360), f"v{V_L}"))
E(valu("v_add_u32", f"v{V_L+3}", str(3 * 15360), f"v{V_L+1}")); E(valu("v_add_u32", f"v{V_L+1}", str(15360), f"v{V_L+1}"))
E(salu("s_mul_i32", f"s{S_T0}", "s44", "110592")); E(salu("s_lshl_b32", f"s{S_T1}", "s46", "10"))
E(salu("s_mov_b32", "s26", lit(110592))); E(salu("s_mov_b32", "s27", "0x20000"))
E(salu("s_sub_u32", "s18", lit(576 * 8192), f"s{S_T1}")); E(salu("s_mov_b32", "s19", "0x20000"))
E(raw("s_waitcnt lgkmcnt(0)", 'W'))
E(raw("s_cmp_eq_u32 s42, 0", 'S'))
for (d, a, b) in [(24, 80, 90), (16, 86, 96), (8, 82, 92), (12, 84, 94), (20, 88, 98)]:
    E(raw(f"s_cselect_b64 s[{d}:{d+1}], s[{a}:{a+1}], s[{b}:{b+1}]", 'S', wr=[f"s[{d}:{d+1}]"]))
if OPT['stamp']: E(raw("s_mov_b32 s78, s74", 'S')); E(raw("s_mov_b32 s89, s76", 'S'))
def srd_base(E, d, off_s):
    E(salu("s_add_u32", f"s{d}", f"s{d}", off_s)); E(salu("s_addc_u32", f"s{d+1}", f"s{d+1}", "0")); E(salu("s_and_b32", f"s{d+1}", f"s{d+1}", "0xffff"))
def srd_finish(E, d, off_s, size):
    srd_base(E, d, off_s); E(salu("s_mov_b32", f"s{d+2}", lit(size))); E(salu("s_mov_b32", f"s{d+3}", "0x20000"))
srd_base(E, 24, f"s{S_T0}"); E(x_ops("X0_0", 0, PRE["X0_0"]))
srd_base(E, 16, f"s{S_T1}"); E(wq_ops(0, 0, PRE["WQ0_0"]))
if OPT['cpf']:
    E(raw("s_getpc_b64 s[28:29]", 'S', wr=["s[28:29]"])); E(raw("L_pc0:", 'X'))
    E(salu("s_and_b32", "s29", "s29", "0xffff")); E(raw("s_mov_b32 s30, L_codeend-L_pc0", 'S', wr=["s30"])); E(salu("s_mov_b32", "s31", "0x20000"))
    E(salu("s_lshl_b32", "s47", "s41", "2")); E(salu("s_add_u32", "s47", "s47", f"s{S_W}")); E(salu("s_mul_i32", "s47", "s47", "640"))
    E(valu("v_min_u32", "v2", "4", "v0")); E(valu("v_lshlrev_b32", "v2", "7", "v2"))
    E(raw(f"buffer_load_dword v{V_NM+2}, v2, s[28:31], s47 offen", 'D', rd=["v2", "s[28:31]", "s47"], wr=[f"v{V_NM+2}"], tag="pf"))
E(salu("s_lshr_b32", f"s{S_HD}", f"s{S_W}", "1")); E(salu("s_and_b32", f"s{S_QH}", f"s{S_W}", "1"))
for p in range(1, 9):
    if OPT['fake'] > 1: E(salu("s_mov_b32", "s48", str(p & 1)))
    else:
        E(salu("s_add_u32", "s48", "s48", "1")); E(raw("s_cmp_eq_u32 s48, 9", 'S')); E(raw("s_cselect_b32 s48, 0, s48", 'S', wr=["s48"]))
    E(salu("s_lshl_b32", f"s{KPW[p]}", "s48", "19")); E(salu("s_lshl_b32", f"s{KPX[p]}", "s48", "7"))
E(valu("v_and_b32", i16, "15", "v0")); E(valu("v_lshrrev_b32", g4, "4", "v0"))
E(valu("v_bfe_u32", r4, "v0", "2", "2")); E(valu("v_and_b32", c4, "3", "v0"))
E(valu("v_lshl_add_u32", t0, g4, "3", r4)); E(valu("v_lshlrev_b32", t0, "9", t0))
E(valu("v_lshl_add_u32", t1, r4, "2", c4)); E(valu("v_lshl_add_u32", t0, t1, "4", t0))
E(salu("s_lshl_b32", f"s{S_T0}", f"s{S_HD}", "8")); E(valu("v_add_u32", t0, f"s{S_T0}", t0))
for w in (2, 1):
    E(valu("v_add_u32", f"v{AW[w]}", lit(WBASE[w]), t0))
    for k in (1, 2, 3): E(valu("v_xor_b32", f"v{AW[w]+k}", str(k << 6), f"v{AW[w]}"))
E(salu("s_mul_i32", f"s{S_T0}", f"s{S_QH}", str(48 * 128)))
E(valu("v_lshlrev_b32", t0, "7", i16)); E(valu("v_add_u32", t0, f"s{S_T0}", t0))
E(valu("v_lshrrev_b32", t1, "1", i16)); E(valu("v_xor_b32", t1, t1, g4)); E(valu("v_lshl_add_u32", f"v{AX[0]}", t1, "4", t0))
E(valu("v_xor_b32", f"v{AX[0]+1}", "64", f"v{AX[0]}"))
E(valu("v_add_u32", f"v{AX[2]}", lit(WBASE[2]), f"v{AX[0]}")); E(valu("v_add_u32", f"v{AX[2]+1}", lit(WBASE[2]), f"v{AX[0]+1}"))
E(salu("s_lshl_b32", f"s{S_T0}", "s44", "22")); E(salu("s_lshl_b32", f"s{S_T1}", "s46", "19")); E(salu("s_add_u32", f"s{S_T0}", f"s{S_T0}", f"s{S_T1}"))
if OPT['fake']: E(salu("s_mov_b32", f"s{S_T0}", "0"))
srd_finish(E, 8, f"s{S_T0}", 524288); srd_finish(E, 12, f"s{S_T0}", 524288)
E(salu("s_mul_i32", f"s{S_T0}", "s46", str(512 * 1152))); srd_finish(E, 20, f"s{S_T0}", 512 * 1152)
E(salu("s_lshl_b32", "s40", "s42", "4")); E(salu("s_add_u32", "s40", "s40", "s44"))
E(salu("s_mul_i32", f"s{S_T0}", "s40", str(8 * 108 * 1024)))
E(raw("s_mov_b64 s[28:29], s[72:73]", 'S', wr=["s[28:29]"], rd=["s[28:29]"])); srd_finish(E, 28, f"s{S_T0}", 8 * 108 * 1024)
E(salu("s_mul_i32", "s47", "s46", str(108 * 1024))); E(salu("s_mul_i32", f"s{S_T1}", f"s{S_W}", str(27 * 1024))); E(salu("s_add_u32", "s47", "s47", f"s{S_T1}"))
E(salu("s_mov_b32", f"s{S_C}", hex(cval))); E(salu("s_mov_b32", f"s{S_C+1}", hex(cval)))
E(salu("s_lshl_b32", f"s{S_T0}", f"s{S_W}", "3"))
E(valu("v_add_u32", t0, f"s{S_T0}", g4)); E(valu("v_lshlrev_b32", t0, "8", t0))
E(salu("s_lshl_b32", f"s{S_T1}", f"s{S_W}", "2"))
E(valu("v_or_b32", t1, f"s{S_T1}", g4)); E(valu("v_xor_b32", t1, t1, i16))
E(valu("v_lshl_add_u32", f"v{V_KA}", t1, "4", t0)); E(valu("v_add_u32", f"v{V_KB}", str(131072 - 2048), f"v{V_KA}"))
E(salu("s_lshl_b32", f"s{S_T1}", f"s{S_QH}", "2"))
E(valu("v_or_b32", t1, f"s{S_T1}", g4)); E(valu("v_lshlrev_b32", t1, "1", t1)); E(valu("v_xor_b32", t1, t1, i16))
E(valu("v_lshl_add_u32", f"v{V_VA}", t1, "4", t0)); E(valu("v_add_u32", f"v{V_VB}", str(131072 - 2048), f"v{V_VA}"))
E(salu("s_lshl_b32", f"s{S_T0}", f"s{S_W}", "5"))
E(valu("v_lshrrev_b32", t0, "3", "v0")); E(valu("v_add_u32", t0, f"s{S_T0}", t0)); E(valu("v_mul_u32_u24", t0, "1152", t0))
E(valu("v_lshlrev_b32", t1, "1", g4)); E(valu("v_and_b32", t2, "7", "v0")); E(valu("v_xor_b32", t1, t1, t2))
E(valu("v_lshl_add_u32", f"v{V_WO0}", t1, "4", t0))
E(salu("s_lshl_b32", f"s{S_T0}", f"s{S_HD}", "11"))
E(valu("v_lshrrev_b32", t0, "2", i16)); E(valu("v_lshlrev_b32", t0, "12", t0)); E(valu("v_add_u32", t0, f"s{S_T0}", t0))
E(valu("v_lshl_add_u32", t0, c4, "8", t0))
E(valu("v_xor_b32", t1, g4, i16)); E(valu("v_lshl_add_u32", f"v{V_AK}", t1, "4", t0))
for ks in (1, 2, 3): E(valu("v_xor_b32", f"v{V_AK+ks}", str(ks << 6), f"v{V_AK}"))
E(valu("v_lshlrev_b32", t0, "12", g4)); E(valu("v_add_u32", t0, f"s{S_T0}", t0)); E(valu("v_lshl_add_u32", t0, r4, "8", t0))
E(valu("v_lshl_add_u32", t0, c4, "3", t0))
E(valu("v_and_b32", t1, "1", g4)); E(valu("v_lshl_or_b32", t1, t1, "2", r4))
E(valu("v_lshl_add_u32", t0, t1, "5", t0)); E(valu("v_add_u32", f"v{V_AV}", lit(WBASE[1]), t0))
for dt in range(1, 8): E(valu("v_xor_b32", f"v{V_AV+dt}", str(dt << 5), f"v{V_AV}"))
E(valu("v_lshl_add_u32", t0, g4, "2", r4)); E(valu("v_bfe_u32", t1, t0, "1", "2"))
E(salu("s_lshl_b32", f"s{S_T0}", f"s{S_HD}", "1")); E(valu("v_xor_b32", t1, f"s{S_T0}", t1))
E(valu("v_lshlrev_b32", t0, "7", t0)); E(valu("v_lshl_add_u32", t0, t1, "5", t0)); E(valu("v_lshl_add_u32", f"v{V_AO0}", c4, "3", t0))
E(valu("v_mov_b32", t0, "0x3f803f80"))
for k in range(4): E(valu("v_accvgpr_write_b32", f"a{A_ONE+k}", t0))
E(wq_ops(0, 1, PRE["WQ0_1"])); E(x_ops("X0_1", 1, PRE["X0_1"]))

def cat(op): return 'X' if callable(op) else op.kind
class Build:
    def __init__(s, alloc):
        s.alloc = alloc
        s.P = Prog(); s.P.vm = list(P0.vm)
        s.MF = []; s.FL = []; s.frags = []; s.bar_req = []; s.tiles = []; s.issued = set(PRE)
        s.nst = 1; s.late = []; s.xneed = {}; s.win_after = []
        s.KT = {r: [s.fixed(f"K{r}_{n}", (16 * r + n) % 3, lambda sl, r=r, n=n: kv_ops('K', r, n, sl)) for n in range(16)] for r in (0, 1)}
        s.VT = {r: [s.fixed(f"V{r}_{n}", 3 + (16 * r + n) % 3, lambda sl, r=r, n=n: kv_ops('V', r, n, sl)) for n in range(16)] for r in (0, 1)}
        s.pending_st = []
        for i, t in enumerate([s.KT[0][0], s.KT[0][1], s.VT[0][0], s.KT[0][2], s.VT[0][1], s.VT[0][2]][:OPT['early']]): t.want_issue = OPT['e0'] + i * OPT['estep']
    def fixed(s, name, slot, mk, lead=None):
        t = Tile(name, slot, mk(slot), lead=OPT['leadh'] if lead is None else lead); s.tiles.append(t); return t
    def free(s, name, cands, mk):
        sl = PRE.get(name, s.alloc.get(name, cands[0]))
        t = Tile(name, sl, mk(sl), cands=None if name in PRE else cands, lead=0); s.tiles.append(t); return t
    def g(s): return len(s.MF) - 1
    def fill(s, ops, e, d, want=None, after=(), name=""):
        f = Fill(ops, e, max(d, e), want=want, after=[a for a in after if a is not None], name=name); s.FL.append(f); return f
    def chain(s, ops, e, d, want0=None, step=0.5, after=(), name=""):
        prev = list(after); f = None
        for k, op in enumerate(ops):
            f = s.fill(op, e, d, want=(e if want0 is None else want0) + k * step, after=prev, name=name); prev = [f]
        return f
    def forced(s, ops, gap=None, name="", after=()):
        gg = s.g() if gap is None else gap
        f = Fill(ops, gg, gg, want=-10**9 + len(s.FL), after=after, name=name); f.excl = False; s.FL.append(f); return f
    def stamp(s):
        if OPT.get('at'): return
        if OPT['stamp']: s.forced(stamp_ops(s.nst), name="stamp")
        s.nst += 1
    def add_frag(s, tile, mk_reads, mk_mfmas, after=None):
        f = len(s.frags); base = A_FR + 4 * (f % NFR)
        u0 = len(s.MF); s.MF.extend(mk_mfmas(R('a', base, 4))); u1 = len(s.MF) - 1
        s.frags.append(dict(reads=mk_reads(base), u0=u0, u1=u1, tile=tile, after=after))
        tile.last_use = u1
        if tile.first_need is None: tile.first_need = u0
    def want_bar(s, tiles): s.bar_req.append([len(s.MF), list(tiles)]); return len(s.bar_req) - 1
    def q_frag(s, T_, dt, acc, xr, first):
        w, ib = win(T_.slot); ksp, odd = dt >> 1, dt & 1
        s.add_frag(T_, lambda b: [ds_read("ds_read_b64_tr_b16", R('a', b + 2 * hf, 2), f"v{AW[w]+ksp}", ib + hf * 2048 + odd * 8, slot=T_.slot) for hf in range(2)],
                   lambda a: [mfma(acc(dt, qt), a, R('a', xr + 4 * qt, 4), "0" if first else acc(dt, qt)) for qt in range(3)])
    def x_reads(s, X_, regs, e_list, need_list):
        X_.last_use = max(need_list) + 2
        def mk():
            b = s.tile_bar[X_.name]; w, ib = win(X_.slot); k = 0
            for ksl in range(2):
                for qt in range(3):
                    op = ds_read("ds_read_b128", R('a', regs[ksl] + 4 * qt, 4), f"v{AX[w]+ksl}", ib + qt * 2048, slot=X_.slot)
                    s.xneed[id(op)] = need_list[ksl]
                    e = max(b.earliest, e_list[ksl])
                    s.fill(op, e, need_list[ksl] - 1, want=max(e - 2, min(need_list[ksl] - LA - 6, e + 4)) + k * 0.7, after=[b], name="xrd"); k += 1
        s.late.append(mk)
    def conv(s, even, odd, scale, dst=None, pk=False):
        dst = even if dst is None else dst
        if pk: ops = [valu("v_pk_mul_f32", R('v', b, 2), R('v', b, 2), scale, extra="" if scale[0] == 's' else " op_sel_hi:[1,0]") for b in (even, even + 2, odd, odd + 2)]
        else:
            sc = scale[0] + scale[2:].split(':')[0]
            ops = [valu("v_mul_f32", f"v{b+k}", sc, f"v{b+k}") for b in (even, odd) for k in range(4)]
        ops += [valu("v_cvt_pk_bf16_f32", f"v{dst}", f"v{even}", f"v{even+1}"), valu("v_cvt_pk_bf16_f32", f"v{dst+1}", f"v{even+2}", f"v{even+3}"),
                valu("v_cvt_pk_bf16_f32", f"v{dst+2}", f"v{odd}", f"v{odd+1}"), valu("v_cvt_pk_bf16_f32", f"v{dst+3}", f"v{odd+2}", f"v{odd+3}")]
        return ops
    def k_frag(s, r, n, t, ks, dst, cinit):
        T_ = s.KT[r][n]
        s.add_frag(T_, lambda b: [ds_read("ds_read_b128", R('a', b, 4), f"v{V_AK+ks}", T_.slot * SLOT + t * 1024, slot=T_.slot)],
                   lambda a: [mfma(R('v', dst(qt), 4), a, QF(ks, qt), cinit if ks == 0 else R('v', dst(qt), 4)) for qt in range(3)])
    def m0(s, r, after=()):
        bi = s.want_bar([s.KT[r][0]])
        for ks in range(4): s.k_frag(r, 0, 0, ks, lambda qt: Sreg(1, 0, qt), "0")
        x = Sreg(1, 0, 0); a, b = f"v{x}", f"v{x+1}"
        ops = [valu("v_max3_f32", a, a, b, f"v{x+2}"), valu("v_max3_f32", f"v{x+3}", f"v{x+3}", f"v{x+4}", f"v{x+5}"), valu("v_max3_f32", f"v{x+6}", f"v{x+6}", f"v{x+7}", f"v{x+8}"),
               valu("v_max3_f32", f"v{x+9}", f"v{x+9}", f"v{x+10}", f"v{x+11}"), valu("v_max3_f32", a, a, f"v{x+3}", f"v{x+6}"), valu("v_max_f32", a, a, f"v{x+9}"),
               valu("v_mov_b32", b, a), valu("v_permlane16_swap_b32", a, b), valu("v_max_f32", a, a, b), valu("v_mov_b32", b, a),
               valu("v_permlane32_swap_b32", a, b), valu("v_max_f32", a, a, b)] + [valu("v_sub_f32", f"v{V_NM+k}", "0", a) for k in range(4)]
        f = s.forced(ops, name="m0v", after=after); f.want = 10**7
        return bi
    def phase_a(s, r, lwork):
        done_at = {}; info = {'bar': [], 'step0': []}
        def qk(n):
            for t in range(2):
                for ks in range(4): s.k_frag(r, n, t, ks, lambda qt: Sreg(n & 1, t, qt), NMR)
                for qt in range(3): done_at[(n, t, qt)] = len(s.MF) - 3 + qt
        qk(0)
        for n in range(16):
            bi = s.want_bar(([s.KT[r][n + 1]] if n < 15 else []) + [s.VT[r][n]]); info['bar'].append(bi); info['step0'].append(len(s.MF))
            if n < 15: qk(n + 1)
            pv0 = len(s.MF); k = 0
            for t in range(2):
                for qt in range(3):
                    sr = Sreg(n & 1, t, qt); ef = []; e = done_at[(n, t, qt)] + 4
                    for c in range(4):
                        w = e + k * 0.01; k += 1
                        ef.append(s.fill(valu("v_exp_f32", f"v{sr+c}", f"v{sr+c}"), e, pv0 - 2, want=w, name="exp"))
                        if c & 1:
                            s.fill(valu("v_cvt_pk_bf16_f32", f"v{Preg(n&1,qt)+2*t+(c>>1)}", f"v{sr+c-1}", f"v{sr+c}"), e, pv0 - 1, want=w, after=ef[-2:], name="cvt")
            for qt in range(3):
                l = R('a', A_L + 4 * qt, 4)
                s.MF.append(mfma(l, R('a', A_ONE, 4), R('v', Preg(n & 1, qt), 4), "0" if n == 0 else l))
            T_ = s.VT[r][n]
            for dt in range(8):
                s.add_frag(T_, lambda b: [ds_read("ds_read_b64_tr_b16", R('a', b + 2 * t, 2), f"v{V_AV+dt}", (T_.slot - 3) * SLOT + t * 1024, slot=T_.slot) for t in range(2)],
                           lambda a: [mfma(R('v', Oacc(dt, qt), 4), a, R('v', Preg(n & 1, qt), 4), "0" if n == 0 else R('v', Oacc(dt, qt), 4)) for qt in range(3)])
                info[dt] = s.g()
            if n == 0: info['pv_first'] = pv0
            info['pv_last'] = pv0; info['pv_end'] = s.g()
            lwork(n, bi)
        return info
    def o_finish(s, r, info, dl):
        pv0 = info['pv_last']; ta, tb = f"v{V_NM+1}", f"v{V_NM+3}"
        ops = [valu("v_accvgpr_read_b32", f"v{RL[qt]}", f"a{A_L+4*qt}") for qt in range(3)]
        if OPT['slow']:
            lab = f"L_ok{r}"
            ops += [valu("v_add_f32", ta, f"v{RL[0]}", f"v{RL[1]}"), valu("v_min3_f32", tb, f"v{RL[0]}", f"v{RL[1]}", f"v{RL[2]}"), valu("v_add_f32", ta, ta, f"v{RL[2]}"),
                    salu("s_mov_b32", "s48", "0x5d800000" if not OPT['forceslow'] else "0"), salu("s_mov_b32", "s49", "0x21800000"),
                    raw(f"v_cmp_nge_f32 vcc, s48, {ta}", 'V', rd=[ta, "s48"], wr=['vcc']),
                    raw(f"v_cmp_nle_f32 s[50:51], s49, {tb}", 'V', rd=[tb, "s49"], wr=['s[50:51]']),
                    raw("s_nop 1", 'W'), raw("s_or_b64 vcc, vcc, s[50:51]", 'S'),
                    raw(f"s_cbranch_vccz {lab}", 'S', rd=['vcc']),
                    salu("s_mov_b32", "s48", lit(r * 262144)),
                    raw(f"s_getpc_b64 {S_RET}", 'S'), raw("s_add_u32 s6, s6, 12", 'S'), raw("s_addc_u32 s7, s7, 0", 'S'), raw("s_branch L_slow", 'S'),
                    raw(f"{lab}:", 'X')]
        chk = s.forced(ops, gap=pv0 + 5, name="lchk")
        rc = s.chain([valu("v_rcp_f32", f"v{RL[qt]}", f"v{RL[qt]}") for qt in range(3)], pv0 + 5, pv0 + 9, after=[chk], name="rcp")
        last = {}
        for ks in range(4):
            for qt in range(3):
                e = min(info[2 * ks + 1] + 3, dl(ks, qt))
                last[(ks, qt)] = s.chain(s.conv(Oacc(2 * ks, qt), Oacc(2 * ks + 1, qt), R('v', RL[qt], 2)), e, dl(ks, qt), want0=e + (ks * 3 + qt) * 0.01, step=0.5, after=[rc], name="ocv")
        return last
    def xaddr(s, e, stride):
        return s.chain([valu("v_lshlrev_b32", f"v{V_T}", "4", "v0"), salu("s_mul_i32", f"s{S_T1}", f"s{S_W}", str(stride)),
                        valu("v_add_u32", f"v{V_T+1}", f"s{S_T1}", f"v{V_T}"), salu("s_mul_i32", f"s{S_T1}", f"s{S_QH}", str(stride)),
                        valu("v_add_u32", f"v{V_T+2}", f"s{S_T1}", f"v{V_T}")], e, e + 8, name="xpre")
    def xround(s, name, fr, slots, stride, last, pre, bar_w, bar_pub, dst, rdead, addr_bias=0):
        res = [s.fixed(f"{name}_{sl}", sl, lambda sl: [], lead=0) for sl in slots]
        for t in res:
            t.first_need = s.bar_req[bar_w][0]; t.last_use = rdead + 1; t.scratch = bar_w
            s.issued.add(t.name)
        base = slots[0] * SLOT - addr_bias
        out = {}
        def mk():
            bw, bp = s.barfill[bar_w], s.barfill[bar_pub]
            for i, (ks, qt) in enumerate(fr):
                lf = last[(ks, qt)]
                op = ds_write("ds_write_b128", f"v{V_T+1}", R('v', Oacc(2 * ks, qt), 4), base + i * 1024); op.note = tuple(slots)
                w_ = s.fill(op, max(lf.earliest, bw.earliest), bp.earliest, want=max(lf.want, bw.earliest) + 0.1 + i * 0.01, after=[lf, pre, bw], name="xw")
                bp.after.append(w_)
            k = 0
            for i, (ks, qt) in enumerate(fr):
                for hh in range(2):
                    op = ds_read("ds_read_b128", dst(hh, ks, qt), f"v{V_T+2}", base + hh * 2 * stride + i * 1024, slot=('X',) + tuple(slots))
                    out[(hh, ks, qt)] = s.fill(op, bp.earliest, rdead, want=bp.earliest + 1 + k * 1.5, after=[bp], name="xr"); k += 1
        s.late.append(mk)
        return out
    def o_tile(s, T_, bfr, accr, first):
        w, ib = win(T_.slot)
        for ks in range(4):
            for ntl in range(2):
                s.add_frag(T_, lambda b: [ds_read("ds_read_b64_tr_b16", R('a', b + 2 * hf, 2), f"v{AO[w]+ntl}", ib + ks * 4096 + hf * 2048, slot=T_.slot) for hf in range(2)],
                           lambda a: [mfma(accr(ntl, qt), a, bfr(ks, qt), "0" if (first and ks == 0) else accr(ntl, qt)) for qt in range(3)], after=('O', w))
    def store_ops(s, src0, src1, tmp, nb, qt, from_acc):
        ops = []
        if from_acc:
            for k in range(4): ops.append(valu("v_accvgpr_read_b32", f"v{tmp+k}", f"a{src0+k}"))
            for k in range(4): ops.append(valu("v_accvgpr_read_b32", f"v{tmp+4+k}", f"a{src1+k}"))
            src0, src1 = tmp, tmp + 4
        d = src0
        ops += [valu("v_cvt_pk_bf16_f32", f"v{d}", f"v{src0}", f"v{src0+1}"), valu("v_cvt_pk_bf16_f32", f"v{d+1}", f"v{src0+2}", f"v{src0+3}"),
                valu("v_cvt_pk_bf16_f32", f"v{d+2}", f"v{src1}", f"v{src1+1}"), valu("v_cvt_pk_bf16_f32", f"v{d+3}", f"v{src1+2}", f"v{src1+3}")]
        if qt == 0: ops += [salu("s_mul_i32", f"s{S_ST}", f"s{KPX[nb]}", "24"), salu("s_add_u32", f"s{S_ST}", f"s{S_ST}", "s47")]
        ops += [raw(f"buffer_store_dwordx4 v[{d}:{d+3}], v{V_T}, {SWS}, s{S_ST} offen offset:{qt*1024}" + ["", " sc1", " sc0 sc1", " sc1 nt", " nt", " sc0 sc1 nt"][OPT['stf']], 'D', rd=[f"v[{d}:{d+3}]", f"v{V_T}", SWS, f"s{S_ST}"], tag="st", wide_store=True)]
        return ops
    def build(s, dry=False):
        LHI = [6, 7, 8, 9]
        accq = lambda dt, qt: R('v', QaccQS(dt, qt), 4)
        W0 = [s.free(f"WQ0_{p}", [3, 4, 5, 6, 7, 8, 9], lambda sl, p=p: wq_ops(0, p, sl)) for p in range(18)]
        X0 = [s.free(f"X0_{i}", [0, 1, 2, 6, 7, 8, 9], lambda sl, i=i: x_ops(f"X0_{i}", i, sl)) for i in range(9)]
        done = {}
        for p in range(16):
            u = len(s.MF)
            s.want_bar([W0[p]] + ([X0[p // 2]] if p % 2 == 0 else []))
            if p % 2 == 0:
                X0[p // 2].first_need = u - 0.5; s.x_reads(X0[p // 2], [XFr(p, 0), XFr(p + 1, 0)], [-1, -1], [u, u + 24])
            if OPT['pfw'] and p >= OPT['pft0'] and (p - OPT['pft0']) % OPT['pfd'] == 0 and (p - OPT['pft0']) // OPT['pfd'] < 3:
                k_ = (p - OPT['pft0']) // OPT['pfd']; tmp, dst = f"v{V_TA}", f"v{V_TB}"
                if k_ == 0:
                    ops = [valu("v_min_u32", tmp, "35", "v0"), valu("v_lshrrev_b32", dst, "2", tmp),
                           salu("s_mul_i32", f"s{S_T0}", "s44", "36"), salu("s_mul_i32", f"s{S_T1}", f"s{S_W}", "9"), salu("s_add_u32", f"s{S_T0}", f"s{S_T0}", f"s{S_T1}"),
                           valu("v_add_u32", dst, f"s{S_T0}", dst), valu("v_lshlrev_b32", dst, "13", dst),
                           valu("v_and_b32", tmp, "3", tmp), valu("v_lshl_add_u32", tmp, tmp, "7", dst),
                           raw(f"buffer_load_dword v{V_H+7}, {tmp}, {SWQ}, 0 offen offset:512 nt", 'D', rd=[tmp, SWQ], wr=[], tag="pf")]
                else:
                    ops = [valu("v_min_u32", tmp, "35", "v0"),
                           salu("s_mul_i32", f"s{S_T0}", "s44", "144"), salu("s_mul_i32", f"s{S_T1}", f"s{S_W}", "36"), salu("s_add_u32", f"s{S_T0}", f"s{S_T0}", f"s{S_T1}"),
                           salu("s_add_u32", f"s{S_T0}", f"s{S_T0}", str((k_ - 1) * 2304)), valu("v_add_u32", tmp, f"s{S_T0}", tmp), valu("v_lshlrev_b32", tmp, "7", tmp),
                           raw(f"buffer_load_dword v{V_H+7}, {tmp}, {SWO}, 0 offen nt", 'D', rd=[tmp, SWO], wr=[], tag="pf")]
                s.chain(ops, u, u + 20, step=1.5, name="pf")
            for dt in range(8): s.q_frag(W0[p], dt, accq, XFr(p, 0), p == 0)
        u = len(s.MF); s.want_bar([W0[16], W0[17], X0[8]]); X0[8].first_need = u - 0.5
        s.x_reads(X0[8], [XFr(16, 0), XFr(17, 0)], [-1, -1], [u, u + 3])
        for dt in range(8):
            s.q_frag(W0[16], dt, accq, XFr(16, 0), False); s.q_frag(W0[17], dt, accq, XFr(17, 0), False); done[dt] = s.g()
        gq = s.g()
        for ks in range(4):
            for qt in range(3):
                pk = ks * 3 + qt >= OPT['npl0']
                e = gq if pk else min(done[2 * ks + 1] + 3, gq)
                s.chain(s.conv(QaccQS(2 * ks, qt), QaccQS(2 * ks + 1, qt), f"s[{S_C}:{S_C+1}]", pk=pk), e, gq, want0=e + (ks * 3 + qt) * 0.01, name="qcv")
        s.stamp()
        s.m0(0)
        order = list(range(8, 18)) + list(range(0, 8))
        xreg = {p: XFr(p, 0) for p in range(8, 18)}; xreg.update({p: XFr(8 + p, 0) for p in range(8)})
        acc1 = lambda dt, qt: R('a', 4 * (dt * 3 + qt), 4)
        W1 = {p: s.free(f"WQ1_{p}", LHI, lambda sl, p=p: wq_ops(1, p, sl)) if p not in (4, 5, 6, 7) else s.fixed(f"WQ1_{p}", {4: 8, 5: 9, 6: 6, 7: 7}[p], lambda sl, p=p: wq_ops(1, p, sl), lead=70) for p in order}
        X1 = [s.free(f"X1_{i}", LHI, lambda sl, i=i: x_ops(f"X1_{i}", i, sl)) for i in range(4)]
        lend = {}; lstart = {}
        def lw0(n, bi):
            p = order[n]; s.bar_req[bi][1].append(W1[p]); lstart[p] = len(s.MF)
            for dt in range(8): s.q_frag(W1[p], dt, acc1, xreg[p], n == 0)
            lend[p] = s.g()
        i0 = s.phase_a(0, lw0)
        s.stamp()
        bT = s.want_bar([W1[6], W1[7]]); lstart[6] = len(s.MF); lstart[7] = len(s.MF) + 3
        for dt in range(8):
            s.q_frag(W1[6], dt, acc1, xreg[6], False); s.q_frag(W1[7], dt, acc1, xreg[7], False); done[dt] = s.g()
        gT = s.g()
        for i, X_ in enumerate(X1):
            n = 3 + 2 * i
            s.bar_req[i0['bar'][n]][1].append(X_); X_.first_need = i0['step0'][n] - 0.5
            s.x_reads(X_, [xreg[2 * i], xreg[2 * i + 1]], [lend[8 + 2 * i] + 1, lend[9 + 2 * i] + 1], [i0['step0'][n] + 40, i0['step0'][n] + 44])
        qcv = []
        for ks in range(4):
            for qt in range(3):
                pk = ks * 3 + qt >= OPT['npl1']
                e = gT if pk else min(done[2 * ks + 1] + 3, gT); tmp = V_S + 8 * ((ks * 3 + qt) % 3)
                ops = [valu("v_accvgpr_read_b32", f"v{tmp+4*o+k}", f"a{4*((2*ks+o)*3+qt)+k}") for o in range(2) for k in range(4)]
                ops += s.conv(tmp, tmp + 4, f"s[{S_C}:{S_C+1}]", dst=QFr(ks, qt), pk=pk)
                qcv.append(s.chain(ops, e, gT, want0=e + (ks * 3 + qt) * 0.01, step=0.25, after=qcv[-3:-2] if len(qcv) >= 3 else [], name="qcv1"))
        wdl = gT - LA - 2
        last0 = s.o_finish(0, i0, lambda ks, qt: wdl - 2 if ks * 3 + qt < 4 else gT)
        pre0 = s.xaddr(i0['pv_last'] + 6, 4096)
        bias = s.chain([valu("v_add_u32", f"v{V_T+1}", lit(8 * SLOT), f"v{V_T+1}"), valu("v_add_u32", f"v{V_T+2}", lit(8 * SLOT), f"v{V_T+2}")], i0['pv_last'] + 8, i0['pv_last'] + 16, after=[pre0], name="xb")
        s.stamp()
        bM = s.m0(1, after=list(last0.values()))
        aoh = s.chain(set_addr_o(2), gT, gT + 30, name="ao2"); s.win_after.append((('O', 2), aoh))
        o0s = OPT['o0start']; nblk = (16 - o0s) // 2
        blk_done = {}
        def accA(nb): return ACCB[nb & 1]
        parkf = {}
        def lw1(n, bi):
            if OPT['pft'] and n == OPT['pfs']:
                tmp = f"v{V_H+7}"
                s.chain([valu("v_min_u32", tmp, "35", "v0"),
                         salu("s_mul_i32", f"s{S_T0}", "s44", "144"), salu("s_mul_i32", f"s{S_T1}", f"s{S_W}", "36"), salu("s_add_u32", f"s{S_T0}", f"s{S_T0}", f"s{S_T1}"),
                         salu("s_add_u32", f"s{S_T0}", f"s{S_T0}", "2304"), valu("v_add_u32", tmp, f"s{S_T0}", tmp), valu("v_lshlrev_b32", tmp, "7", tmp),
                         raw(f"buffer_load_dword {tmp}, {tmp}, {SWO}, 0 offen", 'D', rd=[tmp, SWO], wr=[], tag="pf")], s.g(), s.g() + 40, step=2, name="pf")
            if n < o0s or (n - o0s) // 2 >= nblk: return
            nb, hh = (n - o0s) >> 1, (n - o0s) & 1
            T_ = s.free(f"WO{hh}_{nb}", LHI, lambda sl: wo_ops(hh, nb, sl)); s.bar_req[bi][1].append(T_)
            st = len(s.MF)
            if hh == 0 and nb >= 2:
                pb = nb - 2; ops = []
                for i in range(12):
                    ta, tb = (V_TA, V_TB) if i & 1 else (V_T + 1, V_T + 2)
                    ops += [valu("v_accvgpr_read_b32", f"v{ta}", f"a{accA(pb)+2*i}"), valu("v_accvgpr_read_b32", f"v{tb}", f"a{accA(pb)+2*i+1}"),
                            valu("v_cvt_pk_bf16_f32", f"v{ta}", f"v{ta}", f"v{tb}"), valu("v_accvgpr_write_b32", f"a{PARK[pb]+i}", f"v{ta}")]
                e = blk_done[pb] + 4
                pd = blk_done[pb + 1] + 3
                parkf[pb] = s.chain(ops, e, pd, want0=e, step=(pd - e - 20) / 48.0, after=[parkf.get(pb - 1)], name="park")
            s.o_tile(T_, lambda ks, qt: R('a', OBa(hh, ks, qt), 4), lambda ntl, qt: R('a', accA(nb) + 4 * (ntl * 3 + qt), 4), hh == 0)
            if hh == 1: blk_done[nb] = s.g()
        i1 = s.phase_a(1, lw1)
        gA1 = s.g()
        fr = [(ks, qt) for ks in range(4) for qt in range(3)]
        dstA = lambda hh, ks, qt: R('a', OBa(hh, ks, qt), 4)
        s.xround("XA", fr[:4], [8], 4096, last0, bias, bT, bM, dstA, i1['step0'][0] - LA - 9, addr_bias=8 * SLOT)
        s.xround("XB", fr[4:8], [9], 4096, last0, bias, bM, i1['bar'][0], dstA, i1['step0'][0] + 30, addr_bias=8 * SLOT)
        s.xround("XD", fr[8:], [8], 4096, last0, bias, i1['bar'][0], i1['bar'][1], dstA, i1['step0'][1] + 30, addr_bias=8 * SLOT)
        s.xb_dead = i1['pv_first'] - 1
        s.stamp()
        rest = list(range(nblk, 9))
        VB = [V_S, V_S + 24, V_QF, V_QF + 24]
        ALL = list(range(10))
        seq = [(nb, h) for nb in rest for h in (0, 1)]
        inacc = [nb for nb in range(nblk) if nb >= nblk - 2]; parked = [nb for nb in range(nblk) if nb < nblk - 2]
        seq += [(nb, h) for nb in rest + inacc + parked for h in (2, 3)]
        vb = {}; vfree = {b: i1['pv_last'] + 6 for b in VB}; tst = {}; tbar = {}
        for nb in rest: vb[nb] = VB[rest.index(nb)]
        ao_lo = s.chain(set_addr_o(1) + set_addr_o(0), i1['pv_last'], i1['pv_last'] + 20, name="ao10"); s.win_after += [(('O', 1), ao_lo), (('O', 0), ao_lo)]
        for (nb, h4) in seq:
            T_ = s.free(f"WO{h4}_{nb}", ALL, lambda sl: wo_ops(h4, nb, sl))
            tbar[(nb, h4)] = s.want_bar([T_]); st = len(s.MF); tst[(nb, h4)] = st; hh = h4 & 1
            if nb in parked and h4 == 2:
                b = min((x for x in VB if x not in [vb[k] for k in vb if k in live]), key=lambda x: vfree[x]); vb[nb] = b
                ops = []
                for i in range(12):
                    ops += [valu("v_accvgpr_read_b32", f"v{b+2*i+1}", f"a{PARK[nb]+i}"), valu("v_lshlrev_b32", f"v{b+2*i}", "16", f"v{b+2*i+1}"),
                            valu("v_and_b32", f"v{b+2*i+1}", "0xffff0000", f"v{b+2*i+1}")]
                e = max(vfree[b], st - 60)
                s.unp.append((ops, e, st - 2, b))
            if h4 == 0: live = set(rest); s.unp = []
            if nb in inacc: accr = lambda ntl, qt: R('a', accA(nb) + 4 * (ntl * 3 + qt), 4)
            else: accr = lambda ntl, qt: R('v', vb[nb] + 4 * (ntl * 3 + qt), 4); live.add(nb)
            bfr = (lambda ks, qt: R('a', OBa(hh, ks, qt), 4)) if h4 < 2 else (lambda ks, qt: R('v', Oacc(2 * ks + hh, qt), 4))
            s.o_tile(T_, bfr, accr, h4 == 0)
            if h4 == 3:
                dn = s.g()
                for qt in range(3):
                    if nb in inacc: ops = s.store_ops(accA(nb) + 4 * qt, accA(nb) + 12 + 4 * qt, V_P + 8 * qt, nb, qt, True)
                    else: ops = s.store_ops(vb[nb] + 4 * qt, vb[nb] + 12 + 4 * qt, None, nb, qt, False)
                    s.pending_st.append((ops, dn + 4, dn + 34, vb.get(nb)))
                if nb in vb: vfree[vb[nb]] = dn + 36; live.discard(nb)
        first2 = seq[2 * len(rest)]
        pubi = tbar[seq[2 * len(rest) - 1]]
        wd1 = s.bar_req[pubi][0] - LA - 3
        last1 = s.o_finish(1, i1, lambda ks, qt: wd1 - 2)
        pre1 = s.xaddr(i1['pv_last'] + 6, 12288)
        for pf_ in parkf.values(): pre1.after.append(pf_)
        s.xround("XC", fr, [0, 1, 2], 12288, last1, pre1, i1['bar'][15], pubi, lambda hh, ks, qt: R('v', Oacc(2 * ks + hh, qt), 4), tst[first2] - 3)
        NG = len(s.MF)
        if dry: return None
        for gp in OPT.get('at', []): s.forced(stamp_ops(s.nst), gap=gp, name="stamp"); s.nst += 1
        s.tile_bar = {}; s.bars = []; s.barfill = []; prev = -2
        for (need, tiles) in s.bar_req:
            gg = max(need - LA - 1, prev + 1, -1)
            def mk(tiles, fence):
                def f(p):
                    names = [t.name for t in tiles]
                    for t in tiles: assert t.name in s.issued, t.name
                    idx = max((i for i, op in enumerate(p.vm) if op.tag in names), default=-1)
                    if idx >= 0: p.wait_vm_tag(p.vm[idx].tag)
                    if fence:
                        ix = max((i for i, op in enumerate(p.lgkm) if isinstance(op.slot, tuple)), default=-1)
                        if ix >= 0: p.wait_lgkm(len(p.lgkm) - 1 - ix)
                    p.barrier()
                return f
            fence = any(hasattr(t, 'scratch') and prev < t.last_use <= gg for t in s.tiles)
            fl = Fill([mk(tiles, fence)], gg, gg, want=-10**9, name="bar"); s.FL.append(fl); s.bars.append((gg, fl)); s.barfill.append(fl)
            for t in tiles: s.tile_bar[t.name] = fl
            prev = gg
        for cb in s.late: cb()
        for f in s.FL:
            if f.name == "xw" and f.deadline > s.xb_dead and f.earliest < s.xb_dead: f.deadline = s.xb_dead
        last = None
        for f, fr_ in enumerate(s.frags):
            e = s.frags[f - NFR]['u1'] if f >= NFR else -1
            b = s.tile_bar[fr_['tile'].name]; e = max(e, b.earliest)
            aft = [b, last] + [v for k, v in s.win_after if k == fr_['after']]
            for k, op in enumerate(fr_['reads']):
                last = s.fill(op, e, fr_['u0'] - 1, want=fr_['u0'] - LA + k, after=aft, name="rd"); aft = [last]
        prevf = None; stf = {}
        for (ops, e, d, b) in s.pending_st:
            prevf = s.chain(ops, min(e, NG - 1), min(d, NG - 1), want0=e, step=1.0, after=[prevf], name="st"); stf.setdefault(b, []).append(prevf)
        for (ops, e, d, b) in s.unp:
            aft = [f for f in stf.get(b, []) if f.deadline <= e]
            s.chain(ops, e, d, want0=e, step=1.0, after=aft[-1:], name="unp")
        order_t = sorted(s.tiles, key=lambda t: t.first_need)
        occ = {}; plan = []; floor = (-1, s.bars[0][1])
        for t in order_t:
            pv = occ.get(t.slot); occ[t.slot] = t
            if hasattr(t, 'scratch'):
                assert pv.last_use <= s.barfill[t.scratch].earliest, (t.name, pv.name, pv.last_use, s.barfill[t.scratch].earliest)
            if t.name in s.issued: continue
            lu = pv.last_use if pv else -1
            bg = next(x for x in s.bars if x[0] >= lu)
            if bg[0] < floor[0] and not hasattr(t, 'want_issue'): bg = floor
            if t.name.startswith(("WQ0", "X0")): floor = bg
            ml = next((x for x in s.bars if x[0] >= getattr(t, 'want_issue', t.first_need - OPT['maxlead'])), bg)
            if ml[0] > bg[0] and ml[0] < s.tile_bar[t.name].earliest: bg = ml
            plan.append((int(bg[0]), t.first_need, t, bg[1]))
        plan.sort(key=lambda x: (x[0], (x[2].name[0] not in 'KV') if OPT['hb'] and x[0] > 440 else 0, x[1]))
        lastd = None; cur = 'WQ'
        groups = {}
        for x in plan: groups.setdefault(x[0], []).append(x)
        for (gg, need, t, bf) in plan:
            ops = list(t.ops)
            if t.name.startswith('WO') and cur == 'WQ': ops = set_L_wo() + ops; cur = 'WO'
            assert not (t.name.startswith('WQ') and cur == 'WO')
            same = groups[gg]; k0 = [x[2] for x in same].index(t)
            nextbar = next((x[0] for x in s.bars if x[0] > gg), NG)
            span = max(nextbar - gg - 4, 1); tot = 6 * len(same)
            dl = s.tile_bar[t.name].earliest - 1
            assert dl >= gg, (t.name, dl, gg)
            if OPT.get('verbose'): sys.stderr.write(f"{t.name} slot {t.slot} issue@{gg} pub@{dl+1} lead {dl+1-gg}\n")
            for k, op in enumerate(ops):
                w = gg + 1 + ((k0 * 6 + min(k, 5)) * span) / tot
                if gg < 0: w = -12 + (k0 * 6 + k) * 1.0
                elif OPT['hb'] and span > 60:
                    isH = t.name[0] in 'KV'
                    grp = [x[2] for x in same if (x[2].name[0] in 'KV') == isH]
                    a_, b_ = (OPT['h0'], OPT['h1']) if isH else (OPT['l0'], OPT['l1'])
                    w = gg + a_ + (grp.index(t) * 6 + min(k, 5)) * (b_ - a_) / (6.0 * len(grp)) - OPT['dlate'] * (op.kind == 'D')
                o = [op]
                if k == len(ops) - 1: o = [op, (lambda nm: (lambda p: s.issued.add(nm)))(t.name)]
                lastd = s.fill(o, gg, dl, want=w, after=[bf, lastd], name="dma " + t.name)
        s.weave()
        s.P.emit(stamp_ops(s.nst)); s.nst += 1
        return s.P
    def allocate(s):
        bars = []; pub = {}; prev = -2
        for (need, tiles) in s.bar_req:
            gg = max(need - LA - 1, prev + 1, -1); bars.append(gg); prev = gg
            for t in tiles: pub[t.name] = gg
        for t in s.tiles:
            if hasattr(t, 'scratch'): pub[t.name] = bars[t.scratch] + 0.5
        def nb(x): return next((b for b in bars if b >= x), 10**7)
        tl = sorted(s.tiles, key=lambda t: t.first_need)
        fixed = {}
        for t in tl:
            if t.cands is None: fixed.setdefault(t.slot, []).append(t)
        rel = {sl: -1 for sl in range(10)}; al = {}
        for t in tl:
            if t.cands is None: rel[t.slot] = t.last_use; continue
            best = None
            for sl in t.cands:
                nx = next((f for f in fixed.get(sl, []) if f.first_need > t.first_need), None)
                cost = 0
                if nx:
                    r_ = nb(t.last_use)
                    if r_ >= pub[nx.name]: cost += 10**8
                    cost += 4 * max(0, r_ - min(pub[nx.name] - nx.lead, getattr(nx, 'want_issue', 10**9)))
                ib = nb(rel[sl])
                if ib >= pub[t.name]: cost += 10**9
                cost += max(0, ib - (pub[t.name] - 100))
                key = (cost, ib, sl)
                if best is None or key < best[0]: best = (key, sl)
            assert best[0][0] < 10**8, (t.name, best)
            al[t.name] = best[1]; rel[best[1]] = t.last_use
        return al
    def weave(s):
        P = s.P; mf = s.MF; by_e = {}
        for f in s.FL: by_e.setdefault(max(int(f.earliest), -1), []).append(f)
        act = []; pen = 0
        need_at = dict(s.xneed)
        for fr in s.frags:
            for op in fr['reads']: need_at[id(op)] = fr['u0']
        issue_gap = {}
        HZ = OPT['hz']; DLATE = OPT['dlate']; LLATE = OPT['llate']; WAH = OPT['wah']
        def ready(f): return all(a.done for a in f.after)
        def kind(f): return cat(f.ops[0]) if len([o for o in f.ops if not callable(o)]) == 1 and not callable(f.ops[0]) else 'X'
        def put(f, g):
            P.emit(f.ops); f.done = True; act.remove(f)
            for o in f.ops:
                if not callable(o) and o.kind == 'L': issue_gap[id(o)] = g
        for g in range(-1, len(mf)):
            if g >= 0: P.emit(mf[g])
            act += by_e.get(g, [])
            used = []
            while True:
                fo = [f for f in act if f.deadline <= g]
                if not fo: break
                def pick(f):
                    for a in f.after:
                        if not a.done: return pick(a)
                    return f
                fo.sort(key=lambda f: f.want)
                f = pick(fo[0]); assert f in act, (f.name, f.earliest, g, fo[0].name)
                put(f, g); used.append(kind(f))
            if g >= 0:
                def room(k):
                    if not used: return True
                    if len(used) >= 2 or used[0] in 'EDX': return False
                    return True
                def best(kinds, lim):
                    c = [f for f in act if kind(f) in kinds and f.want <= lim and ready(f)]
                    return min(c, key=lambda f: f.want) if c else None
                def take(f): put(f, g); used.append(kind(f))
                if not used:
                    f = best('L', g) or best('E', g + 10**6) or best('D', g + HZ) or best('L', g + HZ) or best('X', g + HZ)
                    if f: take(f)
                if len(used) == 1 and used[0] == 'L':
                    f = best('D', g - DLATE) or best('L', g - LLATE)
                    if f: take(f); pen += 1
                for _ in range(2):
                    if room('V'):
                        f = best('VS', g + HZ)
                        if f: take(f)
                full = len(used) >= 2 or (used and used[0] in 'EDX')
                if P.lgkm:
                    nxt = min((need_at.get(id(o), 10**9) for o in P.lgkm), default=10**9)
                    if (not full and nxt - g <= WAH) or nxt <= g + 1:
                        k = 0
                        for o in P.lgkm:
                            if issue_gap.get(id(o), g) <= g - LAT or need_at.get(id(o), 10**9) <= g + 1: k += 1
                            else: break
                        for q_, o in enumerate(P.lgkm):
                            if need_at.get(id(o), 10**9) <= g + 1: k = max(k, q_ + 1)
                        covers = any(need_at.get(id(o), 10**9) == nxt for o in P.lgkm[:k]) and not any(need_at.get(id(o), 10**9) == nxt for o in P.lgkm[k:])
                        if k and covers:
                            P.wait_lgkm(len(P.lgkm) - k)
                            if full: pen += 1
            if len(used) > 2: pen += len(used) - 2
        assert not act, [(f.name, f.earliest, f.deadline) for f in act]
        sys.stderr.write(f"MFMA {len(mf)} instrs {len(P.out)} nops {P.nops} pen {pen} stats {P.stats}\n")

_old_barrier = Prog.barrier
def _barrier(p):
    idx = max((i for i, op in enumerate(p.lgkm) if op.txt.startswith('ds_write')), default=-1)
    if idx >= 0: p.wait_lgkm(len(p.lgkm) - 1 - idx)
    _old_barrier(p)
Prog.barrier = _barrier
_old_emit = Prog.emit
def _emit(p, ins):
    if isinstance(ins, I):
        tgt = []
        if ins.kind == 'D' and ins.slot is not None: tgt = [ins.slot]
        if ins.kind == 'L' and ins.txt.startswith('ds_write') and getattr(ins, 'note', None): tgt = list(ins.note)
        for sl in tgt:
            for u in p.unsafe:
                assert not (u == sl or (isinstance(u, tuple) and sl in u)), f"write into slot {sl} while reads unfenced ({u}): {ins.txt}"
    _old_emit(p, ins)
Prog.emit = _emit

def slow_path():
    P = Prog(); E = P.emit
    E(raw("L_slow:", 'X'))
    E(raw("s_nop 15", 'W')); E(raw("s_waitcnt vmcnt(0) lgkmcnt(0)", 'W'))
    SS = V_S; KF = V_S + 12; NMX = V_S + 28; ta, tv = V_S + 40, V_S + 41
    MX = Preg(1, 0); PB = Preg(1, 0) + 6
    E(salu("s_lshl_b32", "s50", f"s{S_HD}", "17")); E(salu("s_add_u32", "s48", "s48", "s50"))
    E(valu("v_and_b32", f"v{tv}", "15", "v0")); E(valu("v_lshlrev_b32", f"v{ta}", "8", f"v{tv}"))
    E(valu("v_lshrrev_b32", f"v{KF}", "4", "v0")); E(valu("v_lshl_add_u32", f"v{ta}", f"v{KF}", "4", f"v{ta}"))
    E(valu("v_lshlrev_b32", f"v{tv}", "1", f"v{tv}")); E(valu("v_lshl_add_u32", f"v{tv}", f"v{KF}", "10", f"v{tv}"))
    for qt in range(3): E(valu("v_mov_b32", f"v{MX+2*qt}", "0xff7fffff"))
    def scores(c):
        for ks in range(4):
            E(raw(f"buffer_load_dwordx4 v[{KF+4*ks}:{KF+4*ks+3}], v{ta}, {SK}, s49 offen offset:{64*ks}", 'D', rd=[f"v{ta}"], wr=[f"v[{KF+4*ks}:{KF+4*ks+3}]"]))
        for ks in range(4):
            for qt in range(3):
                E(mfma(R('v', SS + 4 * qt, 4), R('v', KF + 4 * ks, 4), QF(ks, qt), c(qt) if ks == 0 else R('v', SS + 4 * qt, 4)))
    def loop_end(lab):
        E(raw("s_nop 15", 'W')); E(raw("s_waitcnt vmcnt(0) lgkmcnt(0)", 'W')); P.vm = []; P.lgkm = []
        E(salu("s_add_u32", "s49", "s49", "4096")); E(salu("s_add_u32", "s51", "s51", "1"))
        E(raw("s_cmp_lt_u32 s51, 32", 'S')); E(raw(f"s_cbranch_scc1 {lab}", 'S'))
    E(salu("s_mov_b32", "s49", "s48")); E(salu("s_mov_b32", "s51", "0"))
    E(raw("L_sl1:", 'X'))
    scores(lambda qt: "0")
    for qt in range(3):
        x = SS + 4 * qt
        E(valu("v_max3_f32", f"v{MX+2*qt}", f"v{MX+2*qt}", f"v{x}", f"v{x+1}")); E(valu("v_max3_f32", f"v{MX+2*qt}", f"v{MX+2*qt}", f"v{x+2}", f"v{x+3}"))
    loop_end("L_sl1")
    for qt in range(3):
        a, b = f"v{MX+2*qt}", f"v{MX+2*qt+1}"
        E(valu("v_mov_b32", b, a)); E(valu("v_permlane16_swap_b32", a, b)); E(valu("v_max_f32", a, a, b))
        E(valu("v_mov_b32", b, a)); E(valu("v_permlane32_swap_b32", a, b)); E(valu("v_max_f32", a, a, b))
        for k in range(4): E(valu("v_sub_f32", f"v{NMX+4*qt+k}", "0", a))
    for k in range(96): E(valu("v_mov_b32", f"v{V_O+k}", "0"))
    for k in range(12): E(valu("v_accvgpr_write_b32", f"a{A_L+k}", "0"))
    E(salu("s_mov_b32", "s49", "s48")); E(salu("s_mov_b32", "s51", "0"))
    E(raw("L_sl2:", 'X'))
    scores(lambda qt: R('v', NMX + 4 * qt, 4))
    for k in range(12): E(valu("v_exp_f32", f"v{SS+k}", f"v{SS+k}"))
    for qt in range(3):
        for h in range(2): E(valu("v_cvt_pk_bf16_f32", f"v{PB+2*qt+h}", f"v{SS+4*qt+2*h}", f"v{SS+4*qt+2*h+1}"))
    E(raw("s_nop 7", 'W'))
    M16 = "v_mfma_f32_16x16x16_bf16"
    for qt in range(3): E(mfma(R('a', A_L + 4 * qt, 4), R('a', A_ONE, 2), R('v', PB + 2 * qt, 2), R('a', A_L + 4 * qt, 4), op=M16))
    for dh in range(2):
        for d4 in range(4):
            for h in range(2):
                for half in range(2):
                    E(raw(f"buffer_load_ushort v{KF+8*half+2*d4+h}, v{tv}, {SV}, s49 offen offset:{(2*h+half)*256+32*(4*dh+d4)}", 'D', rd=[f"v{tv}"], wr=[f"v{KF+8*half+2*d4+h}"]))
        for k in range(8): E(valu("v_lshl_or_b32", f"v{KF+k}", f"v{KF+8+k}", "16", f"v{KF+k}"))
        for d4 in range(4):
            for qt in range(3): E(mfma(R('v', Oacc(4 * dh + d4, qt), 4), R('v', KF + 2 * d4, 2), R('v', PB + 2 * qt, 2), R('v', Oacc(4 * dh + d4, qt), 4), op=M16))
        E(raw("s_nop 7", 'W'))
    loop_end("L_sl2")
    for k in range(12): E(valu("v_mov_b32", f"v{Preg(1,0)+k}", "0"))
    for qt in range(3): E(valu("v_accvgpr_read_b32", f"v{RL[qt]}", f"a{A_L+4*qt}"))
    E(raw("s_nop 7", 'W'))
    E(raw(f"s_setpc_b64 {S_RET}", 'S'))
    return P

def final(nst):
    P = Prog(); E = P.emit
    E(raw("L_final:", 'X'))
    E(raw("s_waitcnt vmcnt(0) lgkmcnt(0)", 'W'))
    E(stamp_ops(nst)); nst += 1
    if True:
        E(raw("s_barrier", 'B'))
        E(raw(f"s_cmp_lg_u32 s{S_W}, 0", 'S')); E(raw("s_cbranch_scc1 L_gwait", 'S'))
        E(salu("s_mov_b32", "s48", "s70")); E(salu("s_and_b32", "s49", "s71", "0xffff")); E(salu("s_mov_b32", "s50", "256")); E(salu("s_mov_b32", "s51", "0x20000"))
        E(salu("s_lshl_b32", "s52", "s40", "3"))
        E(valu("v_mov_b32", "v1", "1")); E(valu("v_mov_b32", "v2", "0"))
        if OPT['wb']: E(raw("buffer_wbl2 sc1", 'D')); E(raw("s_waitcnt vmcnt(0)", 'W'))
        E(raw("s_mov_b64 exec, 1", 'S'))
        E(raw("buffer_atomic_add v1, v2, s[48:51], s52 offen sc1", 'D'))
        E(salu("s_mov_b32", "s53", "0"))
        E(raw("L_poll:", 'X'))
        E(raw("buffer_load_dword v3, v2, s[48:51], s52 offen sc1", 'D')); E(raw("s_waitcnt vmcnt(0)", 'W'))
        E(raw("v_readfirstlane_b32 s54, v3", 'V')); E(raw("s_add_u32 s53, s53, 1", 'S')); E(raw("s_nop 1", 'W'))
        E(raw("s_cmp_ge_u32 s54, 8", 'S')); E(raw("s_cbranch_scc1 L_pdone", 'S'))
        if OPT['psleep']: E(raw(f"s_sleep {OPT['psleep']}", 'S'))
        E(raw("s_cmp_lt_u32 s53, 0x400000", 'S')); E(raw("s_cbranch_scc1 L_poll", 'S'))
        E(raw("L_pdone:", 'X'))
        E(raw("s_mov_b64 exec, -1", 'S'))
        E(raw("L_gwait:", 'X'))
        E(raw("s_barrier", 'B'))
        P.vm = []
        E(stamp_ops(nst)); nst += 1
        E(valu("v_lshlrev_b32", "v2", "4", "v0"))
        E(salu("s_lshl_b32", "s52", "s46", "2")); E(salu("s_add_u32", "s52", "s52", f"s{S_W}"))
        for k in range(4):
            E(salu("s_add_u32", f"s{56+k}", "s52", str(32 * k)))
            E(salu("s_lshl_b32", "s53", f"s{56+k}", "10"))
            if k == 3:
                E(raw("s_cmp_lt_u32 s59, 108", 'S')); E(raw("s_cselect_b32 s53, s53, 0x70000000", 'S', wr=["s53"]))
            for j in range(8):
                d = 32 + 32 * k + 4 * j
                E(raw(f"buffer_load_dwordx4 v[{d}:{d+3}], v2, {SWS}, s53 offen" + ["", " sc1", " sc0 sc1", " sc1 nt", " nt", " sc0 sc1 nt"][OPT['ldf']], 'D', rd=["v2", "s53"], wr=[f"v[{d}:{d+3}]"]))
                if j < 7: E(salu("s_add_u32", "s53", "s53", str(108 * 1024)))
        E(salu("s_mov_b32", "s48", "s68")); E(salu("s_and_b32", "s49", "s69", "0xffff")); E(salu("s_mov_b32", "s50", lit(16 * 96 * 1152 * 2))); E(salu("s_mov_b32", "s51", "0x20000"))
        E(valu("v_and_b32", "v3", "15", "v0")); E(valu("v_mul_u32_u24", "v3", "2304", "v3"))
        E(valu("v_lshrrev_b32", "v4", "4", "v0")); E(valu("v_lshl_add_u32", "v3", "v4", "3", "v3"))
        E(valu("v_mov_b32", "v5", "0x3f80")); E(valu("v_mov_b32", "v6", "0x3f800000"))
        E(salu("s_mul_i32", "s60", "s44", str(96 * 2304))); E(salu("s_mul_i32", "s61", "s42", "1152")); E(salu("s_add_u32", "s60", "s60", "s61"))
        for k in range(4):
            u = f"s{56+k}"
            E(salu("s_mul_hi_u32", "s61", u, str((2**32 + 26) // 27)))
            E(salu("s_mul_i32", "s62", "s61", "27")); E(salu("s_sub_u32", "s62", u, "s62"))
            E(salu("s_mul_hi_u32", "s63", "s62", str((2**32 + 2) // 3)))
            E(salu("s_mul_i32", "s64", "s63", "3")); E(salu("s_sub_u32", "s64", "s62", "s64"))
            E(salu("s_and_b32", "s65", "s61", "1")); E(salu("s_mul_i32", "s65", "s65", "3")); E(salu("s_add_u32", "s65", "s65", "s64"))
            E(salu("s_mul_i32", "s65", "s65", str(16 * 2304)))
            E(salu("s_lshl_b32", "s63", "s63", "7")); E(salu("s_add_u32", "s65", "s65", "s63"))
            E(salu("s_lshr_b32", "s61", "s61", "1")); E(salu("s_lshl_b32", "s61", "s61", "6")); E(salu("s_add_u32", "s65", "s65", "s61"))
            E(salu("s_add_u32", "s65", "s65", "s60"))
            if k == 3:
                E(raw("s_cmp_lt_u32 s59, 108", 'S')); E(raw("s_cselect_b32 s65, s65, 0x70000000", 'S', wr=["s65"]))
            acc = 8 + 0
            for j in range(8):
                d = 32 + 32 * k + 4 * j
                for c in range(4):
                    E(valu("v_dot2_f32_bf16", f"v{acc+2*c}", f"v{d+c}", "v5", "0" if j == 0 else f"v{acc+2*c}"))
                    E(valu("v_dot2_f32_bf16", f"v{acc+2*c+1}", f"v{d+c}", "v6", "0" if j == 0 else f"v{acc+2*c+1}"))
            E(raw("s_nop 2", 'W'))
            o = 16 + 4 * (k & 1)
            for c in range(4): E(valu("v_cvt_pk_bf16_f32", f"v{o+c}", f"v{acc+2*c}", f"v{acc+2*c+1}"))
            E(raw(f"buffer_store_dwordx2 v[{o}:{o+1}], v3, s[48:51], s65 offen", 'D', rd=[f"v[{o}:{o+1}]"]))
            E(raw(f"buffer_store_dwordx2 v[{o+2}:{o+3}], v3, s[48:51], s65 offen offset:32", 'D', rd=[f"v[{o+2}:{o+3}]"]))
            E(raw("s_nop 2", 'W'))
    if OPT['stamp']:
        E(raw("s_waitcnt vmcnt(0)", 'W'))
        E(stamp_ops(nst)); nst += 1
        E(salu("s_lshl_b32", "s40", "s2", "2")); E(salu("s_add_u32", "s40", "s40", f"s{S_W}")); E(salu("s_lshl_b32", "s40", "s40", "7"))
        E(salu("s_add_u32", "s40", "s40", hex(64 << 20)))
        E(salu("s_add_u32", "s72", "s72", "s40")); E(salu("s_addc_u32", "s73", "s73", "0"))
        E(valu("v_mov_b32", "v1", "0"))
        for k in range(nst):
            E(valu("v_mov_b32", "v2", f"s{78+k}")); E(valu("v_mov_b32", "v3", f"s{89+k}"))
            E(raw(f"global_store_dword v1, v2, s[72:73] offset:{4*k}", 'D', rd=['v1', 'v2']))
            E(raw(f"global_store_dword v1, v3, s[72:73] offset:{64+4*k}", 'D', rd=['v1', 'v3'])); E(raw("s_nop 1", 'W'))
        sys.stderr.write(f"stamps {nst}\n")
    E(raw("s_endpgm", 'X'))
    return P


d = Build({}); d.build(dry=True); al = d.allocate()
b = Build(al); P = b.build()
parts = [P0.text(), P.text(), final(b.nst).text()]
if OPT['slow']: parts.append(slow_path().text())
parts.append("L_end0:\ns_endpgm\nL_codeend:")
body = "\n".join(parts)

import re
MAC = """.macro mf d,a,b,c
v_mfma_f32_16x16x32_bf16 \\d,\\a,\\b,\\c
.endm
.macro tr d,a,o
ds_read_b64_tr_b16 \\d,\\a offset:\\o
.endm
.macro rq d,a,o
ds_read_b128 \\d,\\a offset:\\o
.endm
.macro dn v,r,s,o
buffer_load_dwordx4 \\v,\\r,\\s offen offset:\\o nt lds
.endm
.macro dl v,r,s,o
buffer_load_dwordx4 \\v,\\r,\\s offen offset:\\o lds
.endm
.macro wl n
s_waitcnt lgkmcnt(\\n)
.endm
.macro cv d,a,b
v_cvt_pk_bf16_f32 \\d,\\a,\\b
.endm
.macro ex d
v_exp_f32 \\d,\\d
.endm
"""
def compact(l):
    if l.startswith("v_mfma_f32_16x16x32_bf16 "): return "mf " + l[25:].replace(", ", ",")
    m = re.fullmatch(r"ds_read_b64_tr_b16 (\S+), (\S+) offset:(\d+)", l)
    if m: return f"tr {m.group(1)},{m.group(2)},{m.group(3)}"
    m = re.fullmatch(r"ds_read_b128 (\S+), (\S+) offset:(\d+)", l)
    if m: return f"rq {m.group(1)},{m.group(2)},{m.group(3)}"
    m = re.fullmatch(r"buffer_load_dwordx4 (\S+), (\S+), (\S+) offen offset:(\d+) (nt )?lds", l)
    if m: return f"{'dn' if m.group(5) else 'dl'} {m.group(1)},{m.group(2)},{m.group(3)},{m.group(4)}"
    m = re.fullmatch(r"s_waitcnt lgkmcnt\((\d+)\)", l)
    if m: return f"wl {m.group(1)}"
    m = re.fullmatch(r"v_cvt_pk_bf16_f32 (\S+), (\S+), (\S+)", l)
    if m: return f"cv {m.group(1)},{m.group(2)},{m.group(3)}"
    m = re.fullmatch(r"v_exp_f32 (\S+), (\S+)", l)
    if m and m.group(1) == m.group(2): return f"ex {m.group(1)}"
    return l
if OPT.get('compact', 1): body = "\n".join(compact(l) for l in body.split("\n"))
else: MAC = ""

def kd(name, vg, acc):
    return f""".amdhsa_kernel {name}
  .amdhsa_next_free_vgpr {vg}
  .amdhsa_next_free_sgpr 102
  .amdhsa_accum_offset {acc}
  .amdhsa_group_segment_fixed_size 0
  .amdhsa_kernarg_size 104
  .amdhsa_user_sgpr_count 2
  .amdhsa_user_sgpr_kernarg_segment_ptr 1
  .amdhsa_system_sgpr_workgroup_id_x 1
.end_amdhsa_kernel
"""
txt = f"""; generated by gen/gen4.py (hand-written generator; fused Qproj + attention + Oproj + in-kernel reduction)
; @launch grid=(256,1,1) block=(256,1,1) lds=163840
.amdgcn_target "amdgcn-amd-amdhsa--gfx950"
{MAC}.text
.globl {NAME}_kernel
.p2align 8
.type {NAME}_kernel,@function
{NAME}_kernel:
""" + body + '\n.section .rodata,"a"\n.p2align 6\n' + kd(NAME + "_kernel", 512, 256)
open(sys.argv[1], "w").write(txt)
```

```python
import sys, math, struct, re
from asmlib import *

NAME = "concat_heads__mha_block_cached__mha_block_cached__near_ridge"
OPT = dict(LA=13, LAT=7, dlate=8, llate=3, wah=4, hz=5, nt_kv=1, stamp=0, cpf=1, fake=0, slow=1, forceslow=0, compact=1, rot=1, psleep=8,
           leadh=110, xb2=3, nost=0, puba=2, ntt=0, ntw0=0, cpf2=0, cps=10, ntq0=0, pfw=0, pft0=6, pfd=2, early=0, e0=150, estep=48, pft=0, pfs=10, ntx=0, npl0=3, npl1=0, hb=0, h0=1, h1=30, l0=45, l1=62, stf=1, ldf=1, wb=0, maxlead=260, o0start=2)
for a in sys.argv[2:]:
    k, v = a.split('='); OPT[k] = int(v) if k != 'at' else [int(x) for x in v.split(',')]
LA, LAT = OPT['LA'], OPT['LAT']

V_TA, V_AO0, V_TB = 1, 2, 3
V_AK, V_AV = 4, 8
V_KA, V_KB, V_VA, V_VB = 16, 17, 18, 19
V_L = 20; V_WO0 = 24; V_T = 25
V_QF = 28; V_O = 76; V_S = 172; V_P = 220; V_NM = 244; V_H = 248
A_L = 216; A_ONE = 228; A_FR = 232; NFR = 6
def QFr(ks, qt): return V_QF + 4 * (ks * 3 + qt)
def QF(ks, qt): return R('v', QFr(ks, qt), 4)
def Oacc(dt, qt): return V_O + 4 * (dt * 3 + qt)
def Sreg(buf, t, qt): return V_S + 24 * buf + 4 * (t * 3 + qt)
def Preg(buf, qt): return V_P + 12 * buf + 4 * qt
NMR = R('v', V_NM, 4)
RL = [V_NM, V_NM + 2, V_H + 6]
def XFr(p, qt): return 12 * p + 4 * qt
def QaccQS(dt, qt): return QFr(dt >> 1, qt) if dt % 2 == 0 else (V_S + 4 * ((dt >> 1) * 3 + qt))
OBA = [96 + 4 * i for i in range(18)] + [192 + 4 * i for i in range(6)]
def OBa(hh, ks, qt): return OBA[(hh * 4 + ks) * 3 + qt]
ACCB = [0, 24]
PARK = [48, 60, 72, 84, 168, 180]
S_W, S_W4K, S_W3K = 3, 4, 5
SK, SV, SWQ, SWO, SX, SWS = 's[8:11]', 's[12:15]', 's[16:19]', 's[20:23]', 's[24:27]', 's[28:31]'
S_OFF, S_C, S_T0, S_T1, S_HD, S_QH, S_ST = 32, 34, 36, 37, 38, 39, 33
S_RET = 's[6:7]'
SLOT = 16384
KPW = [52 + p for p in range(9)]
KPX = [61, 62, 63, 64, 65, 66, 67, 43, 45]
def lit(x): return hex(x & 0xffffffff)
cval = struct.unpack('<I', struct.pack('<f', math.log2(math.e) / math.sqrt(128.0)))[0]
NT = "nt" if OPT['nt_kv'] else ""
def win(slot): return (2, (slot - 6) * SLOT) if slot >= 6 else ((1, (slot - 3) * SLOT) if slot >= 3 else (0, slot * SLOT))
WBASE = [0, 3 * SLOT, 6 * SLOT]
AW = {2: V_H, 1: V_P}
AX = {2: V_H + 4, 0: V_P + 4}
AO = {2: V_H, 1: V_H + 2, 0: V_H + 4}

class Tile:
    def __init__(s, name, slot, ops, cands=None, lead=None):
        s.name = name; s.slot = slot; s.ops = ops; s.cands = cands; s.lead = lead
        s.last_use = None; s.first_need = None
def x_ops(n, i, slot):
    return [salu("s_add_u32", "m0", f"s{S_W3K}", lit(slot * SLOT))] + [dma(f"v{V_T+j}", SX, f"s{KPX[i]}", 1024 * j, "nt" if (OPT['ntx'] or (OPT['ntq0'] and n.startswith("X0"))) else "", tag=n, slot=slot) for j in range(3)]
def w_ops(srd, n, sreg, off, slot):
    ops = [salu("s_add_u32", "m0", f"s{S_W4K}", lit(slot * SLOT))]; so = f"s{sreg}"
    if off: ops.append(salu("s_add_u32", f"s{S_OFF}", so, lit(off))); so = f"s{S_OFF}"
    return ops + [dma(f"v{V_L+j}", srd, so, 1024 * j, "nt" if (((OPT['ntq0'] or OPT['ntw0']) and n.startswith("WQ0")) or (OPT['ntt'] and n.startswith(("WO2", "WO3")))) else "", tag=n, slot=slot) for j in range(4)]
def wq_ops(r, p, slot): return w_ops(SWQ, f"WQ{r}_{p}", KPW[p >> 1], (p & 1) * 262144 + r * 512, slot)
def wo_ops(h4, nb, slot): return w_ops(SWO, f"WO{h4}_{nb}", KPW[nb], h4 * 128 * 1152, slot)
def kv_ops(kind, r, n_, slot):
    n = f"{kind}{r}_{n_}"
    va, vb, srd = (V_KA, V_KB, SK) if kind == 'K' else (V_VA, V_VB, SV)
    ops = [salu("s_add_u32", "m0", f"s{S_W4K}", lit(slot * SLOT)), salu("s_mov_b32", f"s{S_OFF}", lit((n_ & 1) * 8192 if OPT['fake'] else r * 262144 + n_ * 8192))]
    return ops + [dma(f"v{va}", srd, f"s{S_OFF}", 0, NT, tag=n, slot=slot), dma(f"v{va}", srd, f"s{S_OFF}", 1024, NT, tag=n, slot=slot),
                  dma(f"v{vb}", srd, f"s{S_OFF}", 2048, NT, tag=n, slot=slot), dma(f"v{vb}", srd, f"s{S_OFF}", 3072, NT, tag=n, slot=slot)]
def set_L_wo():
    ops = [valu("v_mov_b32", f"v{V_L}", f"v{V_WO0}")] + [valu("v_add_u32", f"v{V_L+j}", str(8192 * j), f"v{V_WO0}") for j in (1, 2, 3)]
    for p in range(9):
        if OPT['fake'] > 1: ops.append(salu("s_mov_b32", f"s{KPW[p]}", str((p & 1) * 128))); continue
        ops.append(raw(f"s_add_u32 s{KPW[p]}, s41, {128*p}\ns_sub_u32 s{S_OFF}, s{KPW[p]}, 1152\ns_min_u32 s{KPW[p]}, s{KPW[p]}, s{S_OFF}", 'X', rd=["s41"], wr=[f"s{KPW[p]}", f"s{S_OFF}"]))
    return ops
def set_addr_o(w):
    return [valu("v_add_u32", f"v{AO[w]}", lit(WBASE[w]), f"v{V_AO0}"), valu("v_xor_b32", f"v{AO[w]+1}", "32", f"v{AO[w]}")]
def stamp_ops(k):
    if not OPT['stamp']: return []
    return [lambda p: p.wait_lgkm(0), raw("s_memrealtime s[74:75]", 'S'), raw("s_memtime s[76:77]", 'S'), raw("s_waitcnt lgkmcnt(0)", 'W'),
            raw(f"s_mov_b32 s{78+k}, s74", 'S'), raw(f"s_mov_b32 s{89+k}, s76", 'S')]
PRE = {"X0_0": 0, "WQ0_0": 6, "WQ0_1": 7, "X0_1": 1}

P0 = Prog(); E = P0.emit
E(raw("s_cmp_ge_u32 s2, 256", 'S')); E(raw("s_cbranch_scc1 L_end0", 'S'))
E(raw("s_load_dwordx16 s[80:95], s[0:1], 0", 'S'))
E(raw("s_load_dwordx4 s[96:99], s[0:1], 64", 'S'))
E(raw("s_load_dwordx4 s[68:71], s[0:1], 80", 'S'))
E(raw("s_load_dwordx2 s[72:73], s[0:1], 96", 'S'))
if OPT['stamp']: E(raw("s_memrealtime s[74:75]", 'S')); E(raw("s_memtime s[76:77]", 'S'))
E(valu("v_lshrrev_b32", "v1", "6", "v0")); E(valu("v_and_b32", "v0", "63", "v0"))
E(valu("v_readfirstlane_b32", f"s{S_W}", "v1"))
E(salu("s_and_b32", "s40", "s2", "7")); E(salu("s_lshr_b32", "s41", "s2", "3"))
E(salu("s_lshr_b32", "s42", "s40", "2")); E(salu("s_and_b32", "s43", "s40", "3"))
E(salu("s_lshr_b32", "s44", "s41", "1")); E(salu("s_and_b32", "s45", "s41", "1"))
E(salu("s_lshl_b32", "s46", "s43", "1")); E(salu("s_add_u32", "s46", "s46", "s45"))
E(salu("s_mul_i32", "s48", "s45", "5")); E(salu("s_add_u32", "s48", "s48", "s44"))
for _ in range(2):
    E(salu("s_sub_u32", "s49", "s48", "9")); E(raw("s_cmp_ge_u32 s48, 9", 'S')); E(raw("s_cselect_b32 s48, s49, s48", 'S', wr=["s48"]))
if not OPT['rot'] or OPT['fake'] > 1: E(salu("s_mov_b32", "s48", "0"))
E(salu("s_lshl_b32", f"s{KPW[0]}", "s48", "19")); E(salu("s_lshl_b32", f"s{KPX[0]}", "s48", "7"))
E(salu("s_lshl_b32", f"s{S_W4K}", f"s{S_W}", "12")); E(salu("s_mul_i32", f"s{S_W3K}", f"s{S_W}", "3072"))
T = V_S
i16, g4, r4, c4, i5, t0, t1, t2 = (f"v{T+k}" for k in range(8))
E(valu("v_lshrrev_b32", i5, "5", "v0")); E(valu("v_and_b32", t2, "7", "v0"))
E(salu("s_mul_i32", f"s{S_T0}", f"s{S_W}", "24"))
for j in range(3):
    E(valu("v_lshrrev_b32", t0, "3", "v0")); E(valu("v_add3_u32", t0, t0, f"s{S_T0}", str(8 * j)))
    E(valu("v_bfe_u32", t1, t0, "1", "3")); E(valu("v_xor_b32", t1, t1, t2))
    E(valu("v_mul_u32_u24", t0, "1152", t0)); E(valu("v_lshl_add_u32", f"v{V_T+j}", t1, "4", t0))
    if j: E(valu("v_subrev_u32", f"v{V_T+j}", str(1024 * j), f"v{V_T+j}"))
E(salu("s_lshl_b32", f"s{S_T0}", f"s{S_W}", "3"))
E(valu("v_add_u32", t0, f"s{S_T0}", i5)); E(valu("v_lshlrev_b32", t0, "13", t0))
E(valu("v_and_b32", t1, "31", "v0")); E(valu("v_lshlrev_b32", t2, "2", i5)); E(valu("v_xor_b32", t1, t1, t2))
E(valu("v_lshl_add_u32", f"v{V_L}", t1, "4", t0))
E(valu("v_xor_b32", f"v{V_L+1}", "0x80", f"v{V_L}")); E(valu("v_add_u32", f"v{V_L+2}", str(2 * 15360), f"v{V_L}"))
E(valu("v_add_u32", f"v{V_L+3}", str(3 * 15360), f"v{V_L+1}")); E(valu("v_add_u32", f"v{V_L+1}", str(15360), f"v{V_L+1}"))
E(salu("s_mul_i32", f"s{S_T0}", "s44", "110592")); E(salu("s_lshl_b32", f"s{S_T1}", "s46", "10"))
E(salu("s_mov_b32", "s26", lit(110592))); E(salu("s_mov_b32", "s27", "0x20000"))
E(salu("s_sub_u32", "s18", lit(576 * 8192), f"s{S_T1}")); E(salu("s_mov_b32", "s19", "0x20000"))
E(raw("s_waitcnt lgkmcnt(0)", 'W'))
E(raw("s_cmp_eq_u32 s42, 0", 'S'))
for (d, a, b) in [(24, 80, 90), (16, 86, 96), (8, 82, 92), (12, 84, 94), (20, 88, 98)]:
    E(raw(f"s_cselect_b64 s[{d}:{d+1}], s[{a}:{a+1}], s[{b}:{b+1}]", 'S', wr=[f"s[{d}:{d+1}]"]))
if OPT['stamp']: E(raw("s_mov_b32 s78, s74", 'S')); E(raw("s_mov_b32 s89, s76", 'S'))
def srd_base(E, d, off_s):
    E(salu("s_add_u32", f"s{d}", f"s{d}", off_s)); E(salu("s_addc_u32", f"s{d+1}", f"s{d+1}", "0")); E(salu("s_and_b32", f"s{d+1}", f"s{d+1}", "0xffff"))
def srd_finish(E, d, off_s, size):
    srd_base(E, d, off_s); E(salu("s_mov_b32", f"s{d+2}", lit(size))); E(salu("s_mov_b32", f"s{d+3}", "0x20000"))
srd_base(E, 24, f"s{S_T0}"); E(x_ops("X0_0", 0, PRE["X0_0"]))
srd_base(E, 16, f"s{S_T1}"); E(wq_ops(0, 0, PRE["WQ0_0"]))
if OPT['cpf']:
    E(raw("s_getpc_b64 s[28:29]", 'S', wr=["s[28:29]"])); E(raw("L_pc0:", 'X'))
    E(salu("s_and_b32", "s29", "s29", "0xffff")); E(raw("s_mov_b32 s30, L_codeend-L_pc0", 'S', wr=["s30"])); E(salu("s_mov_b32", "s31", "0x20000"))
    E(salu("s_lshl_b32", "s47", "s41", "2")); E(salu("s_add_u32", "s47", "s47", f"s{S_W}")); E(salu("s_mul_i32", "s47", "s47", "640"))
    E(valu("v_min_u32", "v2", "4", "v0")); E(valu("v_lshlrev_b32", "v2", "7", "v2"))
    E(raw(f"buffer_load_dword v{V_NM+2}, v2, s[28:31], s47 offen", 'D', rd=["v2", "s[28:31]", "s47"], wr=[f"v{V_NM+2}"], tag="pf"))
E(salu("s_lshr_b32", f"s{S_HD}", f"s{S_W}", "1")); E(salu("s_and_b32", f"s{S_QH}", f"s{S_W}", "1"))
E(salu("s_sub_u32", "s49", "s44", "9")); E(salu("s_min_u32", "s41", "s44", "s49")); E(salu("s_lshl_b32", "s41", "s41", "7"))
if not OPT['rot']: E(salu("s_mov_b32", "s41", "0"))
for p in range(1, 9):
    if OPT['fake'] > 1: E(salu("s_mov_b32", "s48", str(p & 1)))
    else:
        E(salu("s_add_u32", "s48", "s48", "1")); E(raw("s_cmp_eq_u32 s48, 9", 'S')); E(raw("s_cselect_b32 s48, 0, s48", 'S', wr=["s48"]))
    E(salu("s_lshl_b32", f"s{KPW[p]}", "s48", "19")); E(salu("s_lshl_b32", f"s{KPX[p]}", "s48", "7"))
E(valu("v_and_b32", i16, "15", "v0")); E(valu("v_lshrrev_b32", g4, "4", "v0"))
E(valu("v_bfe_u32", r4, "v0", "2", "2")); E(valu("v_and_b32", c4, "3", "v0"))
E(valu("v_lshl_add_u32", t0, g4, "3", r4)); E(valu("v_lshlrev_b32", t0, "9", t0))
E(valu("v_lshl_add_u32", t1, r4, "2", c4)); E(valu("v_lshl_add_u32", t0, t1, "4", t0))
E(salu("s_lshl_b32", f"s{S_T0}", f"s{S_HD}", "8")); E(valu("v_add_u32", t0, f"s{S_T0}", t0))
for w in (2, 1):
    E(valu("v_add_u32", f"v{AW[w]}", lit(WBASE[w]), t0))
    for k in (1, 2, 3): E(valu("v_xor_b32", f"v{AW[w]+k}", str(k << 6), f"v{AW[w]}"))
E(salu("s_mul_i32", f"s{S_T0}", f"s{S_QH}", str(48 * 128)))
E(valu("v_lshlrev_b32", t0, "7", i16)); E(valu("v_add_u32", t0, f"s{S_T0}", t0))
E(valu("v_lshrrev_b32", t1, "1", i16)); E(valu("v_xor_b32", t1, t1, g4)); E(valu("v_lshl_add_u32", f"v{AX[0]}", t1, "4", t0))
E(valu("v_xor_b32", f"v{AX[0]+1}", "64", f"v{AX[0]}"))
E(valu("v_add_u32", f"v{AX[2]}", lit(WBASE[2]), f"v{AX[0]}")); E(valu("v_add_u32", f"v{AX[2]+1}", lit(WBASE[2]), f"v{AX[0]+1}"))
E(salu("s_lshl_b32", f"s{S_T0}", "s44", "22")); E(salu("s_lshl_b32", f"s{S_T1}", "s46", "19")); E(salu("s_add_u32", f"s{S_T0}", f"s{S_T0}", f"s{S_T1}"))
if OPT['fake']: E(salu("s_mov_b32", f"s{S_T0}", "0"))
srd_finish(E, 8, f"s{S_T0}", 524288); srd_finish(E, 12, f"s{S_T0}", 524288)
E(salu("s_mul_i32", f"s{S_T0}", "s46", str(512 * 1152))); srd_finish(E, 20, f"s{S_T0}", 512 * 1152)
E(salu("s_lshl_b32", "s40", "s42", "4")); E(salu("s_add_u32", "s40", "s40", "s44"))
E(salu("s_mul_i32", f"s{S_T0}", "s40", str(8 * 108 * 1024 + 1024)))
E(raw("s_mov_b64 s[28:29], s[72:73]", 'S', wr=["s[28:29]"], rd=["s[28:29]"])); srd_finish(E, 28, f"s{S_T0}", 8 * 108 * 1024 + 1024)
E(salu("s_lshr_b32", "s49", "s2", "3")); E(salu("s_and_b32", "s49", "s49", "7")); E(salu("s_lshl_b32", "s100", f"s{S_W}", "8")); E(salu("s_add_u32", "s100", "s100", "s49"))
E(salu("s_lshl_b32", "s101", "s46", "3")); E(salu("s_add_u32", "s101", "s101", lit(8 * 108 * 1024)))
E(salu("s_mul_i32", "s47", "s46", str(108 * 1024))); E(salu("s_add_u32", "s47", "s47", f"s{S_W3K}"))
E(salu("s_mov_b32", f"s{S_C}", hex(cval))); E(salu("s_mov_b32", f"s{S_C+1}", hex(cval)))
E(salu("s_lshl_b32", f"s{S_T0}", f"s{S_W}", "3"))
E(valu("v_add_u32", t0, f"s{S_T0}", g4)); E(valu("v_lshlrev_b32", t0, "8", t0))
E(salu("s_lshl_b32", f"s{S_T1}", f"s{S_W}", "2"))
E(valu("v_or_b32", t1, f"s{S_T1}", g4)); E(valu("v_xor_b32", t1, t1, i16))
E(valu("v_lshl_add_u32", f"v{V_KA}", t1, "4", t0)); E(valu("v_add_u32", f"v{V_KB}", str(131072 - 2048), f"v{V_KA}"))
E(salu("s_lshl_b32", f"s{S_T1}", f"s{S_QH}", "2"))
E(valu("v_or_b32", t1, f"s{S_T1}", g4)); E(valu("v_lshlrev_b32", t1, "1", t1)); E(valu("v_xor_b32", t1, t1, i16))
E(valu("v_lshl_add_u32", f"v{V_VA}", t1, "4", t0)); E(valu("v_add_u32", f"v{V_VB}", str(131072 - 2048), f"v{V_VA}"))
E(salu("s_lshl_b32", f"s{S_T0}", f"s{S_W}", "5"))
E(valu("v_lshrrev_b32", t0, "3", "v0")); E(valu("v_add_u32", t0, f"s{S_T0}", t0)); E(valu("v_mul_u32_u24", t0, "1152", t0))
E(valu("v_lshlrev_b32", t1, "1", g4)); E(valu("v_and_b32", t2, "7", "v0")); E(valu("v_xor_b32", t1, t1, t2))
E(valu("v_lshl_add_u32", f"v{V_WO0}", t1, "4", t0))
E(salu("s_lshl_b32", f"s{S_T0}", f"s{S_HD}", "11"))
E(valu("v_lshrrev_b32", t0, "2", i16)); E(valu("v_lshlrev_b32", t0, "12", t0)); E(valu("v_add_u32", t0, f"s{S_T0}", t0))
E(valu("v_lshl_add_u32", t0, c4, "8", t0))
E(valu("v_xor_b32", t1, g4, i16)); E(valu("v_lshl_add_u32", f"v{V_AK}", t1, "4", t0))
for ks in (1, 2, 3): E(valu("v_xor_b32", f"v{V_AK+ks}", str(ks << 6), f"v{V_AK}"))
E(valu("v_lshlrev_b32", t0, "12", g4)); E(valu("v_add_u32", t0, f"s{S_T0}", t0)); E(valu("v_lshl_add_u32", t0, r4, "8", t0))
E(valu("v_lshl_add_u32", t0, c4, "3", t0))
E(valu("v_and_b32", t1, "1", g4)); E(valu("v_lshl_or_b32", t1, t1, "2", r4))
E(valu("v_lshl_add_u32", t0, t1, "5", t0)); E(valu("v_add_u32", f"v{V_AV}", lit(WBASE[1]), t0))
for dt in range(1, 8): E(valu("v_xor_b32", f"v{V_AV+dt}", str(dt << 5), f"v{V_AV}"))
E(valu("v_lshl_add_u32", t0, g4, "2", r4)); E(valu("v_bfe_u32", t1, t0, "1", "2"))
E(salu("s_lshl_b32", f"s{S_T0}", f"s{S_HD}", "1")); E(valu("v_xor_b32", t1, f"s{S_T0}", t1))
E(valu("v_lshlrev_b32", t0, "7", t0)); E(valu("v_lshl_add_u32", t0, t1, "5", t0)); E(valu("v_lshl_add_u32", f"v{V_AO0}", c4, "3", t0))
E(valu("v_mov_b32", t0, "0x3f803f80"))
for k in range(4): E(valu("v_accvgpr_write_b32", f"a{A_ONE+k}", t0))
E(wq_ops(0, 1, PRE["WQ0_1"])); E(x_ops("X0_1", 1, PRE["X0_1"]))

def cat(op): return 'X' if callable(op) else op.kind
class Build:
    def __init__(s, alloc):
        s.alloc = alloc
        s.P = Prog(); s.P.vm = list(P0.vm)
        s.MF = []; s.FL = []; s.frags = []; s.bar_req = []; s.tiles = []; s.issued = set(PRE)
        s.nst = 1; s.late = []; s.xneed = {}; s.win_after = []
        s.KT = {r: [s.fixed(f"K{r}_{n}", (16 * r + n) % 3, lambda sl, r=r, n=n: kv_ops('K', r, n, sl)) for n in range(16)] for r in (0, 1)}
        s.VT = {r: [s.fixed(f"V{r}_{n}", 3 + (16 * r + n) % 3, lambda sl, r=r, n=n: kv_ops('V', r, n, sl)) for n in range(16)] for r in (0, 1)}
        s.pending_st = []
        for i, t in enumerate([s.KT[0][0], s.KT[0][1], s.VT[0][0], s.KT[0][2], s.VT[0][1], s.VT[0][2]][:OPT['early']]): t.want_issue = OPT['e0'] + i * OPT['estep']
    def fixed(s, name, slot, mk, lead=None):
        t = Tile(name, slot, mk(slot), lead=OPT['leadh'] if lead is None else lead); s.tiles.append(t); return t
    def free(s, name, cands, mk):
        sl = PRE.get(name, s.alloc.get(name, cands[0]))
        t = Tile(name, sl, mk(sl), cands=None if name in PRE else cands, lead=0); s.tiles.append(t); return t
    def g(s): return len(s.MF) - 1
    def fill(s, ops, e, d, want=None, after=(), name=""):
        f = Fill(ops, e, max(d, e), want=want, after=[a for a in after if a is not None], name=name); s.FL.append(f); return f
    def chain(s, ops, e, d, want0=None, step=0.5, after=(), name=""):
        prev = list(after); f = None
        for k, op in enumerate(ops):
            f = s.fill(op, e, d, want=(e if want0 is None else want0) + k * step, after=prev, name=name); prev = [f]
        return f
    def forced(s, ops, gap=None, name="", after=()):
        gg = s.g() if gap is None else gap
        f = Fill(ops, gg, gg, want=-10**9 + len(s.FL), after=after, name=name); f.excl = False; s.FL.append(f); return f
    def stamp(s):
        if OPT.get('at'): return
        if OPT['stamp']: s.forced(stamp_ops(s.nst), name="stamp")
        s.nst += 1
    def add_frag(s, tile, mk_reads, mk_mfmas, after=None):
        f = len(s.frags); base = A_FR + 4 * (f % NFR)
        u0 = len(s.MF); s.MF.extend(mk_mfmas(R('a', base, 4))); u1 = len(s.MF) - 1
        s.frags.append(dict(reads=mk_reads(base), u0=u0, u1=u1, tile=tile, after=after))
        tile.last_use = u1
        if tile.first_need is None: tile.first_need = u0
    def want_bar(s, tiles): s.bar_req.append([len(s.MF), list(tiles)]); return len(s.bar_req) - 1
    def q_frag(s, T_, dt, acc, xr, first):
        w, ib = win(T_.slot); ksp, odd = dt >> 1, dt & 1
        s.add_frag(T_, lambda b: [ds_read("ds_read_b64_tr_b16", R('a', b + 2 * hf, 2), f"v{AW[w]+ksp}", ib + hf * 2048 + odd * 8, slot=T_.slot) for hf in range(2)],
                   lambda a: [mfma(acc(dt, qt), a, R('a', xr + 4 * qt, 4), "0" if first else acc(dt, qt)) for qt in range(3)])
    def x_reads(s, X_, regs, e_list, need_list):
        X_.last_use = max(need_list) + 2
        def mk():
            b = s.tile_bar[X_.name]; w, ib = win(X_.slot); k = 0
            for ksl in range(2):
                for qt in range(3):
                    op = ds_read("ds_read_b128", R('a', regs[ksl] + 4 * qt, 4), f"v{AX[w]+ksl}", ib + qt * 2048, slot=X_.slot)
                    s.xneed[id(op)] = need_list[ksl]
                    e = max(b.earliest, e_list[ksl])
                    s.fill(op, e, need_list[ksl] - 1, want=max(e - 2, min(need_list[ksl] - LA - 6, e + 4)) + k * 0.7, after=[b], name="xrd"); k += 1
        s.late.append(mk)
    def conv(s, even, odd, scale, dst=None, pk=False):
        dst = even if dst is None else dst
        if pk: ops = [valu("v_pk_mul_f32", R('v', b, 2), R('v', b, 2), scale, extra="" if scale[0] == 's' else " op_sel_hi:[1,0]") for b in (even, even + 2, odd, odd + 2)]
        else:
            sc = scale[0] + scale[2:].split(':')[0]
            ops = [valu("v_mul_f32", f"v{b+k}", sc, f"v{b+k}") for b in (even, odd) for k in range(4)]
        ops += [valu("v_cvt_pk_bf16_f32", f"v{dst}", f"v{even}", f"v{even+1}"), valu("v_cvt_pk_bf16_f32", f"v{dst+1}", f"v{even+2}", f"v{even+3}"),
                valu("v_cvt_pk_bf16_f32", f"v{dst+2}", f"v{odd}", f"v{odd+1}"), valu("v_cvt_pk_bf16_f32", f"v{dst+3}", f"v{odd+2}", f"v{odd+3}")]
        return ops
    def k_frag(s, r, n, t, ks, dst, cinit):
        T_ = s.KT[r][n]
        s.add_frag(T_, lambda b: [ds_read("ds_read_b128", R('a', b, 4), f"v{V_AK+ks}", T_.slot * SLOT + t * 1024, slot=T_.slot)],
                   lambda a: [mfma(R('v', dst(qt), 4), a, QF(ks, qt), cinit if ks == 0 else R('v', dst(qt), 4)) for qt in range(3)])
    def m0(s, r, after=()):
        bi = s.want_bar([s.KT[r][0]])
        for ks in range(4): s.k_frag(r, 0, 0, ks, lambda qt: Sreg(1, 0, qt), "0")
        x = Sreg(1, 0, 0); a, b = f"v{x}", f"v{x+1}"
        ops = [valu("v_max3_f32", a, a, b, f"v{x+2}"), valu("v_max3_f32", f"v{x+3}", f"v{x+3}", f"v{x+4}", f"v{x+5}"), valu("v_max3_f32", f"v{x+6}", f"v{x+6}", f"v{x+7}", f"v{x+8}"),
               valu("v_max3_f32", f"v{x+9}", f"v{x+9}", f"v{x+10}", f"v{x+11}"), valu("v_max3_f32", a, a, f"v{x+3}", f"v{x+6}"), valu("v_max_f32", a, a, f"v{x+9}"),
               valu("v_mov_b32", b, a), valu("v_permlane16_swap_b32", a, b), valu("v_max_f32", a, a, b), valu("v_mov_b32", b, a),
               valu("v_permlane32_swap_b32", a, b), valu("v_max_f32", a, a, b)] + [valu("v_sub_f32", f"v{V_NM+k}", "0", a) for k in range(4)]
        f = s.forced(ops, name="m0v", after=after); f.want = 10**7
        return bi
    def phase_a(s, r, lwork):
        done_at = {}; info = {'bar': [], 'step0': []}
        def qk(n):
            for t in range(2):
                for ks in range(4): s.k_frag(r, n, t, ks, lambda qt: Sreg(n & 1, t, qt), NMR)
                for qt in range(3): done_at[(n, t, qt)] = len(s.MF) - 3 + qt
        qk(0)
        for n in range(16):
            bi = s.want_bar(([s.KT[r][n + 1]] if n < 15 else []) + [s.VT[r][n]]); info['bar'].append(bi); info['step0'].append(len(s.MF))
            if n < 15: qk(n + 1)
            pv0 = len(s.MF); k = 0
            for t in range(2):
                for qt in range(3):
                    sr = Sreg(n & 1, t, qt); ef = []; e = done_at[(n, t, qt)] + 4
                    for c in range(4):
                        w = e + k * 0.01; k += 1
                        ef.append(s.fill(valu("v_exp_f32", f"v{sr+c}", f"v{sr+c}"), e, pv0 - 2, want=w, name="exp"))
                        if c & 1:
                            s.fill(valu("v_cvt_pk_bf16_f32", f"v{Preg(n&1,qt)+2*t+(c>>1)}", f"v{sr+c-1}", f"v{sr+c}"), e, pv0 - 1, want=w, after=ef[-2:], name="cvt")
            for qt in range(3):
                l = R('a', A_L + 4 * qt, 4)
                s.MF.append(mfma(l, R('a', A_ONE, 4), R('v', Preg(n & 1, qt), 4), "0" if n == 0 else l))
            T_ = s.VT[r][n]
            for dt in range(8):
                s.add_frag(T_, lambda b: [ds_read("ds_read_b64_tr_b16", R('a', b + 2 * t, 2), f"v{V_AV+dt}", (T_.slot - 3) * SLOT + t * 1024, slot=T_.slot) for t in range(2)],
                           lambda a: [mfma(R('v', Oacc(dt, qt), 4), a, R('v', Preg(n & 1, qt), 4), "0" if n == 0 else R('v', Oacc(dt, qt), 4)) for qt in range(3)])
                info[dt] = s.g()
            if n == 0: info['pv_first'] = pv0
            info['pv_last'] = pv0; info['pv_end'] = s.g()
            lwork(n, bi)
        return info
    def o_finish(s, r, info, dl):
        pv0 = info['pv_last']; ta, tb = f"v{V_NM+1}", f"v{V_NM+3}"
        ops = [valu("v_accvgpr_read_b32", f"v{RL[qt]}", f"a{A_L+4*qt}") for qt in range(3)]
        if OPT['slow']:
            lab = f"L_ok{r}"
            ops += [valu("v_add_f32", ta, f"v{RL[0]}", f"v{RL[1]}"), valu("v_min3_f32", tb, f"v{RL[0]}", f"v{RL[1]}", f"v{RL[2]}"), valu("v_add_f32", ta, ta, f"v{RL[2]}"),
                    salu("s_mov_b32", "s48", "0x5d800000" if not OPT['forceslow'] else "0"), salu("s_mov_b32", "s49", "0x21800000"),
                    raw(f"v_cmp_nge_f32 vcc, s48, {ta}", 'V', rd=[ta, "s48"], wr=['vcc']),
                    raw(f"v_cmp_nle_f32 s[50:51], s49, {tb}", 'V', rd=[tb, "s49"], wr=['s[50:51]']),
                    raw("s_nop 1", 'W'), raw("s_or_b64 vcc, vcc, s[50:51]", 'S'),
                    raw(f"s_cbranch_vccz {lab}", 'S', rd=['vcc']),
                    salu("s_mov_b32", "s48", lit(r * 262144)),
                    raw(f"s_getpc_b64 {S_RET}", 'S'), raw("s_add_u32 s6, s6, 12", 'S'), raw("s_addc_u32 s7, s7, 0", 'S'), raw("s_branch L_slow", 'S'),
                    raw(f"{lab}:", 'X')]
        chk = s.forced(ops, gap=pv0 + 5, name="lchk")
        rc = s.chain([valu("v_rcp_f32", f"v{RL[qt]}", f"v{RL[qt]}") for qt in range(3)], pv0 + 5, pv0 + 9, after=[chk], name="rcp")
        last = {}
        for ks in range(4):
            for qt in range(3):
                e = min(info[2 * ks + 1] + 3, dl(ks, qt))
                last[(ks, qt)] = s.chain(s.conv(Oacc(2 * ks, qt), Oacc(2 * ks + 1, qt), R('v', RL[qt], 2)), e, dl(ks, qt), want0=e + (ks * 3 + qt) * 0.01, step=0.5, after=[rc], name="ocv")
        return last
    def xaddr(s, e, stride):
        return s.chain([valu("v_lshlrev_b32", f"v{V_T}", "4", "v0"), salu("s_mul_i32", f"s{S_T1}", f"s{S_W}", str(stride)),
                        valu("v_add_u32", f"v{V_T+1}", f"s{S_T1}", f"v{V_T}"), salu("s_mul_i32", f"s{S_T1}", f"s{S_QH}", str(stride)),
                        valu("v_add_u32", f"v{V_T+2}", f"s{S_T1}", f"v{V_T}")], e, e + 8, name="xpre")
    def xround(s, name, fr, slots, stride, last, pre, bar_w, bar_pub, dst, rdead, addr_bias=0):
        res = [s.fixed(f"{name}_{sl}", sl, lambda sl: [], lead=0) for sl in slots]
        for t in res:
            t.first_need = s.bar_req[bar_w][0]; t.last_use = rdead + 1; t.scratch = bar_w
            s.issued.add(t.name)
        base = slots[0] * SLOT - addr_bias
        out = {}
        def mk():
            bw, bp = s.barfill[bar_w], s.barfill[bar_pub]
            for i, (ks, qt) in enumerate(fr):
                lf = last[(ks, qt)]
                op = ds_write("ds_write_b128", f"v{V_T+1}", R('v', Oacc(2 * ks, qt), 4), base + i * 1024); op.note = tuple(slots)
                w_ = s.fill(op, max(lf.earliest, bw.earliest), bp.earliest, want=max(lf.want, bw.earliest) + 0.1 + i * 0.01, after=[lf, pre, bw], name="xw")
                bp.after.append(w_)
            k = 0
            for i, (ks, qt) in enumerate(fr):
                for hh in range(2):
                    op = ds_read("ds_read_b128", dst(hh, ks, qt), f"v{V_T+2}", base + hh * 2 * stride + i * 1024, slot=('X',) + tuple(slots))
                    out[(hh, ks, qt)] = s.fill(op, bp.earliest, rdead, want=bp.earliest + 1 + k * 1.5, after=[bp], name="xr"); k += 1
        s.late.append(mk)
        return out
    def o_tile(s, T_, bfr, accr, first):
        w, ib = win(T_.slot)
        for ks in range(4):
            for ntl in range(2):
                s.add_frag(T_, lambda b: [ds_read("ds_read_b64_tr_b16", R('a', b + 2 * hf, 2), f"v{AO[w]+ntl}", ib + ks * 4096 + hf * 2048, slot=T_.slot) for hf in range(2)],
                           lambda a: [mfma(accr(ntl, qt), a, bfr(ks, qt), "0" if (first and ks == 0) else accr(ntl, qt)) for qt in range(3)], after=('O', w))
    def store_ops(s, src0, src1, tmp, c, qt, from_acc):
        ops = []
        if from_acc:
            for k in range(4): ops.append(valu("v_accvgpr_read_b32", f"v{tmp+k}", f"a{src0+k}"))
            for k in range(4): ops.append(valu("v_accvgpr_read_b32", f"v{tmp+4+k}", f"a{src1+k}"))
            src0, src1 = tmp, tmp + 4
        d = src0
        ops += [valu("v_cvt_pk_bf16_f32", f"v{d}", f"v{src0}", f"v{src0+1}"), valu("v_cvt_pk_bf16_f32", f"v{d+1}", f"v{src0+2}", f"v{src0+3}"),
                valu("v_cvt_pk_bf16_f32", f"v{d+2}", f"v{src1}", f"v{src1+1}"), valu("v_cvt_pk_bf16_f32", f"v{d+3}", f"v{src1+2}", f"v{src1+3}")]
        if qt == 0: ops += [salu("s_add_u32", f"s{S_ST}", "s47", lit(c * 12288))]
        ops += [raw(f"buffer_store_dwordx4 v[{d}:{d+3}], v{V_T}, {SWS}, s{S_ST} offen offset:{qt*1024}" + ["", " sc1", " sc0 sc1", " sc1 nt", " nt", " sc0 sc1 nt"][OPT['stf']], 'D', rd=[f"v[{d}:{d+3}]", f"v{V_T}", SWS, f"s{S_ST}"], tag="stA" if c <= 5 else "st", wide_store=True)]
        if OPT['nost']: ops = ops[:-1]
        return ops
    def build(s, dry=False):
        LHI = [6, 7, 8, 9]
        accq = lambda dt, qt: R('v', QaccQS(dt, qt), 4)
        W0 = [s.free(f"WQ0_{p}", [3, 4, 5, 6, 7, 8, 9], lambda sl, p=p: wq_ops(0, p, sl)) for p in range(18)]
        X0 = [s.free(f"X0_{i}", [0, 1, 2, 6, 7, 8, 9], lambda sl, i=i: x_ops(f"X0_{i}", i, sl)) for i in range(9)]
        done = {}
        for p in range(16):
            u = len(s.MF)
            s.want_bar([W0[p]] + ([X0[p // 2]] if p % 2 == 0 else []))
            if p % 2 == 0:
                X0[p // 2].first_need = u - 0.5; s.x_reads(X0[p // 2], [XFr(p, 0), XFr(p + 1, 0)], [-1, -1], [u, u + 24])
            if OPT['pfw'] and p >= OPT['pft0'] and (p - OPT['pft0']) % OPT['pfd'] == 0 and (p - OPT['pft0']) // OPT['pfd'] < 3:
                k_ = (p - OPT['pft0']) // OPT['pfd']; tmp, dst = f"v{V_TA}", f"v{V_TB}"
                if k_ == 0:
                    ops = [valu("v_min_u32", tmp, "35", "v0"), valu("v_lshrrev_b32", dst, "2", tmp),
                           salu("s_mul_i32", f"s{S_T0}", "s44", "36"), salu("s_mul_i32", f"s{S_T1}", f"s{S_W}", "9"), salu("s_add_u32", f"s{S_T0}", f"s{S_T0}", f"s{S_T1}"),
                           valu("v_add_u32", dst, f"s{S_T0}", dst), valu("v_lshlrev_b32", dst, "13", dst),
                           valu("v_and_b32", tmp, "3", tmp), valu("v_lshl_add_u32", tmp, tmp, "7", dst),
                           raw(f"buffer_load_dword v{V_H+7}, {tmp}, {SWQ}, 0 offen offset:512 nt", 'D', rd=[tmp, SWQ], wr=[], tag="pf")]
                else:
                    ops = [valu("v_min_u32", tmp, "35", "v0"),
                           salu("s_mul_i32", f"s{S_T0}", "s44", "144"), salu("s_mul_i32", f"s{S_T1}", f"s{S_W}", "36"), salu("s_add_u32", f"s{S_T0}", f"s{S_T0}", f"s{S_T1}"),
                           salu("s_add_u32", f"s{S_T0}", f"s{S_T0}", str((k_ - 1) * 2304)), valu("v_add_u32", tmp, f"s{S_T0}", tmp), valu("v_lshlrev_b32", tmp, "7", tmp),
                           raw(f"buffer_load_dword v{V_H+7}, {tmp}, {SWO}, 0 offen nt", 'D', rd=[tmp, SWO], wr=[], tag="pf")]
                s.chain(ops, u, u + 20, step=1.5, name="pf")
            for dt in range(8): s.q_frag(W0[p], dt, accq, XFr(p, 0), p == 0)
        u = len(s.MF); s.want_bar([W0[16], W0[17], X0[8]]); X0[8].first_need = u - 0.5
        s.x_reads(X0[8], [XFr(16, 0), XFr(17, 0)], [-1, -1], [u, u + 3])
        for dt in range(8):
            s.q_frag(W0[16], dt, accq, XFr(16, 0), False); s.q_frag(W0[17], dt, accq, XFr(17, 0), False); done[dt] = s.g()
        gq = s.g()
        for ks in range(4):
            for qt in range(3):
                pk = ks * 3 + qt >= OPT['npl0']
                e = gq if pk else min(done[2 * ks + 1] + 3, gq)
                s.chain(s.conv(QaccQS(2 * ks, qt), QaccQS(2 * ks + 1, qt), f"s[{S_C}:{S_C+1}]", pk=pk), e, gq, want0=e + (ks * 3 + qt) * 0.01, name="qcv")
        s.stamp()
        s.m0(0)
        order = list(range(8, 18)) + list(range(0, 8))
        xreg = {p: XFr(p, 0) for p in range(8, 18)}; xreg.update({p: XFr(8 + p, 0) for p in range(8)})
        acc1 = lambda dt, qt: R('a', 4 * (dt * 3 + qt), 4)
        W1 = {p: s.free(f"WQ1_{p}", LHI, lambda sl, p=p: wq_ops(1, p, sl)) if p not in (4, 5, 6, 7) else s.fixed(f"WQ1_{p}", {4: 8, 5: 9, 6: 6, 7: 7}[p], lambda sl, p=p: wq_ops(1, p, sl), lead=70) for p in order}
        X1 = [s.free(f"X1_{i}", LHI, lambda sl, i=i: x_ops(f"X1_{i}", i, sl)) for i in range(4)]
        lend = {}; lstart = {}
        def dbgsrd(): return [salu("s_mov_b32", "s48", "s70"), salu("s_and_b32", "s49", "s71", "0xffff"), salu("s_mov_b32", "s50", "256"), salu("s_mov_b32", "s51", "0x20000"),
                             salu("s_lshl_b32", f"s{S_T0}", "s40", "3")]
        def site(k, lab, ops):
            s.forced([raw(f"s_cmp_lg_u32 s100, {k}", 'S'), raw(f"s_cbranch_scc1 {lab}", 'S')] + ops + [raw(f"{lab}:", 'X')], name="site")
        def lw0(n, bi):
            if n == 0:
                s.forced([raw(f"s_cmp_lg_u32 s{S_W}, 0", 'S'), raw("s_cbranch_scc1 L_nz", 'S'), valu("v_mov_b32", f"v{V_H+6}", "0"), valu("v_mov_b32", f"v{V_H+7}", "0"), raw("s_mov_b64 exec, 1", 'S'),
                          raw(f"buffer_store_dwordx2 v[{V_H+6}:{V_H+7}], v{V_H+6}, {SWS}, s101 offen sc1", 'S'), raw("s_mov_b64 exec, -1", 'S'), raw("L_nz:", 'X')], name="fz")
            if 4 <= n < 12:
                site(n - 4, f"L_hs{n}", dbgsrd() + [valu("v_mov_b32", f"v{V_H+6}", "0"), valu("v_mov_b32", f"v{V_H+7}", "1"), raw("s_mov_b64 exec, 1", 'S'),
                     raw(f"buffer_atomic_add v{V_H+7}, v{V_H+6}, s[48:51], s{S_T0} offen sc1", 'S'), raw("s_mov_b64 exec, -1", 'S')])
            p = order[n]; s.bar_req[bi][1].append(W1[p]); lstart[p] = len(s.MF)
            for dt in range(8): s.q_frag(W1[p], dt, acc1, xreg[p], n == 0)
            lend[p] = s.g()
        i0 = s.phase_a(0, lw0)
        s.stamp()
        bT = s.want_bar([W1[6], W1[7]]); lstart[6] = len(s.MF); lstart[7] = len(s.MF) + 3
        for dt in range(8):
            s.q_frag(W1[6], dt, acc1, xreg[6], False); s.q_frag(W1[7], dt, acc1, xreg[7], False); done[dt] = s.g()
        gT = s.g()
        for i, X_ in enumerate(X1):
            n = 3 + 2 * i
            s.bar_req[i0['bar'][n]][1].append(X_); X_.first_need = i0['step0'][n] - 0.5
            s.x_reads(X_, [xreg[2 * i], xreg[2 * i + 1]], [lend[8 + 2 * i] + 1, lend[9 + 2 * i] + 1], [i0['step0'][n] + 40, i0['step0'][n] + 44])
        qcv = []
        for ks in range(4):
            for qt in range(3):
                pk = ks * 3 + qt >= OPT['npl1']
                e = gT if pk else min(done[2 * ks + 1] + 3, gT); tmp = V_S + 8 * ((ks * 3 + qt) % 3)
                ops = [valu("v_accvgpr_read_b32", f"v{tmp+4*o+k}", f"a{4*((2*ks+o)*3+qt)+k}") for o in range(2) for k in range(4)]
                ops += s.conv(tmp, tmp + 4, f"s[{S_C}:{S_C+1}]", dst=QFr(ks, qt), pk=pk)
                qcv.append(s.chain(ops, e, gT, want0=e + (ks * 3 + qt) * 0.01, step=0.25, after=qcv[-3:-2] if len(qcv) >= 3 else [], name="qcv1"))
        wdl = gT - LA - 2
        last0 = s.o_finish(0, i0, lambda ks, qt: wdl - 2 if ks * 3 + qt < 4 else gT)
        pre0 = s.xaddr(i0['pv_last'] + 6, 4096)
        bias = s.chain([valu("v_add_u32", f"v{V_T+1}", lit(8 * SLOT), f"v{V_T+1}"), valu("v_add_u32", f"v{V_T+2}", lit(8 * SLOT), f"v{V_T+2}")], i0['pv_last'] + 8, i0['pv_last'] + 16, after=[pre0], name="xb")
        s.stamp()
        bM = s.m0(1, after=list(last0.values()))
        aoh = s.chain(set_addr_o(2), gT, gT + 30, name="ao2"); s.win_after.append((('O', 2), aoh))
        o0s = OPT['o0start']; nblk = (16 - o0s) // 2
        blk_done = {}
        def accA(nb): return ACCB[nb & 1]
        parkf = {}
        def lw1(n, bi):
            if 4 <= n < 12:
                site(n - 4, f"L_hc{n}", dbgsrd() + [valu("v_mov_b32", f"v{V_H+7}", "0"), raw("s_nop 0", 'W'),
                     raw(f"buffer_load_dword v{V_H+7}, v{V_H+7}, s[48:51], s{S_T0} offen sc1", 'S')])
            if OPT['cpf2'] and n == OPT['cps']:
                tmp = f"v{V_H+7}"
                ops = [raw("s_getpc_b64 s[48:49]", 'S', wr=["s[48:49]"]), raw("L_pc2:", 'X'),
                       raw("s_add_u32 s48, s48, L_tailcode-L_pc2", 'S', wr=["s48"]), raw("s_addc_u32 s49, s49, 0", 'S', wr=["s49"]),
                       salu("s_and_b32", "s49", "s49", "0xffff"), raw("s_mov_b32 s50, L_slow-L_tailcode", 'S', wr=["s50"]), salu("s_mov_b32", "s51", "0x20000"),
                       salu("s_lshl_b32", f"s{S_T0}", "s41", "2"), salu("s_add_u32", f"s{S_T0}", f"s{S_T0}", f"s{S_W}"), salu("s_lshl_b32", f"s{S_T0}", f"s{S_T0}", "8"),
                       valu("v_and_b32", tmp, "1", "v0"), valu("v_lshlrev_b32", tmp, "7", tmp),
                       raw(f"buffer_load_dword {tmp}, {tmp}, s[48:51], s{S_T0} offen", 'D', rd=[tmp, "s[48:51]", f"s{S_T0}"], wr=[], tag="pf")]
                s.forced(ops, name="cpf2")
            if n == 14: s.forced([raw("L_tailcode:", 'X')], name="lab")
            if OPT['pft'] and n == OPT['pfs']:
                tmp = f"v{V_H+7}"
                s.chain([valu("v_min_u32", tmp, "35", "v0"),
                         salu("s_mul_i32", f"s{S_T0}", "s44", "144"), salu("s_mul_i32", f"s{S_T1}", f"s{S_W}", "36"), salu("s_add_u32", f"s{S_T0}", f"s{S_T0}", f"s{S_T1}"),
                         salu("s_add_u32", f"s{S_T0}", f"s{S_T0}", "2304"), valu("v_add_u32", tmp, f"s{S_T0}", tmp), valu("v_lshlrev_b32", tmp, "7", tmp),
                         raw(f"buffer_load_dword {tmp}, {tmp}, {SWO}, 0 offen", 'D', rd=[tmp, SWO], wr=[], tag="pf")], s.g(), s.g() + 40, step=2, name="pf")
            if n < o0s or (n - o0s) // 2 >= nblk: return
            nb, hh = (n - o0s) >> 1, (n - o0s) & 1
            T_ = s.free(f"WO{hh}_{nb}", LHI, lambda sl: wo_ops(hh, nb, sl)); s.bar_req[bi][1].append(T_)
            st = len(s.MF)
            if hh == 0 and nb >= 2:
                pb = nb - 2; ops = []
                for i in range(12):
                    ta, tb = (V_TA, V_TB) if i & 1 else (V_T + 1, V_T + 2)
                    ops += [valu("v_accvgpr_read_b32", f"v{ta}", f"a{accA(pb)+2*i}"), valu("v_accvgpr_read_b32", f"v{tb}", f"a{accA(pb)+2*i+1}"),
                            valu("v_cvt_pk_bf16_f32", f"v{ta}", f"v{ta}", f"v{tb}"), valu("v_accvgpr_write_b32", f"a{PARK[pb]+i}", f"v{ta}")]
                e = blk_done[pb] + 4
                pd = blk_done[pb + 1] + 3
                parkf[pb] = s.chain(ops, e, pd, want0=e, step=(pd - e - 20) / 48.0, after=[parkf.get(pb - 1)], name="park")
            s.o_tile(T_, lambda ks, qt: R('a', OBa(hh, ks, qt), 4), lambda ntl, qt: R('a', accA(nb) + 4 * (ntl * 3 + qt), 4), hh == 0)
            if hh == 1: blk_done[nb] = s.g()
        i1 = s.phase_a(1, lw1)
        gA1 = s.g()
        fr = [(ks, qt) for ks in range(4) for qt in range(3)]
        dstA = lambda hh, ks, qt: R('a', OBa(hh, ks, qt), 4)
        s.xround("XA", fr[:4], [8], 4096, last0, bias, bT, bM, dstA, i1['step0'][0] - LA - 9, addr_bias=8 * SLOT)
        s.xround("XB", fr[4:8], [9], 4096, last0, bias, bM, i1['bar'][0], dstA, i1['step0'][0] + 30, addr_bias=8 * SLOT)
        s.xround("XD", fr[8:], [8], 4096, last0, bias, i1['bar'][0], i1['bar'][1], dstA, i1['step0'][1] + 30, addr_bias=8 * SLOT)
        s.xb_dead = i1['pv_first'] - 1
        s.stamp()
        rest = list(range(nblk, 9))
        VB = [V_S, V_S + 24, V_QF, V_QF + 24]
        ALL = list(range(10))
        seq = [(nb, h) for nb in rest for h in (0, 1)]
        inacc = [nb for nb in range(nblk) if nb >= nblk - 2]; parked = [nb for nb in range(nblk) if nb < nblk - 2]
        seq += [(nb, h) for nb in rest + inacc + parked for h in (2, 3)]
        CORD = rest + inacc + parked; s.CORD = CORD
        vb = {}; vfree = {b: i1['pv_last'] + 6 for b in VB}; tst = {}; tbar = {}
        for nb in rest: vb[nb] = VB[rest.index(nb)]
        ao_lo = s.chain(set_addr_o(1) + set_addr_o(0), i1['pv_last'], i1['pv_last'] + 20, name="ao10"); s.win_after += [(('O', 1), ao_lo), (('O', 0), ao_lo)]
        PAIRS = [6, 4, 8, 2, 0]
        AP = {0: V_AK, 1: V_AV, 2: V_AV + 4}
        def pwin(sa): return (0, sa * SLOT) if sa < 4 else ((1, (sa - 3) * SLOT) if sa < 6 else (2, (sa - 6) * SLOT))
        ops = [salu("s_lshl_b32", f"s{S_T0}", f"s{S_HD}", "14"), valu("v_add_u32", f"v{V_AK}", f"s{S_T0}", f"v{V_AO0}"),
               valu("v_xor_b32", f"v{V_AK+1}", "32", f"v{V_AK}"), valu("v_xor_b32", f"v{V_AK+2}", "0x4000", f"v{V_AK}"), valu("v_xor_b32", f"v{V_AK+3}", "0x4020", f"v{V_AK}")]
        ops += [valu("v_add_u32", f"v{AP[w]+k}", lit(WBASE[w]), f"v{V_AK+k}") for w in (2, 1) for k in range(4)]
        apf = s.chain(ops, i1['pv_end'], i1['pv_end'] + 60, name="ap"); s.win_after.append((('P', 0), apf))
        live = set(rest); s.unp = []
        for (nb, h4) in seq:
            st = len(s.MF); tst[(nb, h4)] = st; hh = h4 & 1
            if h4 < 2:
                T_ = s.free(f"WO{h4}_{nb}", ALL, lambda sl: wo_ops(h4, nb, sl)); tbar[(nb, h4)] = s.want_bar([T_])
            elif h4 == 2:
                sa = PAIRS[CORD.index(nb) % 5]
                TP = [s.fixed(f"WO{2+k}_{nb}", sa + k, lambda sl, k=k: wo_ops(2 + k, nb, sl), lead=110) for k in range(2)]
                tbar[(nb, 2)] = tbar[(nb, 3)] = s.want_bar(TP); TP[1].first_need = st + 0.5
            if nb in parked and h4 == 2:
                b = min((x for x in VB if x not in [vb[k] for k in vb if k in live]), key=lambda x: vfree[x]); vb[nb] = b
                ops = []
                for i in range(12):
                    ops += [valu("v_accvgpr_read_b32", f"v{b+2*i+1}", f"a{PARK[nb]+i}"), valu("v_lshlrev_b32", f"v{b+2*i}", "16", f"v{b+2*i+1}"),
                            valu("v_and_b32", f"v{b+2*i+1}", "0xffff0000", f"v{b+2*i+1}")]
                e = max(vfree[b], st - 60)
                s.unp.append((ops, e, st - 2, b))
            if nb in inacc: accr = lambda ntl, qt: R('a', accA(nb) + 4 * (ntl * 3 + qt), 4)
            else: accr = lambda ntl, qt: R('v', vb[nb] + 4 * (ntl * 3 + qt), 4); live.add(nb)
            if h4 < 2: s.o_tile(T_, lambda ks, qt: R('a', OBa(hh, ks, qt), 4), accr, h4 == 0)
            else:
                w, ib = pwin(sa)
                for ks in range(4):
                    for ntl in range(2):
                        if nb == CORD[0] and h4 == 3 and ks * 2 + ntl == OPT['xb2']: pubx = s.want_bar([])
                        s.add_frag(TP[0], lambda b: [ds_read("ds_read_b64_tr_b16", R('a', b + 2 * hf, 2), f"v{AP[w]+2*hh+ntl}", ib + ks * 4096 + hf * 2048, slot=('P', sa, sa + 1)) for hf in range(2)],
                                   lambda a: [mfma(accr(ntl, qt), a, R('v', Oacc(2 * ks + hh, qt), 4), accr(ntl, qt)) for qt in range(3)], after=('P', 0))
                TP[1].last_use = TP[0].last_use
            if h4 == 3:
                dn = s.g()
                for qt in range(3):
                    c_ = CORD.index(nb)
                    if nb in inacc: ops = s.store_ops(accA(nb) + 4 * qt, accA(nb) + 12 + 4 * qt, V_P + 8 * qt, c_, qt, True)
                    else: ops = s.store_ops(vb[nb] + 4 * qt, vb[nb] + 12 + 4 * qt, None, c_, qt, False)
                    s.pending_st.append((ops, dn + 4, dn + 34, vb.get(nb)))
                if nb in vb: vfree[vb[nb]] = dn + 36; live.discard(nb)
        s.pubA = tbar[seq[-1]]
        first2 = seq[2 * len(rest)]
        pub1 = tbar[first2]; pub2 = pubx
        wd = lambda ks: min(s.bar_req[pub1 if ks < 2 else pub2][0] - LA - 4, tst[first2] + 6 * ks - 3)
        last1 = s.o_finish(1, i1, lambda ks, qt: wd(ks))
        g0 = i1['pv_last'] + 6
        pre1 = s.chain([valu("v_lshlrev_b32", f"v{V_T}", "4", "v0"), salu("s_mul_i32", f"s{S_T1}", f"s{S_W}", "12288"),
                        valu("v_add_u32", f"v{V_T+1}", f"s{S_T1}", f"v{V_T}"), salu("s_xor_b32", f"s{S_T1}", f"s{S_W}", "2"), salu("s_mul_i32", f"s{S_T1}", f"s{S_T1}", "12288"),
                        valu("v_add_u32", f"v{V_T+2}", f"s{S_T1}", f"v{V_T}")], g0, g0 + 8, name="xpre")
        rd_end = tst[first2] + 24 + 18 - 6
        res = [s.fixed(f"XC_{sl}", sl, lambda sl: [], lead=0) for sl in (0, 1, 2)]
        for t in res:
            t.first_need = s.bar_req[i1['bar'][15]][0]; t.last_use = rd_end + 1; t.scratch = i1['bar'][15]; s.issued.add(t.name)
        def mkx():
            bw = s.barfill[i1['bar'][15]]
            for i, (ks, qt) in enumerate(fr):
                bp = s.barfill[pub1 if ks < 2 else pub2]; lf = last1[(ks, qt)]
                op = ds_write("ds_write_b128", f"v{V_T+1}", R('v', Oacc(2 * ks, qt), 4), i * 1024); op.note = (0, 1, 2)
                w_ = s.fill(op, max(lf.earliest, bw.earliest), bp.earliest, want=max(lf.want, bw.earliest) + 0.1 + i * 0.01, after=[lf, pre1, bw], name="xw1")
                bp.after.append(w_)
                op = ds_read("ds_read_b128", R('v', Oacc(2 * ks + 1, qt), 4), f"v{V_T+2}", i * 1024, slot=('X', 100))
                need = tst[first2] + 24 + 6 * ks
                s.xneed[id(op)] = need
                s.fill(op, bp.earliest, need - 6, want=bp.earliest + 1 + (i % 6) * 2, after=[bp], name="xr1")
        s.late.append(mkx)
        NG = len(s.MF)
        if dry: return None
        for gp in OPT.get('at', []): s.forced(stamp_ops(s.nst), gap=gp, name="stamp"); s.nst += 1
        s.tile_bar = {}; s.bars = []; s.barfill = []; prev = -2
        for (need, tiles) in s.bar_req:
            gg = max(need - LA - 1, prev + 1, -1)
            def mk(tiles, fence, stA):
                def f(p):
                    names = [t.name for t in tiles]
                    for t in tiles: assert t.name in s.issued, t.name
                    idx = max((i for i, op in enumerate(p.vm) if op.tag in names), default=-1)
                    if idx >= 0: p.wait_vm_tag(p.vm[idx].tag)
                    if stA: p.wait_vm_tag("stA")
                    if fence:
                        ix = max((i for i, op in enumerate(p.lgkm) if isinstance(op.slot, tuple) and op.slot[0] == 'X'), default=-1)
                        if ix >= 0: p.wait_lgkm(len(p.lgkm) - 1 - ix)
                    p.barrier()
                    if stA:
                        p.emit([valu("v_mov_b32", f"v{V_TA}", "1"), valu("v_mov_b32", f"v{V_TB}", "0"),
                                raw(f"s_cmp_lg_u32 s{S_W}, 0", 'S'), raw("s_cbranch_scc1 L_npa", 'S'), raw("s_mov_b64 exec, 1", 'S'),
                                raw(f"buffer_store_dword v{V_TA}, v{V_TB}, {SWS}, s101 offen sc1", 'S'), raw("s_mov_b64 exec, -1", 'S'), raw("L_npa:", 'X')])
                return f
            fence = any(hasattr(t, 'scratch') and prev < t.last_use <= gg for t in s.tiles)
            fl = Fill([mk(tiles, fence, len(s.barfill) == s.pubA)], gg, gg, want=-10**9, name="bar"); s.FL.append(fl); s.bars.append((gg, fl)); s.barfill.append(fl)
            for t in tiles: s.tile_bar[t.name] = fl
            prev = gg
        for cb in s.late: cb()
        for f in s.FL:
            if f.name == "xw" and f.deadline > s.xb_dead and f.earliest < s.xb_dead: f.deadline = s.xb_dead
        last = None
        for f, fr_ in enumerate(s.frags):
            e = s.frags[f - NFR]['u1'] if f >= NFR else -1
            b = s.tile_bar[fr_['tile'].name]; e = max(e, b.earliest)
            aft = [b, last] + [v for k, v in s.win_after if k == fr_['after']]
            for k, op in enumerate(fr_['reads']):
                last = s.fill(op, e, fr_['u0'] - 1, want=fr_['u0'] - LA + k, after=aft, name="rd"); aft = [last]
        prevf = None; stf = {}
        for (ops, e, d, b) in s.pending_st:
            prevf = s.chain(ops, min(e, NG - 1), min(d, NG - 1), want0=e, step=1.0, after=[prevf], name="st"); stf.setdefault(b, []).append(prevf)
        for (ops, e, d, b) in s.unp:
            aft = [f for f in stf.get(b, []) if f.deadline <= e]
            s.chain(ops, e, d, want0=e, step=1.0, after=aft[-1:], name="unp")
        order_t = sorted(s.tiles, key=lambda t: t.first_need)
        occ = {}; plan = []; floor = (-1, s.bars[0][1])
        for t in order_t:
            pv = occ.get(t.slot); occ[t.slot] = t
            if hasattr(t, 'scratch'):
                assert pv.last_use <= s.barfill[t.scratch].earliest, (t.name, pv.name, pv.last_use, s.barfill[t.scratch].earliest)
            if t.name in s.issued: continue
            lu = pv.last_use if pv else -1
            bg = next(x for x in s.bars if x[0] >= lu)
            if bg[0] < floor[0] and not hasattr(t, 'want_issue'): bg = floor
            if t.name.startswith(("WQ0", "X0")): floor = bg
            ml = next((x for x in s.bars if x[0] >= getattr(t, 'want_issue', t.first_need - OPT['maxlead'])), bg)
            if ml[0] > bg[0] and ml[0] < s.tile_bar[t.name].earliest: bg = ml
            plan.append((int(bg[0]), t.first_need, t, bg[1]))
        plan.sort(key=lambda x: (x[0], (x[2].name[0] not in 'KV') if OPT['hb'] and x[0] > 440 else 0, x[1]))
        lastd = None; cur = 'WQ'
        groups = {}
        for x in plan: groups.setdefault(x[0], []).append(x)
        for (gg, need, t, bf) in plan:
            ops = list(t.ops)
            if t.name.startswith('WO') and cur == 'WQ': ops = set_L_wo() + ops; cur = 'WO'
            assert not (t.name.startswith('WQ') and cur == 'WO')
            same = groups[gg]; k0 = [x[2] for x in same].index(t)
            nextbar = next((x[0] for x in s.bars if x[0] > gg), NG)
            span = max(nextbar - gg - 4, 1); tot = 6 * len(same)
            dl = s.tile_bar[t.name].earliest - 1
            assert dl >= gg, (t.name, dl, gg)
            if OPT.get('verbose'): sys.stderr.write(f"{t.name} slot {t.slot} issue@{gg} pub@{dl+1} lead {dl+1-gg}\n")
            for k, op in enumerate(ops):
                w = gg + 1 + ((k0 * 6 + min(k, 5)) * span) / tot
                if gg < 0: w = -12 + (k0 * 6 + k) * 1.0
                elif OPT['hb'] and span > 60:
                    isH = t.name[0] in 'KV'
                    grp = [x[2] for x in same if (x[2].name[0] in 'KV') == isH]
                    a_, b_ = (OPT['h0'], OPT['h1']) if isH else (OPT['l0'], OPT['l1'])
                    w = gg + a_ + (grp.index(t) * 6 + min(k, 5)) * (b_ - a_) / (6.0 * len(grp)) - OPT['dlate'] * (op.kind == 'D')
                o = [op]
                if k == len(ops) - 1: o = [op, (lambda nm: (lambda p: s.issued.add(nm)))(t.name)]
                lastd = s.fill(o, gg, dl, want=w, after=[bf, lastd], name="dma " + t.name)
        s.weave()
        s.P.emit(stamp_ops(s.nst)); s.nst += 1
        return s.P
    def allocate(s):
        bars = []; pub = {}; prev = -2
        for (need, tiles) in s.bar_req:
            gg = max(need - LA - 1, prev + 1, -1); bars.append(gg); prev = gg
            for t in tiles: pub[t.name] = gg
        for t in s.tiles:
            if hasattr(t, 'scratch'): pub[t.name] = bars[t.scratch] + 0.5
        def nb(x): return next((b for b in bars if b >= x), 10**7)
        tl = sorted(s.tiles, key=lambda t: t.first_need)
        fixed = {}
        for t in tl:
            if t.cands is None: fixed.setdefault(t.slot, []).append(t)
        rel = {sl: -1 for sl in range(10)}; al = {}
        for t in tl:
            if t.cands is None: rel[t.slot] = t.last_use; continue
            best = None
            for sl in t.cands:
                nx = next((f for f in fixed.get(sl, []) if f.first_need > t.first_need), None)
                cost = 0
                if nx:
                    r_ = nb(t.last_use)
                    if r_ >= pub[nx.name]: cost += 10**8
                    cost += 4 * max(0, r_ - min(pub[nx.name] - nx.lead, getattr(nx, 'want_issue', 10**9)))
                ib = nb(rel[sl])
                if ib >= pub[t.name]: cost += 10**9
                cost += max(0, ib - (pub[t.name] - 100))
                key = (cost, ib, sl)
                if best is None or key < best[0]: best = (key, sl)
            assert best[0][0] < 10**8, (t.name, best)
            al[t.name] = best[1]; rel[best[1]] = t.last_use
        return al
    def weave(s):
        P = s.P; mf = s.MF; by_e = {}
        for f in s.FL: by_e.setdefault(max(int(f.earliest), -1), []).append(f)
        act = []; pen = 0
        need_at = dict(s.xneed)
        for fr in s.frags:
            for op in fr['reads']: need_at[id(op)] = fr['u0']
        issue_gap = {}
        HZ = OPT['hz']; DLATE = OPT['dlate']; LLATE = OPT['llate']; WAH = OPT['wah']
        def ready(f): return all(a.done for a in f.after)
        def kind(f): return cat(f.ops[0]) if len([o for o in f.ops if not callable(o)]) == 1 and not callable(f.ops[0]) else 'X'
        def put(f, g):
            P.emit(f.ops); f.done = True; act.remove(f)
            for o in f.ops:
                if not callable(o) and o.kind == 'L': issue_gap[id(o)] = g
        for g in range(-1, len(mf)):
            if g >= 0: P.emit(mf[g])
            act += by_e.get(g, [])
            used = []
            while True:
                fo = [f for f in act if f.deadline <= g]
                if not fo: break
                def pick(f):
                    for a in f.after:
                        if not a.done: return pick(a)
                    return f
                fo.sort(key=lambda f: f.want)
                f = pick(fo[0]); assert f in act, (f.name, f.earliest, g, fo[0].name)
                put(f, g); used.append(kind(f))
            if g >= 0:
                def room(k):
                    if not used: return True
                    if len(used) >= 2 or used[0] in 'EDX': return False
                    return True
                def best(kinds, lim):
                    c = [f for f in act if kind(f) in kinds and f.want <= lim and ready(f)]
                    return min(c, key=lambda f: f.want) if c else None
                def take(f): put(f, g); used.append(kind(f))
                if not used:
                    f = best('L', g) or best('E', g + 10**6) or best('D', g + HZ) or best('L', g + HZ) or best('X', g + HZ)
                    if f: take(f)
                if len(used) == 1 and used[0] == 'L':
                    f = best('D', g - DLATE) or best('L', g - LLATE)
                    if f: take(f); pen += 1
                for _ in range(2):
                    if room('V'):
                        f = best('S', g + 1) or best('VS', g + HZ)
                        if f: take(f)
                full = len(used) >= 2 or (used and used[0] in 'EDX')
                if P.lgkm:
                    nxt = min((need_at.get(id(o), 10**9) for o in P.lgkm), default=10**9)
                    if (not full and nxt - g <= WAH) or nxt <= g + 1:
                        k = 0
                        for o in P.lgkm:
                            if issue_gap.get(id(o), g) <= g - LAT or need_at.get(id(o), 10**9) <= g + 1: k += 1
                            else: break
                        for q_, o in enumerate(P.lgkm):
                            if need_at.get(id(o), 10**9) <= g + 1: k = max(k, q_ + 1)
                        covers = any(need_at.get(id(o), 10**9) == nxt for o in P.lgkm[:k]) and not any(need_at.get(id(o), 10**9) == nxt for o in P.lgkm[k:])
                        if k and covers:
                            P.wait_lgkm(len(P.lgkm) - k)
                            if full: pen += 1
            if len(used) > 2: pen += len(used) - 2
        assert not act, [(f.name, f.earliest, f.deadline) for f in act]
        sys.stderr.write(f"MFMA {len(mf)} instrs {len(P.out)} nops {P.nops} pen {pen} stats {P.stats}\n")

_old_barrier = Prog.barrier
def _barrier(p):
    idx = max((i for i, op in enumerate(p.lgkm) if op.txt.startswith('ds_write')), default=-1)
    if idx >= 0: p.wait_lgkm(len(p.lgkm) - 1 - idx)
    _old_barrier(p)
Prog.barrier = _barrier
_old_emit = Prog.emit
def _emit(p, ins):
    if isinstance(ins, I):
        tgt = []
        if ins.kind == 'D' and ins.slot is not None: tgt = [ins.slot]
        if ins.kind == 'L' and ins.txt.startswith('ds_write') and getattr(ins, 'note', None): tgt = list(ins.note)
        for sl in tgt:
            for u in p.unsafe:
                assert not (u == sl or (isinstance(u, tuple) and sl in u)), f"write into slot {sl} while reads unfenced ({u}): {ins.txt}"
    _old_emit(p, ins)
Prog.emit = _emit

def slow_path():
    P = Prog(); E = P.emit
    E(raw("L_slow:", 'X'))
    E(raw("s_nop 15", 'W')); E(raw("s_waitcnt vmcnt(0) lgkmcnt(0)", 'W'))
    SS = V_S; KF = V_S + 12; NMX = V_S + 28; ta, tv = V_S + 40, V_S + 41
    MX = Preg(1, 0); PB = Preg(1, 0) + 6
    E(salu("s_lshl_b32", "s50", f"s{S_HD}", "17")); E(salu("s_add_u32", "s48", "s48", "s50"))
    E(valu("v_and_b32", f"v{tv}", "15", "v0")); E(valu("v_lshlrev_b32", f"v{ta}", "8", f"v{tv}"))
    E(valu("v_lshrrev_b32", f"v{KF}", "4", "v0")); E(valu("v_lshl_add_u32", f"v{ta}", f"v{KF}", "4", f"v{ta}"))
    E(valu("v_lshlrev_b32", f"v{tv}", "1", f"v{tv}")); E(valu("v_lshl_add_u32", f"v{tv}", f"v{KF}", "10", f"v{tv}"))
    for qt in range(3): E(valu("v_mov_b32", f"v{MX+2*qt}", "0xff7fffff"))
    def scores(c):
        for ks in range(4):
            E(raw(f"buffer_load_dwordx4 v[{KF+4*ks}:{KF+4*ks+3}], v{ta}, {SK}, s49 offen offset:{64*ks}", 'D', rd=[f"v{ta}"], wr=[f"v[{KF+4*ks}:{KF+4*ks+3}]"]))
        for ks in range(4):
            for qt in range(3):
                E(mfma(R('v', SS + 4 * qt, 4), R('v', KF + 4 * ks, 4), QF(ks, qt), c(qt) if ks == 0 else R('v', SS + 4 * qt, 4)))
    def loop_end(lab):
        E(raw("s_nop 15", 'W')); E(raw("s_waitcnt vmcnt(0) lgkmcnt(0)", 'W')); P.vm = []; P.lgkm = []
        E(salu("s_add_u32", "s49", "s49", "4096")); E(salu("s_add_u32", "s51", "s51", "1"))
        E(raw("s_cmp_lt_u32 s51, 32", 'S')); E(raw(f"s_cbranch_scc1 {lab}", 'S'))
    E(salu("s_mov_b32", "s49", "s48")); E(salu("s_mov_b32", "s51", "0"))
    E(raw("L_sl1:", 'X'))
    scores(lambda qt: "0")
    for qt in range(3):
        x = SS + 4 * qt
        E(valu("v_max3_f32", f"v{MX+2*qt}", f"v{MX+2*qt}", f"v{x}", f"v{x+1}")); E(valu("v_max3_f32", f"v{MX+2*qt}", f"v{MX+2*qt}", f"v{x+2}", f"v{x+3}"))
    loop_end("L_sl1")
    for qt in range(3):
        a, b = f"v{MX+2*qt}", f"v{MX+2*qt+1}"
        E(valu("v_mov_b32", b, a)); E(valu("v_permlane16_swap_b32", a, b)); E(valu("v_max_f32", a, a, b))
        E(valu("v_mov_b32", b, a)); E(valu("v_permlane32_swap_b32", a, b)); E(valu("v_max_f32", a, a, b))
        for k in range(4): E(valu("v_sub_f32", f"v{NMX+4*qt+k}", "0", a))
    for k in range(96): E(valu("v_mov_b32", f"v{V_O+k}", "0"))
    for k in range(12): E(valu("v_accvgpr_write_b32", f"a{A_L+k}", "0"))
    E(salu("s_mov_b32", "s49", "s48")); E(salu("s_mov_b32", "s51", "0"))
    E(raw("L_sl2:", 'X'))
    scores(lambda qt: R('v', NMX + 4 * qt, 4))
    for k in range(12): E(valu("v_exp_f32", f"v{SS+k}", f"v{SS+k}"))
    for qt in range(3):
        for h in range(2): E(valu("v_cvt_pk_bf16_f32", f"v{PB+2*qt+h}", f"v{SS+4*qt+2*h}", f"v{SS+4*qt+2*h+1}"))
    E(raw("s_nop 7", 'W'))
    M16 = "v_mfma_f32_16x16x16_bf16"
    for qt in range(3): E(mfma(R('a', A_L + 4 * qt, 4), R('a', A_ONE, 2), R('v', PB + 2 * qt, 2), R('a', A_L + 4 * qt, 4), op=M16))
    for dh in range(2):
        for d4 in range(4):
            for h in range(2):
                for half in range(2):
                    E(raw(f"buffer_load_ushort v{KF+8*half+2*d4+h}, v{tv}, {SV}, s49 offen offset:{(2*h+half)*256+32*(4*dh+d4)}", 'D', rd=[f"v{tv}"], wr=[f"v{KF+8*half+2*d4+h}"]))
        for k in range(8): E(valu("v_lshl_or_b32", f"v{KF+k}", f"v{KF+8+k}", "16", f"v{KF+k}"))
        for d4 in range(4):
            for qt in range(3): E(mfma(R('v', Oacc(4 * dh + d4, qt), 4), R('v', KF + 2 * d4, 2), R('v', PB + 2 * qt, 2), R('v', Oacc(4 * dh + d4, qt), 4), op=M16))
        E(raw("s_nop 7", 'W'))
    loop_end("L_sl2")
    for k in range(12): E(valu("v_mov_b32", f"v{Preg(1,0)+k}", "0"))
    for qt in range(3): E(valu("v_accvgpr_read_b32", f"v{RL[qt]}", f"a{A_L+4*qt}"))
    E(raw("s_nop 7", 'W'))
    E(raw(f"s_setpc_b64 {S_RET}", 'S'))
    return P

def final(nst, CORD):
    P = Prog(); E = P.emit
    LDF = " sc1"
    E(raw("L_final:", 'X'))
    E(valu("v_min_u32", "v26", "7", "v0")); E(valu("v_lshlrev_b32", "v26", "3", "v26")); E(salu("s_mov_b32", "s61", lit(8 * 108 * 1024)))
    PL = f"buffer_load_dwordx2 v[4:5], v26, {SWS}, s99 offen sc1"
    E(salu("s_mov_b32", "s99", lit(8 * 108 * 1024)))
    E(valu("v_lshlrev_b32", "v2", "4", "v0"))
    E(salu("s_lshl_b32", "s52", "s46", "2")); E(salu("s_add_u32", "s52", "s52", f"s{S_W}"))
    E(salu("s_mov_b32", "s64", "s68")); E(salu("s_and_b32", "s65", "s69", "0xffff")); E(salu("s_mov_b32", "s66", lit(16 * 96 * 1152 * 2))); E(salu("s_mov_b32", "s67", "0x20000"))
    E(valu("v_and_b32", "v6", "15", "v0")); E(valu("v_mul_u32_u24", "v6", "2304", "v6"))
    E(valu("v_lshrrev_b32", "v7", "4", "v0")); E(valu("v_lshl_add_u32", "v6", "v7", "3", "v6"))
    E(valu("v_mov_b32", "v24", "0x3f80")); E(valu("v_mov_b32", "v25", "0x3f800000"))
    tab = sum(p << (4 * c) for c, p in enumerate(CORD))
    E(salu("s_mov_b32", "s62", lit(tab & 0xffffffff))); E(salu("s_mov_b32", "s63", lit(tab >> 32)))
    E(salu("s_mul_i32", "s60", "s44", str(96 * 2304))); E(salu("s_mul_i32", "s61", "s42", "1152")); E(salu("s_add_u32", "s60", "s60", "s61"))
    for k in range(4):
        E(salu("s_add_u32", "s53", "s52", str(32 * k)))
        E(salu("s_mul_hi_u32", "s54", "s53", str((2**32 + 11) // 12)))
        E(salu("s_mul_i32", "s55", "s54", "12")); E(salu("s_sub_u32", "s55", "s53", "s55"))
        E(salu("s_lshl_b32", "s54", "s54", "2")); E(raw("s_lshr_b64 s[36:37], s[62:63], s54", 'S', wr=["s[36:37]"])); E(salu("s_and_b32", "s36", "s36", "15"))
        E(salu("s_lshl_b32", "s36", "s36", "7")); E(salu("s_add_u32", "s36", "s36", "s41")); E(salu("s_sub_u32", "s37", "s36", "1152")); E(salu("s_min_u32", "s36", "s36", "s37"))
        E(raw("s_cmp_ge_u32 s55, 6", 'S')); E(raw("s_cselect_b32 s37, 64, 0", 'S', wr=["s37"])); E(raw("s_cselect_b32 s54, 6, 0", 'S', wr=["s54"]))
        E(salu("s_sub_u32", "s55", "s55", "s54")); E(salu("s_mul_i32", "s55", "s55", str(16 * 2304)))
        E(salu("s_add_u32", "s55", "s55", "s36")); E(salu("s_add_u32", "s55", "s55", "s37")); E(salu("s_add_u32", f"s{56+k}", "s55", "s60"))
        if k == 3: E(raw("s_cmp_lt_u32 s52, 12", 'S')); E(raw("s_cselect_b32 s59, s59, 0x70000000", 'S', wr=["s59"]))
    E(raw("s_waitcnt vmcnt(0) lgkmcnt(0)", 'W'))
    E(stamp_ops(nst)); nst += 1
    E(raw(f"s_cmp_lg_u32 s{S_W}, 0", 'S')); E(raw("s_cbranch_scc1 L_hok", 'S'))
    E(salu("s_mov_b32", "s48", "s70")); E(salu("s_and_b32", "s49", "s71", "0xffff")); E(salu("s_mov_b32", "s50", "256")); E(salu("s_mov_b32", "s51", "0x20000"))
    E(salu("s_lshl_b32", "s55", "s40", "3")); E(salu("s_mov_b32", "s53", "0"))
    E(raw("L_hp:", 'X'))
    E(raw(f"v_readfirstlane_b32 s54, v{V_H+7}", 'V')); E(raw("s_add_u32 s53, s53, 1", 'S')); E(raw("s_nop 1", 'W'))
    E(raw("s_cmp_ge_u32 s54, 8", 'S')); E(raw("s_cbranch_scc1 L_hok", 'S'))
    E(raw("s_sleep 16", 'S'))
    E(raw(f"buffer_load_dword v{V_H+7}, v{V_TB}, s[48:51], s55 offen sc1", 'D')); E(raw("s_waitcnt vmcnt(0)", 'W'))
    E(raw("s_cmp_lt_u32 s53, 0x400000", 'S')); E(raw("s_cbranch_scc1 L_hp", 'S'))
    E(raw("L_hok:", 'X'))
    E(raw("s_barrier", 'B'))
    E(raw(f"s_cmp_lg_u32 s{S_W}, 0", 'S')); E(raw("s_cbranch_scc1 L_npb", 'S'))
    E(raw("s_mov_b64 exec, 1", 'S'))
    E(raw(f"buffer_store_dword v{V_TA}, v{V_TB}, {SWS}, s101 offen offset:4 sc1", 'D'))
    E(raw("s_mov_b64 exec, -1", 'S'))
    E(raw("L_npb:", 'X'))
    def poll(reg, tag, first):
        E(salu("s_mov_b32", "s53", "0"))
        if first: E(raw(f"s_branch L_pl{tag}", 'S'))
        E(raw(f"L_poll{tag}:", 'X'))
        E(raw(f"v_cmp_eq_u32 vcc, 1, v{reg}", 'V')); E(raw("s_add_u32 s53, s53, 1", 'S')); E(raw("s_nop 1", 'W'))
        E(raw("s_cmp_eq_u64 vcc, -1", 'S')); E(raw(f"s_cbranch_scc1 L_pd{tag}", 'S'))
        if OPT['psleep']: E(raw(f"s_sleep {OPT['psleep']}", 'S'))
        E(raw(f"L_pl{tag}:", 'X'))
        E(raw(PL, 'D')); E(raw("s_waitcnt vmcnt(0)", 'W'))
        E(raw("s_cmp_lt_u32 s53, 0x400000", 'S')); E(raw(f"s_cbranch_scc1 L_poll{tag}", 'S'))
        E(raw(f"L_pd{tag}:", 'X'))
        P.vm = []
    def loads(k):
        E(salu("s_add_u32", "s53", "s52", str(32 * k))); E(salu("s_lshl_b32", "s53", "s53", "10"))
        if k == 3: E(raw("s_cmp_lt_u32 s52, 12", 'S')); E(raw("s_cselect_b32 s53, s53, 0x70000000", 'S', wr=["s53"]))
        for j in range(8):
            d = 32 + 32 * k + 4 * j
            E(raw(f"buffer_load_dwordx4 v[{d}:{d+3}], v2, {SWS}, s53 offen" + LDF, 'D', rd=["v2", "s53"], wr=[f"v[{d}:{d+3}]"]))
            if j < 7: E(salu("s_add_u32", "s53", "s53", str(108 * 1024)))
    def red(k):
        acc = 8
        for j in range(8):
            d = 32 + 32 * k + 4 * j
            for c in range(4):
                E(valu("v_dot2_f32_bf16", f"v{acc+2*c}", f"v{d+c}", "v24", "0" if j == 0 else f"v{acc+2*c}"))
                E(valu("v_dot2_f32_bf16", f"v{acc+2*c+1}", f"v{d+c}", "v25", "0" if j == 0 else f"v{acc+2*c+1}"))
        E(raw("s_nop 2", 'W'))
        o = 16 + 4 * (k & 1)
        for c in range(4): E(valu("v_cvt_pk_bf16_f32", f"v{o+c}", f"v{acc+2*c}", f"v{acc+2*c+1}"))
        E(raw(f"buffer_store_dwordx2 v[{o}:{o+1}], v6, s[64:67], s{56+k} offen", 'D', rd=[f"v[{o}:{o+1}]"]))
        E(raw(f"buffer_store_dwordx2 v[{o+2}:{o+3}], v6, s[64:67], s{56+k} offen offset:32", 'D', rd=[f"v[{o+2}:{o+3}]"]))
        E(raw("s_nop 2", 'W'))
    poll(4, "A", True)
    loads(0); loads(1)
    E(raw(PL, 'D', wr=["v[4:5]"]))
    red(0); red(1)
    E(raw("s_waitcnt vmcnt(4)", 'W'))
    poll(5, "B", False)
    E(stamp_ops(nst)); nst += 1
    loads(2); loads(3)
    red(2); red(3)
    if OPT['stamp']:
        E(raw("s_waitcnt vmcnt(0)", 'W'))
        E(stamp_ops(nst)); nst += 1
        E(salu("s_lshl_b32", "s40", "s2", "2")); E(salu("s_add_u32", "s40", "s40", f"s{S_W}")); E(salu("s_lshl_b32", "s40", "s40", "7"))
        E(salu("s_add_u32", "s40", "s40", hex(64 << 20)))
        E(salu("s_add_u32", "s72", "s72", "s40")); E(salu("s_addc_u32", "s73", "s73", "0"))
        E(valu("v_mov_b32", "v1", "0"))
        for k in range(nst):
            E(valu("v_mov_b32", "v2", f"s{78+k}")); E(valu("v_mov_b32", "v3", f"s{89+k}"))
            E(raw(f"global_store_dword v1, v2, s[72:73] offset:{4*k}", 'D', rd=['v1', 'v2']))
            E(raw(f"global_store_dword v1, v3, s[72:73] offset:{64+4*k}", 'D', rd=['v1', 'v3'])); E(raw("s_nop 1", 'W'))
        sys.stderr.write(f"stamps {nst}\n")
    E(raw("s_endpgm", 'X'))
    return P


d = Build({}); d.build(dry=True); al = d.allocate()
b = Build(al); P = b.build()
parts = [P0.text(), P.text(), final(b.nst, b.CORD).text()]
if OPT['slow']: parts.append(slow_path().text())
parts.append("L_end0:\ns_endpgm\nL_codeend:")
body = "\n".join(parts)

import re
MAC = """.macro mf d,a,b,c
v_mfma_f32_16x16x32_bf16 \\d,\\a,\\b,\\c
.endm
.macro tr d,a,o
ds_read_b64_tr_b16 \\d,\\a offset:\\o
.endm
.macro rq d,a,o
ds_read_b128 \\d,\\a offset:\\o
.endm
.macro dn v,r,s,o
buffer_load_dwordx4 \\v,\\r,\\s offen offset:\\o nt lds
.endm
.macro dl v,r,s,o
buffer_load_dwordx4 \\v,\\r,\\s offen offset:\\o lds
.endm
.macro wl n
s_waitcnt lgkmcnt(\\n)
.endm
.macro cv d,a,b
v_cvt_pk_bf16_f32 \\d,\\a,\\b
.endm
.macro ex d
v_exp_f32 \\d,\\d
.endm
"""
def compact(l):
    if l.startswith("v_mfma_f32_16x16x32_bf16 "): return "mf " + l[25:].replace(", ", ",")
    m = re.fullmatch(r"ds_read_b64_tr_b16 (\S+), (\S+) offset:(\d+)", l)
    if m: return f"tr {m.group(1)},{m.group(2)},{m.group(3)}"
    m = re.fullmatch(r"ds_read_b128 (\S+), (\S+) offset:(\d+)", l)
    if m: return f"rq {m.group(1)},{m.group(2)},{m.group(3)}"
    m = re.fullmatch(r"buffer_load_dwordx4 (\S+), (\S+), (\S+) offen offset:(\d+) (nt )?lds", l)
    if m: return f"{'dn' if m.group(5) else 'dl'} {m.group(1)},{m.group(2)},{m.group(3)},{m.group(4)}"
    m = re.fullmatch(r"s_waitcnt lgkmcnt\((\d+)\)", l)
    if m: return f"wl {m.group(1)}"
    m = re.fullmatch(r"v_cvt_pk_bf16_f32 (\S+), (\S+), (\S+)", l)
    if m: return f"cv {m.group(1)},{m.group(2)},{m.group(3)}"
    m = re.fullmatch(r"v_exp_f32 (\S+), (\S+)", l)
    if m and m.group(1) == m.group(2): return f"ex {m.group(1)}"
    return l
if OPT.get('compact', 1): body = "\n".join(compact(l) for l in body.split("\n"))
else: MAC = ""

def kd(name, vg, acc):
    return f""".amdhsa_kernel {name}
  .amdhsa_next_free_vgpr {vg}
  .amdhsa_next_free_sgpr 102
  .amdhsa_accum_offset {acc}
  .amdhsa_group_segment_fixed_size 0
  .amdhsa_kernarg_size 104
  .amdhsa_user_sgpr_count 2
  .amdhsa_user_sgpr_kernarg_segment_ptr 1
  .amdhsa_system_sgpr_workgroup_id_x 1
.end_amdhsa_kernel
"""
txt = f"""; generated by gen/gen5.py (hand-written generator; fused Qproj + attention + Oproj + in-kernel reduction)
; @launch grid=(256,1,1) block=(256,1,1) lds=163840
.amdgcn_target "amdgcn-amd-amdhsa--gfx950"
{MAC}.text
.globl {NAME}_kernel
.p2align 8
.type {NAME}_kernel,@function
{NAME}_kernel:
""" + body + '\n.section .rodata,"a"\n.p2align 6\n' + kd(NAME + "_kernel", 512, 256)
open(sys.argv[1], "w").write(txt)
```

```python
import sys, math, struct, re
from asmlib import *

NAME = "concat_heads__mha_block_cached__mha_block_cached__near_ridge"
OPT = dict(LA=13, LAT=7, dlate=8, llate=3, wah=4, hz=5, nt_kv=1, stamp=0, cpf=1, fake=0, slow=1, forceslow=0, compact=1, rot=1, psleep=8,
           leadh=110, pfsc=1, q0t=0, q0tw=4, q0tx=9, pf2=1, pfa=12, pfb=8, pfc=8, up=0, krot=1, plead=70, ptb=1, xb2=3, nost=0, puba=2, ntt=0, ntw0=0, cpf2=0, cps=10, ntq0=0, pfw=0, pft0=6, pfd=2, early=3, e0=150, estep=48, pft=0, pfs=10, ntx=0, npl0=3, npl1=0, hb=0, h0=1, h1=30, l0=45, l1=62, stf=1, ldf=1, wb=0, maxlead=260, o0start=2)
for a in sys.argv[2:]:
    k, v = a.split('='); OPT[k] = int(v) if k != 'at' else [int(x) for x in v.split(',')]
LA, LAT = OPT['LA'], OPT['LAT']

V_TA, V_AO0, V_TB = 1, 2, 3
V_PFD = 'PFD'
V_AK, V_AV = 4, 8
V_KA, V_KB, V_VA, V_VB = 16, 17, 18, 19
V_L = 20; V_WO0 = 24; V_T = 25
V_QF = 28; V_O = 76; V_S = 172; V_P = 220; V_NM = 244; V_H = 248
A_L = 216; A_ONE = 228; A_FR = 232; NFR = 6
def QFr(ks, qt): return V_QF + 4 * (ks * 3 + qt)
def QF(ks, qt): return R('v', QFr(ks, qt), 4)
def Oacc(dt, qt): return V_O + 4 * (dt * 3 + qt)
def Sreg(buf, t, qt): return V_S + 24 * buf + 4 * (t * 3 + qt)
def Preg(buf, qt): return V_P + 12 * buf + 4 * qt
NMR = R('v', V_NM, 4)
RL = [V_NM, V_NM + 2, V_H + 6]
def XFr(p, qt): return 12 * p + 4 * qt
def QaccQS(dt, qt): return QFr(dt >> 1, qt) if dt % 2 == 0 else (V_S + 4 * ((dt >> 1) * 3 + qt))
OBA = [96 + 4 * i for i in range(18)] + [192 + 4 * i for i in range(6)]
def OBa(hh, ks, qt): return OBA[(hh * 4 + ks) * 3 + qt]
ACCB = [0, 24]
PARK = [48, 60, 72, 84, 168, 180]
S_W, S_W4K, S_W3K = 3, 4, 5
SK, SV, SWQ, SWO, SX, SWS = 's[8:11]', 's[12:15]', 's[16:19]', 's[20:23]', 's[24:27]', 's[28:31]'
S_OFF, S_C, S_T0, S_T1, S_HD, S_QH, S_ST = 32, 34, 36, 37, 38, 39, 33
S_RET = 's[6:7]'
SLOT = 16384
KPW = [52 + p for p in range(9)]
KPX = [61, 62, 63, 64, 65, 66, 67, 43, 45]
def lit(x): return hex(x & 0xffffffff)
cval = struct.unpack('<I', struct.pack('<f', math.log2(math.e) / math.sqrt(128.0)))[0]
NT = "nt" if OPT['nt_kv'] else ""
def win(slot): return (2, (slot - 6) * SLOT) if slot >= 6 else ((1, (slot - 3) * SLOT) if slot >= 3 else (0, slot * SLOT))
WBASE = [0, 3 * SLOT, 6 * SLOT]
AW = {2: V_H, 1: V_P}
AX = {2: V_H + 4, 0: V_P + 4}
AO = {2: V_H, 1: V_H + 2, 0: V_H + 4}

class Tile:
    def __init__(s, name, slot, ops, cands=None, lead=None):
        s.name = name; s.slot = slot; s.ops = ops; s.cands = cands; s.lead = lead
        s.last_use = None; s.first_need = None
def touch(v, srd, so, off=0): return raw(f"buffer_load_dword v{V_H+7}, {v}, {srd}, {so} offen offset:{off}" + (" sc1 nt" if OPT['pfsc'] else " nt"), 'D', rd=[v, srd, so], wr=[], tag="pf")
def x_ops(n, i, slot):
    return ([touch(f"v{V_TA}", SX, f"s{KPX[i]}")] if OPT['q0t'] and n.startswith("X0") and i < OPT['q0tx'] else []) + [salu("s_add_u32", "m0", f"s{S_W3K}", lit(slot * SLOT))] + [dma(f"v{V_T+j}", SX, f"s{KPX[i]}", 1024 * j, "nt" if (OPT['ntx'] or (OPT['ntq0'] and n.startswith("X0"))) else "", tag=n, slot=slot) for j in range(3)]
def w_ops(srd, n, sreg, off, slot):
    ops = [salu("s_add_u32", "m0", f"s{S_W4K}", lit(slot * SLOT))]; so = f"s{sreg}"
    if off: ops.append(salu("s_add_u32", f"s{S_OFF}", so, lit(off))); so = f"s{S_OFF}"
    if OPT['q0t'] and n.startswith("WQ0") and int(n[4:]) < OPT['q0tw']: ops.append(touch(f"v{V_TB}", srd, so))
    return ops + [dma(f"v{V_L+j}", srd, so, 1024 * j, "nt" if (((OPT['ntq0'] or OPT['ntw0']) and n.startswith("WQ0")) or (OPT['ntt'] and n.startswith(("WO2", "WO3")))) else "", tag=n, slot=slot) for j in range(4)]
def wq_ops(r, p, slot): return w_ops(SWQ, f"WQ{r}_{p}", KPW[p >> 1], (p & 1) * 262144 + r * 512, slot)
def wo_ops(h4, nb, slot): return w_ops(SWO, f"WO{h4}_{nb}", KPW[nb], h4 * 128 * 1152, slot)
def kv_ops(kind, r, n_, slot):
    n = f"{kind}{r}_{n_}"
    va, vb, srd = (V_KA, V_KB, SK) if kind == 'K' else (V_VA, V_VB, SV)
    ops = [salu("s_add_u32", "m0", f"s{S_W4K}", lit(slot * SLOT)), salu("s_mov_b32", f"s{S_OFF}", lit((n_ & 1) * 8192 if OPT['fake'] in (1, 2) else r * 262144 + n_ * 8192))]
    if OPT['krot'] and OPT['fake'] not in (1, 2):
        ops = ops[:1] + [salu("s_add_u32", f"s{S_OFF}", "s98", lit(n_ * 8192)), salu("s_and_b32", f"s{S_OFF}", f"s{S_OFF}", "0x1ffff")]
        if r == 1 and n_ == 0: ops = [valu("v_add_u32", f"v{va}", "0x40000", f"v{va}"), valu("v_add_u32", f"v{vb}", "0x40000", f"v{vb}")] + ops
    return ops + [dma(f"v{va}", srd, f"s{S_OFF}", 0, NT, tag=n, slot=slot), dma(f"v{va}", srd, f"s{S_OFF}", 1024, NT, tag=n, slot=slot),
                  dma(f"v{vb}", srd, f"s{S_OFF}", 2048, NT, tag=n, slot=slot), dma(f"v{vb}", srd, f"s{S_OFF}", 3072, NT, tag=n, slot=slot)]
def set_L_wo():
    ops = [valu("v_mov_b32", f"v{V_L}", f"v{V_WO0}")] + [valu("v_add_u32", f"v{V_L+j}", str(8192 * j), f"v{V_WO0}") for j in (1, 2, 3)]
    for p in range(9):
        if OPT['fake'] > 1: ops.append(salu("s_mov_b32", f"s{KPW[p]}", str((p & 1) * 128))); continue
        ops.append(raw(f"s_add_u32 s{KPW[p]}, s41, {128*p}\ns_sub_u32 s{S_OFF}, s{KPW[p]}, 1152\ns_min_u32 s{KPW[p]}, s{KPW[p]}, s{S_OFF}", 'X', rd=["s41"], wr=[f"s{KPW[p]}", f"s{S_OFF}"]))
    return ops
def set_addr_o(w):
    return [valu("v_add_u32", f"v{AO[w]}", lit(WBASE[w]), f"v{V_AO0}"), valu("v_xor_b32", f"v{AO[w]+1}", "32", f"v{AO[w]}")]
def stamp_ops(k):
    if not OPT['stamp']: return []
    return [lambda p: p.wait_lgkm(0), raw("s_memrealtime s[74:75]", 'S'), raw("s_memtime s[76:77]", 'S'), raw("s_waitcnt lgkmcnt(0)", 'W'),
            raw(f"s_mov_b32 s{78+k}, s74", 'S'), raw(f"s_mov_b32 s{89+k}, s76", 'S')]
PRE = {"X0_0": 0, "WQ0_0": 6, "WQ0_1": 7, "X0_1": 1}
if OPT['up'] >= 3: PRE.update({"WQ0_2": 3, "WQ0_3": 4})

P0 = Prog(); E = P0.emit
E(raw("s_cmp_ge_u32 s2, 256", 'S')); E(raw("s_cbranch_scc1 L_end0", 'S'))
E(raw("s_load_dwordx16 s[80:95], s[0:1], 0", 'S'))
E(raw("s_load_dwordx4 s[96:99], s[0:1], 64", 'S'))
E(raw("s_load_dwordx4 s[68:71], s[0:1], 80", 'S'))
E(raw("s_load_dwordx2 s[72:73], s[0:1], 96", 'S'))
if OPT['stamp']: E(raw("s_memrealtime s[74:75]", 'S')); E(raw("s_memtime s[76:77]", 'S'))
E(valu("v_lshrrev_b32", "v1", "6", "v0")); E(valu("v_and_b32", "v0", "63", "v0"))
E(valu("v_readfirstlane_b32", f"s{S_W}", "v1"))
E(salu("s_and_b32", "s40", "s2", "7")); E(salu("s_lshr_b32", "s41", "s2", "3"))
E(salu("s_lshr_b32", "s42", "s40", "2")); E(salu("s_and_b32", "s43", "s40", "3"))
E(salu("s_lshr_b32", "s44", "s41", "1")); E(salu("s_and_b32", "s45", "s41", "1"))
E(salu("s_lshl_b32", "s46", "s43", "1")); E(salu("s_add_u32", "s46", "s46", "s45"))
E(salu("s_mul_i32", "s48", "s45", "5")); E(salu("s_add_u32", "s48", "s48", "s44"))
for _ in range(2):
    E(salu("s_sub_u32", "s49", "s48", "9")); E(raw("s_cmp_ge_u32 s48, 9", 'S')); E(raw("s_cselect_b32 s48, s49, s48", 'S', wr=["s48"]))
if not OPT['rot'] or OPT['fake'] > 1: E(salu("s_mov_b32", "s48", "0"))
E(salu("s_lshl_b32", f"s{KPW[0]}", "s48", "19")); E(salu("s_lshl_b32", f"s{KPX[0]}", "s48", "7"))
E(salu("s_lshl_b32", f"s{S_W4K}", f"s{S_W}", "12")); E(salu("s_mul_i32", f"s{S_W3K}", f"s{S_W}", "3072"))
T = V_S
i16, g4, r4, c4, i5, t0, t1, t2 = (f"v{T+k}" for k in range(8))
E(valu("v_lshrrev_b32", i5, "5", "v0")); E(valu("v_and_b32", t2, "7", "v0"))
E(salu("s_mul_i32", f"s{S_T0}", f"s{S_W}", "24"))
for j in range(3):
    E(valu("v_lshrrev_b32", t0, "3", "v0")); E(valu("v_add3_u32", t0, t0, f"s{S_T0}", str(8 * j)))
    E(valu("v_bfe_u32", t1, t0, "1", "3")); E(valu("v_xor_b32", t1, t1, t2))
    E(valu("v_mul_u32_u24", t0, "1152", t0)); E(valu("v_lshl_add_u32", f"v{V_T+j}", t1, "4", t0))
    if j: E(valu("v_subrev_u32", f"v{V_T+j}", str(1024 * j), f"v{V_T+j}"))
E(salu("s_lshl_b32", f"s{S_T0}", f"s{S_W}", "3"))
E(valu("v_add_u32", t0, f"s{S_T0}", i5)); E(valu("v_lshlrev_b32", t0, "13", t0))
E(valu("v_and_b32", t1, "31", "v0")); E(valu("v_lshlrev_b32", t2, "2", i5)); E(valu("v_xor_b32", t1, t1, t2))
E(valu("v_lshl_add_u32", f"v{V_L}", t1, "4", t0))
E(valu("v_xor_b32", f"v{V_L+1}", "0x80", f"v{V_L}")); E(valu("v_add_u32", f"v{V_L+2}", str(2 * 15360), f"v{V_L}"))
E(valu("v_add_u32", f"v{V_L+3}", str(3 * 15360), f"v{V_L+1}")); E(valu("v_add_u32", f"v{V_L+1}", str(15360), f"v{V_L+1}"))
if OPT['q0t']:
    E(valu("v_min_u32", t0, "23", "v0")); E(salu("s_mul_i32", f"s{S_T1}", f"s{S_W}", "24")); E(valu("v_add_u32", t0, f"s{S_T1}", t0)); E(valu("v_mul_u32_u24", f"v{V_TA}", "1152", t0))
    E(valu("v_bfe_u32", t0, "v0", "2", "3")); E(valu("v_add_u32", t0, f"s{S_T0}", t0)); E(valu("v_lshlrev_b32", t0, "13", t0))
    E(valu("v_and_b32", t1, "3", "v0")); E(valu("v_lshl_add_u32", f"v{V_TB}", t1, "7", t0))
E(salu("s_mul_i32", f"s{S_T0}", "s44", "110592")); E(salu("s_lshl_b32", f"s{S_T1}", "s46", "10"))
E(salu("s_mov_b32", "s26", lit(110592))); E(salu("s_mov_b32", "s27", "0x20000"))
E(salu("s_sub_u32", "s18", lit(576 * 8192), f"s{S_T1}")); E(salu("s_mov_b32", "s19", "0x20000"))
E(raw("s_waitcnt lgkmcnt(0)", 'W'))
E(raw("s_cmp_eq_u32 s42, 0", 'S'))
for (d, a, b) in [(24, 80, 90), (16, 86, 96), (8, 82, 92), (12, 84, 94), (20, 88, 98)]:
    E(raw(f"s_cselect_b64 s[{d}:{d+1}], s[{a}:{a+1}], s[{b}:{b+1}]", 'S', wr=[f"s[{d}:{d+1}]"]))
if OPT['stamp']: E(raw("s_mov_b32 s78, s74", 'S')); E(raw("s_mov_b32 s89, s76", 'S'))
def srd_base(E, d, off_s):
    E(salu("s_add_u32", f"s{d}", f"s{d}", off_s)); E(salu("s_addc_u32", f"s{d+1}", f"s{d+1}", "0")); E(salu("s_and_b32", f"s{d+1}", f"s{d+1}", "0xffff"))
def srd_finish(E, d, off_s, size):
    srd_base(E, d, off_s); E(salu("s_mov_b32", f"s{d+2}", lit(size))); E(salu("s_mov_b32", f"s{d+3}", "0x20000"))
srd_base(E, 24, f"s{S_T0}"); E(x_ops("X0_0", 0, PRE["X0_0"]))
srd_base(E, 16, f"s{S_T1}"); E(wq_ops(0, 0, PRE["WQ0_0"]))
if OPT['up'] >= 1: E(wq_ops(0, 1, PRE["WQ0_1"]))
if OPT['up'] >= 2:
    E(salu("s_add_u32", f"s{KPX[1]}", f"s{KPX[0]}", "128")); E(salu("s_sub_u32", "s49", f"s{KPX[1]}", "1152")); E(salu("s_min_u32", f"s{KPX[1]}", f"s{KPX[1]}", "s49"))
    E(x_ops("X0_1", 1, PRE["X0_1"]))
if OPT['cpf']:
    E(raw("s_getpc_b64 s[28:29]", 'S', wr=["s[28:29]"])); E(raw("L_pc0:", 'X'))
    E(salu("s_and_b32", "s29", "s29", "0xffff")); E(raw("s_mov_b32 s30, L_codeend-L_pc0", 'S', wr=["s30"])); E(salu("s_mov_b32", "s31", "0x20000"))
    E(salu("s_lshl_b32", "s47", "s41", "2")); E(salu("s_add_u32", "s47", "s47", f"s{S_W}")); E(salu("s_mul_i32", "s47", "s47", "640"))
    E(valu("v_min_u32", "v2", "4", "v0")); E(valu("v_lshlrev_b32", "v2", "7", "v2"))
    E(raw(f"buffer_load_dword v{V_NM+2}, v2, s[28:31], s47 offen", 'D', rd=["v2", "s[28:31]", "s47"], wr=[f"v{V_NM+2}"], tag="pf"))
E(salu("s_lshr_b32", f"s{S_HD}", f"s{S_W}", "1")); E(salu("s_and_b32", f"s{S_QH}", f"s{S_W}", "1"))
E(salu("s_sub_u32", "s49", "s44", "9")); E(salu("s_min_u32", "s41", "s44", "s49")); E(salu("s_lshl_b32", "s41", "s41", "7"))
if not OPT['rot']: E(salu("s_mov_b32", "s41", "0"))
for p in range(1, 9):
    if OPT['fake'] > 1: E(salu("s_mov_b32", "s48", str(p & 1)))
    else:
        E(salu("s_add_u32", "s48", "s48", "1")); E(raw("s_cmp_eq_u32 s48, 9", 'S')); E(raw("s_cselect_b32 s48, 0, s48", 'S', wr=["s48"]))
    E(salu("s_lshl_b32", f"s{KPW[p]}", "s48", "19")); E(salu("s_lshl_b32", f"s{KPX[p]}", "s48", "7"))
E(valu("v_and_b32", i16, "15", "v0")); E(valu("v_lshrrev_b32", g4, "4", "v0"))
E(valu("v_bfe_u32", r4, "v0", "2", "2")); E(valu("v_and_b32", c4, "3", "v0"))
E(valu("v_lshl_add_u32", t0, g4, "3", r4)); E(valu("v_lshlrev_b32", t0, "9", t0))
E(valu("v_lshl_add_u32", t1, r4, "2", c4)); E(valu("v_lshl_add_u32", t0, t1, "4", t0))
E(salu("s_lshl_b32", f"s{S_T0}", f"s{S_HD}", "8")); E(valu("v_add_u32", t0, f"s{S_T0}", t0))
for w in (2, 1):
    E(valu("v_add_u32", f"v{AW[w]}", lit(WBASE[w]), t0))
    for k in (1, 2, 3): E(valu("v_xor_b32", f"v{AW[w]+k}", str(k << 6), f"v{AW[w]}"))
E(salu("s_mul_i32", f"s{S_T0}", f"s{S_QH}", str(48 * 128)))
E(valu("v_lshlrev_b32", t0, "7", i16)); E(valu("v_add_u32", t0, f"s{S_T0}", t0))
E(valu("v_lshrrev_b32", t1, "1", i16)); E(valu("v_xor_b32", t1, t1, g4)); E(valu("v_lshl_add_u32", f"v{AX[0]}", t1, "4", t0))
E(valu("v_xor_b32", f"v{AX[0]+1}", "64", f"v{AX[0]}"))
E(valu("v_add_u32", f"v{AX[2]}", lit(WBASE[2]), f"v{AX[0]}")); E(valu("v_add_u32", f"v{AX[2]+1}", lit(WBASE[2]), f"v{AX[0]+1}"))
E(salu("s_lshl_b32", f"s{S_T0}", "s44", "22")); E(salu("s_lshl_b32", f"s{S_T1}", "s46", "19")); E(salu("s_add_u32", f"s{S_T0}", f"s{S_T0}", f"s{S_T1}"))
if OPT['fake'] in (1, 2): E(salu("s_mov_b32", f"s{S_T0}", "0"))
srd_finish(E, 8, f"s{S_T0}", 524288); srd_finish(E, 12, f"s{S_T0}", 524288)
E(salu("s_mul_i32", f"s{S_T0}", "s46", str(512 * 1152))); srd_finish(E, 20, f"s{S_T0}", 512 * 1152)
E(salu("s_lshl_b32", "s40", "s42", "4")); E(salu("s_add_u32", "s40", "s40", "s44"))
E(salu("s_mul_i32", f"s{S_T0}", "s40", str(8 * 108 * 1024 + 1024)))
E(raw("s_mov_b64 s[28:29], s[72:73]", 'S', wr=["s[28:29]"], rd=["s[28:29]"])); srd_finish(E, 28, f"s{S_T0}", 8 * 108 * 1024 + 1024)
E(salu("s_lshr_b32", "s49", "s2", "3")); E(salu("s_and_b32", "s49", "s49", "7")); E(salu("s_lshl_b32", "s100", f"s{S_W}", "8")); E(salu("s_add_u32", "s100", "s100", "s49"))
E(salu("s_lshl_b32", "s98", "s46", "1")); E(salu("s_add_u32", "s98", "s98", "s44")); E(salu("s_and_b32", "s98", "s98", "15")); E(salu("s_lshl_b32", "s98", "s98", "13"))
E(salu("s_lshl_b32", "s101", "s46", "3")); E(salu("s_add_u32", "s101", "s101", lit(8 * 108 * 1024)))
E(salu("s_mul_i32", "s47", "s46", str(108 * 1024))); E(salu("s_add_u32", "s47", "s47", f"s{S_W3K}"))
E(salu("s_mov_b32", f"s{S_C}", hex(cval))); E(salu("s_mov_b32", f"s{S_C+1}", hex(cval)))
E(salu("s_lshl_b32", f"s{S_T0}", f"s{S_W}", "3"))
E(valu("v_add_u32", t0, f"s{S_T0}", g4)); E(valu("v_lshlrev_b32", t0, "8", t0))
E(salu("s_lshl_b32", f"s{S_T1}", f"s{S_W}", "2"))
E(valu("v_or_b32", t1, f"s{S_T1}", g4)); E(valu("v_xor_b32", t1, t1, i16))
E(valu("v_lshl_add_u32", f"v{V_KA}", t1, "4", t0)); E(valu("v_add_u32", f"v{V_KB}", str(131072 - 2048), f"v{V_KA}"))
E(salu("s_lshl_b32", f"s{S_T1}", f"s{S_QH}", "2"))
E(valu("v_or_b32", t1, f"s{S_T1}", g4)); E(valu("v_lshlrev_b32", t1, "1", t1)); E(valu("v_xor_b32", t1, t1, i16))
E(valu("v_lshl_add_u32", f"v{V_VA}", t1, "4", t0)); E(valu("v_add_u32", f"v{V_VB}", str(131072 - 2048), f"v{V_VA}"))
E(salu("s_lshl_b32", f"s{S_T0}", f"s{S_W}", "5"))
E(valu("v_lshrrev_b32", t0, "3", "v0")); E(valu("v_add_u32", t0, f"s{S_T0}", t0)); E(valu("v_mul_u32_u24", t0, "1152", t0))
E(valu("v_lshlrev_b32", t1, "1", g4)); E(valu("v_and_b32", t2, "7", "v0")); E(valu("v_xor_b32", t1, t1, t2))
E(valu("v_lshl_add_u32", f"v{V_WO0}", t1, "4", t0))
E(salu("s_lshl_b32", f"s{S_T0}", f"s{S_HD}", "11"))
E(valu("v_lshrrev_b32", t0, "2", i16)); E(valu("v_lshlrev_b32", t0, "12", t0)); E(valu("v_add_u32", t0, f"s{S_T0}", t0))
E(valu("v_lshl_add_u32", t0, c4, "8", t0))
E(valu("v_xor_b32", t1, g4, i16)); E(valu("v_lshl_add_u32", f"v{V_AK}", t1, "4", t0))
for ks in (1, 2, 3): E(valu("v_xor_b32", f"v{V_AK+ks}", str(ks << 6), f"v{V_AK}"))
E(valu("v_lshlrev_b32", t0, "12", g4)); E(valu("v_add_u32", t0, f"s{S_T0}", t0)); E(valu("v_lshl_add_u32", t0, r4, "8", t0))
E(valu("v_lshl_add_u32", t0, c4, "3", t0))
E(valu("v_and_b32", t1, "1", g4)); E(valu("v_lshl_or_b32", t1, t1, "2", r4))
E(valu("v_lshl_add_u32", t0, t1, "5", t0)); E(valu("v_add_u32", f"v{V_AV}", lit(WBASE[1]), t0))
for dt in range(1, 8): E(valu("v_xor_b32", f"v{V_AV+dt}", str(dt << 5), f"v{V_AV}"))
E(valu("v_lshl_add_u32", t0, g4, "2", r4)); E(valu("v_bfe_u32", t1, t0, "1", "2"))
E(salu("s_lshl_b32", f"s{S_T0}", f"s{S_HD}", "1")); E(valu("v_xor_b32", t1, f"s{S_T0}", t1))
E(valu("v_lshlrev_b32", t0, "7", t0)); E(valu("v_lshl_add_u32", t0, t1, "5", t0)); E(valu("v_lshl_add_u32", f"v{V_AO0}", c4, "3", t0))
E(valu("v_mov_b32", t0, "0x3f803f80"))
for k in range(4): E(valu("v_accvgpr_write_b32", f"a{A_ONE+k}", t0))
if OPT['up'] < 1: E(wq_ops(0, 1, PRE["WQ0_1"]))
if OPT['up'] < 2: E(x_ops("X0_1", 1, PRE["X0_1"]))
if OPT['up'] >= 3: E(wq_ops(0, 2, PRE["WQ0_2"])); E(wq_ops(0, 3, PRE["WQ0_3"]))

def cat(op): return 'X' if callable(op) else op.kind
class Build:
    def __init__(s, alloc):
        s.alloc = alloc
        s.P = Prog(); s.P.vm = list(P0.vm)
        s.MF = []; s.FL = []; s.frags = []; s.bar_req = []; s.tiles = []; s.issued = set(PRE)
        s.nst = 1; s.late = []; s.xneed = {}; s.win_after = []
        s.KT = {r: [s.fixed(f"K{r}_{n}", (16 * r + n) % 3, lambda sl, r=r, n=n: kv_ops('K', r, n, sl)) for n in range(16)] for r in (0, 1)}
        s.VT = {r: [s.fixed(f"V{r}_{n}", 3 + (16 * r + n) % 3, lambda sl, r=r, n=n: kv_ops('V', r, n, sl)) for n in range(16)] for r in (0, 1)}
        s.pending_st = []
        for i, t in enumerate([s.KT[0][0], s.KT[0][1], s.VT[0][0], s.KT[0][2], s.VT[0][1], s.VT[0][2]][:OPT['early']]): t.want_issue = OPT['e0'] + i * OPT['estep']
    def fixed(s, name, slot, mk, lead=None):
        t = Tile(name, slot, mk(slot), lead=OPT['leadh'] if lead is None else lead); s.tiles.append(t); return t
    def free(s, name, cands, mk):
        sl = PRE.get(name, s.alloc.get(name, cands[0]))
        t = Tile(name, sl, mk(sl), cands=None if name in PRE else cands, lead=0); s.tiles.append(t); return t
    def g(s): return len(s.MF) - 1
    def fill(s, ops, e, d, want=None, after=(), name=""):
        f = Fill(ops, e, max(d, e), want=want, after=[a for a in after if a is not None], name=name); s.FL.append(f); return f
    def chain(s, ops, e, d, want0=None, step=0.5, after=(), name=""):
        prev = list(after); f = None
        for k, op in enumerate(ops):
            f = s.fill(op, e, d, want=(e if want0 is None else want0) + k * step, after=prev, name=name); prev = [f]
        return f
    def forced(s, ops, gap=None, name="", after=()):
        gg = s.g() if gap is None else gap
        f = Fill(ops, gg, gg, want=-10**9 + len(s.FL), after=after, name=name); f.excl = False; s.FL.append(f); return f
    def stamp(s):
        if OPT.get('at'): return
        if OPT['stamp']: s.forced(stamp_ops(s.nst), name="stamp")
        s.nst += 1
    def add_frag(s, tile, mk_reads, mk_mfmas, after=None):
        f = len(s.frags); base = A_FR + 4 * (f % NFR)
        u0 = len(s.MF); s.MF.extend(mk_mfmas(R('a', base, 4))); u1 = len(s.MF) - 1
        s.frags.append(dict(reads=mk_reads(base), u0=u0, u1=u1, tile=tile, after=after))
        tile.last_use = u1
        if tile.first_need is None: tile.first_need = u0
    def want_bar(s, tiles): s.bar_req.append([len(s.MF), list(tiles)]); return len(s.bar_req) - 1
    def q_frag(s, T_, dt, acc, xr, first):
        w, ib = win(T_.slot); ksp, odd = dt >> 1, dt & 1
        s.add_frag(T_, lambda b: [ds_read("ds_read_b64_tr_b16", R('a', b + 2 * hf, 2), f"v{AW[w]+ksp}", ib + hf * 2048 + odd * 8, slot=T_.slot) for hf in range(2)],
                   lambda a: [mfma(acc(dt, qt), a, R('a', xr + 4 * qt, 4), "0" if first else acc(dt, qt)) for qt in range(3)])
    def x_reads(s, X_, regs, e_list, need_list):
        X_.last_use = max(need_list) + 2
        def mk():
            b = s.tile_bar[X_.name]; w, ib = win(X_.slot); k = 0
            for ksl in range(2):
                for qt in range(3):
                    op = ds_read("ds_read_b128", R('a', regs[ksl] + 4 * qt, 4), f"v{AX[w]+ksl}", ib + qt * 2048, slot=X_.slot)
                    s.xneed[id(op)] = need_list[ksl]
                    e = max(b.earliest, e_list[ksl])
                    s.fill(op, e, need_list[ksl] - 1, want=max(e - 2, min(need_list[ksl] - LA - 6, e + 4)) + k * 0.7, after=[b], name="xrd"); k += 1
        s.late.append(mk)
    def conv(s, even, odd, scale, dst=None, pk=False):
        dst = even if dst is None else dst
        if pk: ops = [valu("v_pk_mul_f32", R('v', b, 2), R('v', b, 2), scale, extra="" if scale[0] == 's' else " op_sel_hi:[1,0]") for b in (even, even + 2, odd, odd + 2)]
        else:
            sc = scale[0] + scale[2:].split(':')[0]
            ops = [valu("v_mul_f32", f"v{b+k}", sc, f"v{b+k}") for b in (even, odd) for k in range(4)]
        ops += [valu("v_cvt_pk_bf16_f32", f"v{dst}", f"v{even}", f"v{even+1}"), valu("v_cvt_pk_bf16_f32", f"v{dst+1}", f"v{even+2}", f"v{even+3}"),
                valu("v_cvt_pk_bf16_f32", f"v{dst+2}", f"v{odd}", f"v{odd+1}"), valu("v_cvt_pk_bf16_f32", f"v{dst+3}", f"v{odd+2}", f"v{odd+3}")]
        return ops
    def k_frag(s, r, n, t, ks, dst, cinit):
        T_ = s.KT[r][n]
        s.add_frag(T_, lambda b: [ds_read("ds_read_b128", R('a', b, 4), f"v{V_AK+ks}", T_.slot * SLOT + t * 1024, slot=T_.slot)],
                   lambda a: [mfma(R('v', dst(qt), 4), a, QF(ks, qt), cinit if ks == 0 else R('v', dst(qt), 4)) for qt in range(3)])
    def m0(s, r, after=()):
        bi = s.want_bar([s.KT[r][0]])
        for ks in range(4): s.k_frag(r, 0, 0, ks, lambda qt: Sreg(1, 0, qt), "0")
        x = Sreg(1, 0, 0); a, b = f"v{x}", f"v{x+1}"
        ops = [valu("v_max3_f32", a, a, b, f"v{x+2}"), valu("v_max3_f32", f"v{x+3}", f"v{x+3}", f"v{x+4}", f"v{x+5}"), valu("v_max3_f32", f"v{x+6}", f"v{x+6}", f"v{x+7}", f"v{x+8}"),
               valu("v_max3_f32", f"v{x+9}", f"v{x+9}", f"v{x+10}", f"v{x+11}"), valu("v_max3_f32", a, a, f"v{x+3}", f"v{x+6}"), valu("v_max_f32", a, a, f"v{x+9}"),
               valu("v_mov_b32", b, a), valu("v_permlane16_swap_b32", a, b), valu("v_max_f32", a, a, b), valu("v_mov_b32", b, a),
               valu("v_permlane32_swap_b32", a, b), valu("v_max_f32", a, a, b)] + [valu("v_sub_f32", f"v{V_NM+k}", "0", a) for k in range(4)]
        f = s.forced(ops, name="m0v", after=after); f.want = 10**7
        return bi
    def phase_a(s, r, lwork, haslw):
        done_at = {}; info = {'bar': [], 'step0': []}
        def qk(n):
            for t in range(2):
                for ks in range(4): s.k_frag(r, n, t, ks, lambda qt: Sreg(n & 1, t, qt), NMR)
                for qt in range(3): done_at[(n, t, qt)] = len(s.MF) - 3 + qt
        qk(0)
        for n in range(16):
            if OPT['ptb'] and n < 15:
                bi = s.want_bar([s.KT[r][n + 1]])
            else: bi = s.want_bar(([s.KT[r][n + 1]] if n < 15 else []) + [s.VT[r][n]])
            info['bar'].append(bi); info['step0'].append(len(s.MF))
            if n < 15: qk(n + 1)
            if OPT['ptb'] and n < 15: s.want_bar([s.VT[r][n]]); s.bar_req[-1][0] += 3
            pv0 = len(s.MF); k = 0
            for t in range(2):
                for qt in range(3):
                    sr = Sreg(n & 1, t, qt); ef = []; e = done_at[(n, t, qt)] + 4
                    for c in range(4):
                        w = e + k * 0.01; k += 1
                        ef.append(s.fill(valu("v_exp_f32", f"v{sr+c}", f"v{sr+c}"), e, pv0 - 2, want=w, name="exp"))
                        if c & 1:
                            s.fill(valu("v_cvt_pk_bf16_f32", f"v{Preg(n&1,qt)+2*t+(c>>1)}", f"v{sr+c-1}", f"v{sr+c}"), e, pv0 - 1, want=w, after=ef[-2:], name="cvt")
            for qt in range(3):
                l = R('a', A_L + 4 * qt, 4)
                s.MF.append(mfma(l, R('a', A_ONE, 4), R('v', Preg(n & 1, qt), 4), "0" if n == 0 else l))
            T_ = s.VT[r][n]
            for dt in range(8):
                s.add_frag(T_, lambda b: [ds_read("ds_read_b64_tr_b16", R('a', b + 2 * t, 2), f"v{V_AV+dt}", (T_.slot - 3) * SLOT + t * 1024, slot=T_.slot) for t in range(2)],
                           lambda a: [mfma(R('v', Oacc(dt, qt), 4), a, R('v', Preg(n & 1, qt), 4), "0" if n == 0 else R('v', Oacc(dt, qt), 4)) for qt in range(3)])
                info[dt] = s.g()
            if n == 0: info['pv_first'] = pv0
            info['pv_last'] = pv0; info['pv_end'] = s.g()
            if OPT['ptb'] and haslw(n): bi = s.want_bar([])
            lwork(n, bi)
        return info
    def o_finish(s, r, info, dl):
        pv0 = info['pv_last']; ta, tb = f"v{V_NM+1}", f"v{V_NM+3}"
        ops = [valu("v_accvgpr_read_b32", f"v{RL[qt]}", f"a{A_L+4*qt}") for qt in range(3)]
        if OPT['slow']:
            lab = f"L_ok{r}"
            ops += [valu("v_add_f32", ta, f"v{RL[0]}", f"v{RL[1]}"), valu("v_min3_f32", tb, f"v{RL[0]}", f"v{RL[1]}", f"v{RL[2]}"), valu("v_add_f32", ta, ta, f"v{RL[2]}"),
                    salu("s_mov_b32", "s48", "0x5d800000" if not OPT['forceslow'] else "0"), salu("s_mov_b32", "s49", "0x21800000"),
                    raw(f"v_cmp_nge_f32 vcc, s48, {ta}", 'V', rd=[ta, "s48"], wr=['vcc']),
                    raw(f"v_cmp_nle_f32 s[50:51], s49, {tb}", 'V', rd=[tb, "s49"], wr=['s[50:51]']),
                    raw("s_nop 1", 'W'), raw("s_or_b64 vcc, vcc, s[50:51]", 'S'),
                    raw(f"s_cbranch_vccz {lab}", 'S', rd=['vcc']),
                    salu("s_mov_b32", "s48", lit(r * 262144)),
                    raw(f"s_getpc_b64 {S_RET}", 'S'), raw("s_add_u32 s6, s6, 12", 'S'), raw("s_addc_u32 s7, s7, 0", 'S'), raw("s_branch L_slow", 'S'),
                    raw(f"{lab}:", 'X')]
        chk = s.forced(ops, gap=pv0 + 5, name="lchk")
        rc = s.chain([valu("v_rcp_f32", f"v{RL[qt]}", f"v{RL[qt]}") for qt in range(3)], pv0 + 5, pv0 + 9, after=[chk], name="rcp")
        last = {}
        for ks in range(4):
            for qt in range(3):
                e = min(info[2 * ks + 1] + 3, dl(ks, qt))
                last[(ks, qt)] = s.chain(s.conv(Oacc(2 * ks, qt), Oacc(2 * ks + 1, qt), R('v', RL[qt], 2)), e, dl(ks, qt), want0=e + (ks * 3 + qt) * 0.01, step=0.5, after=[rc], name="ocv")
        return last
    def xaddr(s, e, stride):
        return s.chain([valu("v_lshlrev_b32", f"v{V_T}", "4", "v0"), salu("s_mul_i32", f"s{S_T1}", f"s{S_W}", str(stride)),
                        valu("v_add_u32", f"v{V_T+1}", f"s{S_T1}", f"v{V_T}"), salu("s_mul_i32", f"s{S_T1}", f"s{S_QH}", str(stride)),
                        valu("v_add_u32", f"v{V_T+2}", f"s{S_T1}", f"v{V_T}")], e, e + 8, name="xpre")
    def xround(s, name, fr, slots, stride, last, pre, bar_w, bar_pub, dst, rdead, addr_bias=0):
        res = [s.fixed(f"{name}_{sl}", sl, lambda sl: [], lead=0) for sl in slots]
        for t in res:
            t.first_need = s.bar_req[bar_w][0]; t.last_use = rdead + 1; t.scratch = bar_w
            s.issued.add(t.name)
        base = slots[0] * SLOT - addr_bias
        out = {}
        def mk():
            bw, bp = s.barfill[bar_w], s.barfill[bar_pub]
            for i, (ks, qt) in enumerate(fr):
                lf = last[(ks, qt)]
                op = ds_write("ds_write_b128", f"v{V_T+1}", R('v', Oacc(2 * ks, qt), 4), base + i * 1024); op.note = tuple(slots)
                w_ = s.fill(op, max(lf.earliest, bw.earliest), bp.earliest, want=max(lf.want, bw.earliest) + 0.1 + i * 0.01, after=[lf, pre, bw], name="xw")
                bp.after.append(w_)
            k = 0
            for i, (ks, qt) in enumerate(fr):
                for hh in range(2):
                    op = ds_read("ds_read_b128", dst(hh, ks, qt), f"v{V_T+2}", base + hh * 2 * stride + i * 1024, slot=('X',) + tuple(slots))
                    out[(hh, ks, qt)] = s.fill(op, bp.earliest, rdead, want=bp.earliest + 1 + k * 1.5, after=[bp], name="xr"); k += 1
        s.late.append(mk)
        return out
    def o_tile(s, T_, bfr, accr, first):
        w, ib = win(T_.slot)
        for ks in range(4):
            for ntl in range(2):
                s.add_frag(T_, lambda b: [ds_read("ds_read_b64_tr_b16", R('a', b + 2 * hf, 2), f"v{AO[w]+ntl}", ib + ks * 4096 + hf * 2048, slot=T_.slot) for hf in range(2)],
                           lambda a: [mfma(accr(ntl, qt), a, bfr(ks, qt), "0" if (first and ks == 0) else accr(ntl, qt)) for qt in range(3)], after=('O', w))
    def store_ops(s, src0, src1, tmp, c, qt, from_acc):
        ops = []
        if from_acc:
            for k in range(4): ops.append(valu("v_accvgpr_read_b32", f"v{tmp+k}", f"a{src0+k}"))
            for k in range(4): ops.append(valu("v_accvgpr_read_b32", f"v{tmp+4+k}", f"a{src1+k}"))
            src0, src1 = tmp, tmp + 4
        d = src0
        ops += [valu("v_cvt_pk_bf16_f32", f"v{d}", f"v{src0}", f"v{src0+1}"), valu("v_cvt_pk_bf16_f32", f"v{d+1}", f"v{src0+2}", f"v{src0+3}"),
                valu("v_cvt_pk_bf16_f32", f"v{d+2}", f"v{src1}", f"v{src1+1}"), valu("v_cvt_pk_bf16_f32", f"v{d+3}", f"v{src1+2}", f"v{src1+3}")]
        if qt == 0: ops += [salu("s_add_u32", f"s{S_ST}", "s47", lit(c * 12288))]
        ops += [raw(f"buffer_store_dwordx4 v[{d}:{d+3}], v{V_T}, {SWS}, s{S_ST} offen offset:{qt*1024}" + ["", " sc1", " sc0 sc1", " sc1 nt", " nt", " sc0 sc1 nt"][OPT['stf']], 'D', rd=[f"v[{d}:{d+3}]", f"v{V_T}", SWS, f"s{S_ST}"], tag="stA" if c <= 5 else "st", wide_store=True)]
        if OPT['nost']: ops = ops[:-1]
        return ops
    def pfpair(s, kind, e, dreg):
        tmp, dst = f"v{V_H+6}", f"v{V_NM+0}"
        tmp = f"v{V_H+6}"
        if kind == 'q':
            t2_ = f"v{V_NM+3}"
            ops = [valu("v_min_u32", tmp, "35", "v0"), valu("v_lshrrev_b32", t2_, "2", tmp),
                   salu("s_mul_i32", f"s{S_T0}", "s44", "36"), salu("s_mul_i32", f"s{S_T1}", f"s{S_W}", "9"), salu("s_add_u32", f"s{S_T0}", f"s{S_T0}", f"s{S_T1}"),
                   valu("v_add_u32", t2_, f"s{S_T0}", t2_), valu("v_lshlrev_b32", t2_, "13", t2_),
                   valu("v_and_b32", tmp, "3", tmp), valu("v_lshl_add_u32", tmp, tmp, "7", t2_)]
            srd, off = SWQ, 512
        else:
            ops = [valu("v_min_u32", tmp, "35", "v0"),
                   salu("s_mul_i32", f"s{S_T0}", "s44", "144"), salu("s_mul_i32", f"s{S_T1}", f"s{S_W}", "36"), salu("s_add_u32", f"s{S_T0}", f"s{S_T0}", f"s{S_T1}"),
                   salu("s_add_u32", f"s{S_T0}", f"s{S_T0}", str(kind * 2304)), valu("v_add_u32", tmp, f"s{S_T0}", tmp), valu("v_lshlrev_b32", tmp, "7", tmp)]
            srd, off = SWO, 0
        ops += [raw(f"buffer_load_dword v{dreg}, {tmp}, {srd}, 0 offen offset:{off}" + (" sc1 nt" if OPT['pfsc'] else " nt"), 'D', rd=[tmp, srd], wr=[], tag="pf"),
                raw(f"buffer_load_dword v{dreg}, {tmp}, {srd}, 0 offen offset:{off}" + (" sc1" if OPT['pfsc'] else ""), 'D', rd=[tmp, srd], wr=[f"v{dreg}"], tag="pf")]
        s.forced(ops, gap=e, name="pf")
    def build(s, dry=False):
        LHI = [6, 7, 8, 9]
        accq = lambda dt, qt: R('v', QaccQS(dt, qt), 4)
        W0 = [s.free(f"WQ0_{p}", [3, 4, 5, 6, 7, 8, 9], lambda sl, p=p: wq_ops(0, p, sl)) for p in range(18)]
        X0 = [s.free(f"X0_{i}", [0, 1, 2, 6, 7, 8, 9], lambda sl, i=i: x_ops(f"X0_{i}", i, sl)) for i in range(9)]
        done = {}
        for p in range(16):
            u = len(s.MF)
            s.want_bar([W0[p]] + ([X0[p // 2]] if p % 2 == 0 else []))
            if p % 2 == 0:
                X0[p // 2].first_need = u - 0.5; s.x_reads(X0[p // 2], [XFr(p, 0), XFr(p + 1, 0)], [-1, -1], [u, u + 24])
            if OPT['pfw'] and p >= OPT['pft0'] and (p - OPT['pft0']) % OPT['pfd'] == 0 and (p - OPT['pft0']) // OPT['pfd'] < 3:
                k_ = (p - OPT['pft0']) // OPT['pfd']; tmp, dst = f"v{V_TA}", f"v{V_TB}"
                if k_ == 0:
                    ops = [valu("v_min_u32", tmp, "35", "v0"), valu("v_lshrrev_b32", dst, "2", tmp),
                           salu("s_mul_i32", f"s{S_T0}", "s44", "36"), salu("s_mul_i32", f"s{S_T1}", f"s{S_W}", "9"), salu("s_add_u32", f"s{S_T0}", f"s{S_T0}", f"s{S_T1}"),
                           valu("v_add_u32", dst, f"s{S_T0}", dst), valu("v_lshlrev_b32", dst, "13", dst),
                           valu("v_and_b32", tmp, "3", tmp), valu("v_lshl_add_u32", tmp, tmp, "7", dst),
                           raw(f"buffer_load_dword v{V_H+7}, {tmp}, {SWQ}, 0 offen offset:512 nt", 'D', rd=[tmp, SWQ], wr=[], tag="pf")]
                else:
                    ops = [valu("v_min_u32", tmp, "35", "v0"),
                           salu("s_mul_i32", f"s{S_T0}", "s44", "144"), salu("s_mul_i32", f"s{S_T1}", f"s{S_W}", "36"), salu("s_add_u32", f"s{S_T0}", f"s{S_T0}", f"s{S_T1}"),
                           salu("s_add_u32", f"s{S_T0}", f"s{S_T0}", str((k_ - 1) * 2304)), valu("v_add_u32", tmp, f"s{S_T0}", tmp), valu("v_lshlrev_b32", tmp, "7", tmp),
                           raw(f"buffer_load_dword v{V_H+7}, {tmp}, {SWO}, 0 offen nt", 'D', rd=[tmp, SWO], wr=[], tag="pf")]
                s.chain(ops, u, u + 20, step=1.5, name="pf")
            if OPT['pf2'] and p == OPT['pfa']: s.pfpair('q', u + 3, V_NM + 1)
            for dt in range(8): s.q_frag(W0[p], dt, accq, XFr(p, 0), p == 0)
        u = len(s.MF); s.want_bar([W0[16], W0[17], X0[8]]); X0[8].first_need = u - 0.5
        s.x_reads(X0[8], [XFr(16, 0), XFr(17, 0)], [-1, -1], [u, u + 3])
        for dt in range(8):
            s.q_frag(W0[16], dt, accq, XFr(16, 0), False); s.q_frag(W0[17], dt, accq, XFr(17, 0), False); done[dt] = s.g()
        gq = s.g()
        for ks in range(4):
            for qt in range(3):
                pk = ks * 3 + qt >= OPT['npl0']
                e = gq if pk else min(done[2 * ks + 1] + 3, gq)
                s.chain(s.conv(QaccQS(2 * ks, qt), QaccQS(2 * ks + 1, qt), f"s[{S_C}:{S_C+1}]", pk=pk), e, gq, want0=e + (ks * 3 + qt) * 0.01, name="qcv")
        s.stamp()
        s.m0(0)
        order = list(range(8, 18)) + list(range(0, 8))
        xreg = {p: XFr(p, 0) for p in range(8, 18)}; xreg.update({p: XFr(8 + p, 0) for p in range(8)})
        acc1 = lambda dt, qt: R('a', 4 * (dt * 3 + qt), 4)
        W1 = {p: s.free(f"WQ1_{p}", LHI, lambda sl, p=p: wq_ops(1, p, sl)) if p not in (4, 5, 6, 7) else s.fixed(f"WQ1_{p}", {4: 8, 5: 9, 6: 6, 7: 7}[p], lambda sl, p=p: wq_ops(1, p, sl), lead=70) for p in order}
        X1 = [s.free(f"X1_{i}", LHI, lambda sl, i=i: x_ops(f"X1_{i}", i, sl)) for i in range(4)]
        lend = {}; lstart = {}
        def dbgsrd(): return [salu("s_mov_b32", "s48", "s70"), salu("s_and_b32", "s49", "s71", "0xffff"), salu("s_mov_b32", "s50", "256"), salu("s_mov_b32", "s51", "0x20000"),
                             salu("s_lshl_b32", f"s{S_T0}", "s40", "3")]
        def site(k, lab, ops):
            s.forced([raw(f"s_cmp_lg_u32 s100, {k}", 'S'), raw(f"s_cbranch_scc1 {lab}", 'S')] + ops + [raw(f"{lab}:", 'X')], name="site")
        def lw0(n, bi):
            if OPT['pf2'] and n == OPT['pfb'] + 5: s.pfpair(0, s.g() - 8, V_TA)
            if n == 0:
                s.forced([raw(f"s_cmp_lg_u32 s{S_W}, 0", 'S'), raw("s_cbranch_scc1 L_nz", 'S'), valu("v_mov_b32", f"v{V_H+6}", "0"), valu("v_mov_b32", f"v{V_H+7}", "0"), raw("s_mov_b64 exec, 1", 'S'),
                          raw(f"buffer_store_dwordx2 v[{V_H+6}:{V_H+7}], v{V_H+6}, {SWS}, s101 offen sc1", 'S'), raw("s_mov_b64 exec, -1", 'S'), raw("L_nz:", 'X')], name="fz")
            if 4 <= n < 12:
                site(n - 4, f"L_hs{n}", dbgsrd() + [valu("v_mov_b32", f"v{V_H+6}", "0"), valu("v_mov_b32", f"v{V_H+7}", "1"), raw("s_mov_b64 exec, 1", 'S'),
                     raw(f"buffer_atomic_add v{V_H+7}, v{V_H+6}, s[48:51], s{S_T0} offen sc1", 'S'), raw("s_mov_b64 exec, -1", 'S')])
            p = order[n]; s.bar_req[bi][1].append(W1[p]); lstart[p] = len(s.MF)
            for dt in range(8): s.q_frag(W1[p], dt, acc1, xreg[p], n == 0)
            lend[p] = s.g()
        i0 = s.phase_a(0, lw0, lambda n: True)
        s.stamp()
        bT = s.want_bar([W1[6], W1[7]]); lstart[6] = len(s.MF); lstart[7] = len(s.MF) + 3
        for dt in range(8):
            s.q_frag(W1[6], dt, acc1, xreg[6], False); s.q_frag(W1[7], dt, acc1, xreg[7], False); done[dt] = s.g()
        gT = s.g()
        for i, X_ in enumerate(X1):
            n = 3 + 2 * i
            s.bar_req[i0['bar'][n]][1].append(X_); X_.first_need = i0['step0'][n] - 0.5
            s.x_reads(X_, [xreg[2 * i], xreg[2 * i + 1]], [lend[8 + 2 * i] + 1, lend[9 + 2 * i] + 1], [i0['step0'][n] + 40, i0['step0'][n] + 44])
        qcv = []
        for ks in range(4):
            for qt in range(3):
                pk = ks * 3 + qt >= OPT['npl1']
                e = gT if pk else min(done[2 * ks + 1] + 3, gT); tmp = V_S + 8 * ((ks * 3 + qt) % 3)
                ops = [valu("v_accvgpr_read_b32", f"v{tmp+4*o+k}", f"a{4*((2*ks+o)*3+qt)+k}") for o in range(2) for k in range(4)]
                ops += s.conv(tmp, tmp + 4, f"s[{S_C}:{S_C+1}]", dst=QFr(ks, qt), pk=pk)
                qcv.append(s.chain(ops, e, gT, want0=e + (ks * 3 + qt) * 0.01, step=0.25, after=qcv[-3:-2] if len(qcv) >= 3 else [], name="qcv1"))
        wdl = gT - LA - 2
        last0 = s.o_finish(0, i0, lambda ks, qt: wdl - 2 if ks * 3 + qt < 4 else gT)
        pre0 = s.xaddr(i0['pv_last'] + 6, 4096)
        bias = s.chain([valu("v_add_u32", f"v{V_T+1}", lit(8 * SLOT), f"v{V_T+1}"), valu("v_add_u32", f"v{V_T+2}", lit(8 * SLOT), f"v{V_T+2}")], i0['pv_last'] + 8, i0['pv_last'] + 16, after=[pre0], name="xb")
        s.stamp()
        bM = s.m0(1, after=list(last0.values()))
        aoh = s.chain(set_addr_o(2), gT, gT + 30, name="ao2"); s.win_after.append((('O', 2), aoh))
        o0s = OPT['o0start']; nblk = (16 - o0s) // 2
        blk_done = {}
        def accA(nb): return ACCB[nb & 1]
        parkf = {}
        def lw1(n, bi):
            if OPT['pf2'] and n == OPT['pfc']: s.pfpair(1, s.g() - 8, V_T)
            if 4 <= n < 12:
                site(n - 4, f"L_hc{n}", dbgsrd() + [valu("v_mov_b32", f"v{V_H+7}", "0"), raw("s_nop 0", 'W'),
                     raw(f"buffer_load_dword v{V_H+7}, v{V_H+7}, s[48:51], s{S_T0} offen sc1", 'S')])
            if OPT['cpf2'] and n == OPT['cps']:
                tmp = f"v{V_H+7}"
                ops = [raw("s_getpc_b64 s[48:49]", 'S', wr=["s[48:49]"]), raw("L_pc2:", 'X'),
                       raw("s_add_u32 s48, s48, L_tailcode-L_pc2", 'S', wr=["s48"]), raw("s_addc_u32 s49, s49, 0", 'S', wr=["s49"]),
                       salu("s_and_b32", "s49", "s49", "0xffff"), raw("s_mov_b32 s50, L_slow-L_tailcode", 'S', wr=["s50"]), salu("s_mov_b32", "s51", "0x20000"),
                       salu("s_lshl_b32", f"s{S_T0}", "s41", "2"), salu("s_add_u32", f"s{S_T0}", f"s{S_T0}", f"s{S_W}"), salu("s_lshl_b32", f"s{S_T0}", f"s{S_T0}", "8"),
                       valu("v_and_b32", tmp, "1", "v0"), valu("v_lshlrev_b32", tmp, "7", tmp),
                       raw(f"buffer_load_dword {tmp}, {tmp}, s[48:51], s{S_T0} offen", 'D', rd=[tmp, "s[48:51]", f"s{S_T0}"], wr=[], tag="pf")]
                s.forced(ops, name="cpf2")
            if n == 14: s.forced([raw("L_tailcode:", 'X')], name="lab")
            if OPT['pft'] and n == OPT['pfs']:
                tmp = f"v{V_H+7}"
                s.chain([valu("v_min_u32", tmp, "35", "v0"),
                         salu("s_mul_i32", f"s{S_T0}", "s44", "144"), salu("s_mul_i32", f"s{S_T1}", f"s{S_W}", "36"), salu("s_add_u32", f"s{S_T0}", f"s{S_T0}", f"s{S_T1}"),
                         salu("s_add_u32", f"s{S_T0}", f"s{S_T0}", "2304"), valu("v_add_u32", tmp, f"s{S_T0}", tmp), valu("v_lshlrev_b32", tmp, "7", tmp),
                         raw(f"buffer_load_dword {tmp}, {tmp}, {SWO}, 0 offen", 'D', rd=[tmp, SWO], wr=[], tag="pf")], s.g(), s.g() + 40, step=2, name="pf")
            if n < o0s or (n - o0s) // 2 >= nblk: return
            nb, hh = (n - o0s) >> 1, (n - o0s) & 1
            T_ = s.free(f"WO{hh}_{nb}", LHI, lambda sl: wo_ops(hh, nb, sl)); s.bar_req[bi][1].append(T_)
            st = len(s.MF)
            if hh == 0 and nb >= 2:
                pb = nb - 2; ops = []
                for i in range(12):
                    ta, tb = (V_TA, V_TB) if i & 1 else (V_T + 1, V_T + 2)
                    ops += [valu("v_accvgpr_read_b32", f"v{ta}", f"a{accA(pb)+2*i}"), valu("v_accvgpr_read_b32", f"v{tb}", f"a{accA(pb)+2*i+1}"),
                            valu("v_cvt_pk_bf16_f32", f"v{ta}", f"v{ta}", f"v{tb}"), valu("v_accvgpr_write_b32", f"a{PARK[pb]+i}", f"v{ta}")]
                e = blk_done[pb] + 4
                pd = blk_done[pb + 1] + 3
                parkf[pb] = s.chain(ops, e, pd, want0=e, step=(pd - e - 20) / 48.0, after=[parkf.get(pb - 1)], name="park")
            s.o_tile(T_, lambda ks, qt: R('a', OBa(hh, ks, qt), 4), lambda ntl, qt: R('a', accA(nb) + 4 * (ntl * 3 + qt), 4), hh == 0)
            if hh == 1: blk_done[nb] = s.g()
        i1 = s.phase_a(1, lw1, lambda n: n >= o0s and (n - o0s) // 2 < nblk)
        gA1 = s.g()
        fr = [(ks, qt) for ks in range(4) for qt in range(3)]
        dstA = lambda hh, ks, qt: R('a', OBa(hh, ks, qt), 4)
        s.xround("XA", fr[:4], [8], 4096, last0, bias, bT, bM, dstA, i1['step0'][0] - LA - 9, addr_bias=8 * SLOT)
        s.xround("XB", fr[4:8], [9], 4096, last0, bias, bM, i1['bar'][0], dstA, i1['step0'][0] + 30, addr_bias=8 * SLOT)
        s.xround("XD", fr[8:], [8], 4096, last0, bias, i1['bar'][0], i1['bar'][1], dstA, i1['step0'][1] + 30, addr_bias=8 * SLOT)
        s.xb_dead = i1['pv_first'] - 1
        s.stamp()
        rest = list(range(nblk, 9))
        VB = [V_S, V_S + 24, V_QF, V_QF + 24]
        ALL = list(range(10))
        seq = [(nb, h) for nb in rest for h in (0, 1)]
        inacc = [nb for nb in range(nblk) if nb >= nblk - 2]; parked = [nb for nb in range(nblk) if nb < nblk - 2]
        seq += [(nb, h) for nb in rest + inacc + parked for h in (2, 3)]
        CORD = rest + inacc + parked; s.CORD = CORD
        vb = {}; vfree = {b: i1['pv_last'] + 6 for b in VB}; tst = {}; tbar = {}
        for nb in rest: vb[nb] = VB[rest.index(nb)]
        ao_lo = s.chain(set_addr_o(1) + set_addr_o(0), i1['pv_last'], i1['pv_last'] + 20, name="ao10"); s.win_after += [(('O', 1), ao_lo), (('O', 0), ao_lo)]
        PAIRS = [6, 4, 8, 2, 0]
        AP = {0: V_AK, 1: V_AV, 2: V_AV + 4}
        def pwin(sa): return (0, sa * SLOT) if sa < 4 else ((1, (sa - 3) * SLOT) if sa < 6 else (2, (sa - 6) * SLOT))
        ops = [salu("s_lshl_b32", f"s{S_T0}", f"s{S_HD}", "14"), valu("v_add_u32", f"v{V_AK}", f"s{S_T0}", f"v{V_AO0}"),
               valu("v_xor_b32", f"v{V_AK+1}", "32", f"v{V_AK}"), valu("v_xor_b32", f"v{V_AK+2}", "0x4000", f"v{V_AK}"), valu("v_xor_b32", f"v{V_AK+3}", "0x4020", f"v{V_AK}")]
        ops += [valu("v_add_u32", f"v{AP[w]+k}", lit(WBASE[w]), f"v{V_AK+k}") for w in (2, 1) for k in range(4)]
        apf = s.chain(ops, i1['pv_end'], i1['pv_end'] + 60, name="ap"); s.win_after.append((('P', 0), apf))
        live = set(rest); s.unp = []
        for (nb, h4) in seq:
            st = len(s.MF); tst[(nb, h4)] = st; hh = h4 & 1
            if h4 < 2:
                T_ = s.free(f"WO{h4}_{nb}", ALL, lambda sl: wo_ops(h4, nb, sl)); tbar[(nb, h4)] = s.want_bar([T_])
            elif h4 == 2:
                sa = PAIRS[CORD.index(nb) % 5]
                TP = [s.fixed(f"WO{2+k}_{nb}", sa + k, lambda sl, k=k: wo_ops(2 + k, nb, sl), lead=OPT['plead']) for k in range(2)]
                tbar[(nb, 2)] = tbar[(nb, 3)] = s.want_bar(TP); TP[1].first_need = st + 0.5
            if nb in parked and h4 == 2:
                b = min((x for x in VB if x not in [vb[k] for k in vb if k in live]), key=lambda x: vfree[x]); vb[nb] = b
                ops = []
                for i in range(12):
                    ops += [valu("v_accvgpr_read_b32", f"v{b+2*i+1}", f"a{PARK[nb]+i}"), valu("v_lshlrev_b32", f"v{b+2*i}", "16", f"v{b+2*i+1}"),
                            valu("v_and_b32", f"v{b+2*i+1}", "0xffff0000", f"v{b+2*i+1}")]
                e = max(vfree[b], st - 60)
                s.unp.append((ops, e, st - 2, b))
            if nb in inacc: accr = lambda ntl, qt: R('a', accA(nb) + 4 * (ntl * 3 + qt), 4)
            else: accr = lambda ntl, qt: R('v', vb[nb] + 4 * (ntl * 3 + qt), 4); live.add(nb)
            if h4 < 2: s.o_tile(T_, lambda ks, qt: R('a', OBa(hh, ks, qt), 4), accr, h4 == 0)
            else:
                w, ib = pwin(sa)
                for ks in range(4):
                    for ntl in range(2):
                        if nb == CORD[0] and h4 == 3 and ks * 2 + ntl == OPT['xb2']: pubx = s.want_bar([])
                        s.add_frag(TP[0], lambda b: [ds_read("ds_read_b64_tr_b16", R('a', b + 2 * hf, 2), f"v{AP[w]+2*hh+ntl}", ib + ks * 4096 + hf * 2048, slot=('P', sa, sa + 1)) for hf in range(2)],
                                   lambda a: [mfma(accr(ntl, qt), a, R('v', Oacc(2 * ks + hh, qt), 4), accr(ntl, qt)) for qt in range(3)], after=('P', 0))
                TP[1].last_use = TP[0].last_use
            if h4 == 3:
                dn = s.g()
                for qt in range(3):
                    c_ = CORD.index(nb)
                    if nb in inacc: ops = s.store_ops(accA(nb) + 4 * qt, accA(nb) + 12 + 4 * qt, V_P + 8 * qt, c_, qt, True)
                    else: ops = s.store_ops(vb[nb] + 4 * qt, vb[nb] + 12 + 4 * qt, None, c_, qt, False)
                    s.pending_st.append((ops, dn + 4, dn + 34, vb.get(nb)))
                if nb in vb: vfree[vb[nb]] = dn + 36; live.discard(nb)
        s.pubA = tbar[seq[-1]]
        first2 = seq[2 * len(rest)]
        pub1 = tbar[first2]; pub2 = pubx
        wd = lambda ks: min(s.bar_req[pub1 if ks < 2 else pub2][0] - LA - 4, tst[first2] + 6 * ks - 3)
        last1 = s.o_finish(1, i1, lambda ks, qt: wd(ks))
        g0 = i1['pv_last'] + 6
        pre1 = s.chain([valu("v_lshlrev_b32", f"v{V_T}", "4", "v0"), salu("s_mul_i32", f"s{S_T1}", f"s{S_W}", "12288"),
                        valu("v_add_u32", f"v{V_T+1}", f"s{S_T1}", f"v{V_T}"), salu("s_xor_b32", f"s{S_T1}", f"s{S_W}", "2"), salu("s_mul_i32", f"s{S_T1}", f"s{S_T1}", "12288"),
                        valu("v_add_u32", f"v{V_T+2}", f"s{S_T1}", f"v{V_T}")], g0, g0 + 8, name="xpre")
        rd_end = tst[first2] + 24 + 18 - 6
        res = [s.fixed(f"XC_{sl}", sl, lambda sl: [], lead=0) for sl in (0, 1, 2)]
        for t in res:
            t.first_need = s.bar_req[i1['bar'][15]][0]; t.last_use = rd_end + 1; t.scratch = i1['bar'][15]; s.issued.add(t.name)
        def mkx():
            bw = s.barfill[i1['bar'][15]]
            for i, (ks, qt) in enumerate(fr):
                bp = s.barfill[pub1 if ks < 2 else pub2]; lf = last1[(ks, qt)]
                op = ds_write("ds_write_b128", f"v{V_T+1}", R('v', Oacc(2 * ks, qt), 4), i * 1024); op.note = (0, 1, 2)
                w_ = s.fill(op, max(lf.earliest, bw.earliest), bp.earliest, want=max(lf.want, bw.earliest) + 0.1 + i * 0.01, after=[lf, pre1, bw], name="xw1")
                bp.after.append(w_)
                op = ds_read("ds_read_b128", R('v', Oacc(2 * ks + 1, qt), 4), f"v{V_T+2}", i * 1024, slot=('X', 100))
                need = tst[first2] + 24 + 6 * ks
                s.xneed[id(op)] = need
                s.fill(op, bp.earliest, need - 6, want=bp.earliest + 1 + (i % 6) * 2, after=[bp], name="xr1")
        s.late.append(mkx)
        NG = len(s.MF)
        if dry: return None
        for gp in OPT.get('at', []): s.forced(stamp_ops(s.nst), gap=gp, name="stamp"); s.nst += 1
        s.tile_bar = {}; s.bars = []; s.barfill = []; prev = -2
        for (need, tiles) in s.bar_req:
            gg = max(need - LA - 1, prev + 1, -1)
            def mk(tiles, fence, stA):
                def f(p):
                    names = [t.name for t in tiles]
                    for t in tiles: assert t.name in s.issued, t.name
                    idx = max((i for i, op in enumerate(p.vm) if op.tag in names), default=-1)
                    if idx >= 0: p.wait_vm_tag(p.vm[idx].tag)
                    if stA: p.wait_vm_tag("stA")
                    if fence:
                        ix = max((i for i, op in enumerate(p.lgkm) if isinstance(op.slot, tuple) and op.slot[0] == 'X'), default=-1)
                        if ix >= 0: p.wait_lgkm(len(p.lgkm) - 1 - ix)
                    p.barrier()
                    if stA:
                        p.emit([valu("v_mov_b32", f"v{V_TA}", "1"), valu("v_mov_b32", f"v{V_TB}", "0"),
                                raw(f"s_cmp_lg_u32 s{S_W}, 0", 'S'), raw("s_cbranch_scc1 L_npa", 'S'), raw("s_mov_b64 exec, 1", 'S'),
                                raw(f"buffer_store_dword v{V_TA}, v{V_TB}, {SWS}, s101 offen sc1", 'S'), raw("s_mov_b64 exec, -1", 'S'), raw("L_npa:", 'X')])
                return f
            fence = any(hasattr(t, 'scratch') and prev < t.last_use <= gg for t in s.tiles)
            fl = Fill([mk(tiles, fence, len(s.barfill) == s.pubA)], gg, gg, want=-10**9, name="bar"); s.FL.append(fl); s.bars.append((gg, fl)); s.barfill.append(fl)
            for t in tiles: s.tile_bar[t.name] = fl
            prev = gg
        for cb in s.late: cb()
        for f in s.FL:
            if f.name == "xw" and f.deadline > s.xb_dead and f.earliest < s.xb_dead: f.deadline = s.xb_dead
        last = None
        for f, fr_ in enumerate(s.frags):
            e = s.frags[f - NFR]['u1'] if f >= NFR else -1
            b = s.tile_bar[fr_['tile'].name]; e = max(e, b.earliest)
            aft = [b, last] + [v for k, v in s.win_after if k == fr_['after']]
            for k, op in enumerate(fr_['reads']):
                last = s.fill(op, e, fr_['u0'] - 1, want=fr_['u0'] - LA + k, after=aft, name="rd"); aft = [last]
        prevf = None; stf = {}
        for (ops, e, d, b) in s.pending_st:
            prevf = s.chain(ops, min(e, NG - 1), min(d, NG - 1), want0=e, step=1.0, after=[prevf], name="st"); stf.setdefault(b, []).append(prevf)
        for (ops, e, d, b) in s.unp:
            aft = [f for f in stf.get(b, []) if f.deadline <= e]
            s.chain(ops, e, d, want0=e, step=1.0, after=aft[-1:], name="unp")
        order_t = sorted(s.tiles, key=lambda t: t.first_need)
        occ = {}; plan = []; floor = (-1, s.bars[0][1])
        for t in order_t:
            pv = occ.get(t.slot); occ[t.slot] = t
            if hasattr(t, 'scratch'):
                assert pv.last_use <= s.barfill[t.scratch].earliest, (t.name, pv.name, pv.last_use, s.barfill[t.scratch].earliest)
            if t.name in s.issued: continue
            lu = pv.last_use if pv else -1
            bg = next(x for x in s.bars if x[0] >= lu)
            if bg[0] < floor[0] and not hasattr(t, 'want_issue'): bg = floor
            if t.name.startswith(("WQ0", "X0")): floor = bg
            ml = next((x for x in s.bars if x[0] >= getattr(t, 'want_issue', t.first_need - OPT['maxlead'])), bg)
            if ml[0] > bg[0] and ml[0] < s.tile_bar[t.name].earliest: bg = ml
            plan.append((int(bg[0]), t.first_need, t, bg[1]))
        plan.sort(key=lambda x: (x[0], (x[2].name[0] not in 'KV') if OPT['hb'] and x[0] > 440 else 0, x[1]))
        lastd = None; cur = 'WQ'
        groups = {}
        for x in plan: groups.setdefault(x[0], []).append(x)
        for (gg, need, t, bf) in plan:
            ops = list(t.ops)
            if t.name.startswith('WO') and cur == 'WQ': ops = set_L_wo() + ops; cur = 'WO'
            assert not (t.name.startswith('WQ') and cur == 'WO')
            same = groups[gg]; k0 = [x[2] for x in same].index(t)
            nextbar = next((x[0] for x in s.bars if x[0] > gg), NG)
            span = max(nextbar - gg - 4, 1); tot = 6 * len(same)
            dl = s.tile_bar[t.name].earliest - 1
            assert dl >= gg, (t.name, dl, gg)
            if OPT.get('verbose'): sys.stderr.write(f"{t.name} slot {t.slot} issue@{gg} pub@{dl+1} lead {dl+1-gg}\n")
            for k, op in enumerate(ops):
                w = gg + 1 + ((k0 * 6 + min(k, 5)) * span) / tot
                if gg < 0: w = -12 + (k0 * 6 + k) * 1.0
                elif OPT['hb'] and span > 60:
                    isH = t.name[0] in 'KV'
                    grp = [x[2] for x in same if (x[2].name[0] in 'KV') == isH]
                    a_, b_ = (OPT['h0'], OPT['h1']) if isH else (OPT['l0'], OPT['l1'])
                    w = gg + a_ + (grp.index(t) * 6 + min(k, 5)) * (b_ - a_) / (6.0 * len(grp)) - OPT['dlate'] * (op.kind == 'D')
                o = [op]
                if k == len(ops) - 1: o = [op, (lambda nm: (lambda p: s.issued.add(nm)))(t.name)]
                lastd = s.fill(o, gg, dl, want=w, after=[bf, lastd], name="dma " + t.name)
        s.weave()
        s.P.emit(stamp_ops(s.nst)); s.nst += 1
        return s.P
    def allocate(s):
        bars = []; pub = {}; prev = -2
        for (need, tiles) in s.bar_req:
            gg = max(need - LA - 1, prev + 1, -1); bars.append(gg); prev = gg
            for t in tiles: pub[t.name] = gg
        for t in s.tiles:
            if hasattr(t, 'scratch'): pub[t.name] = bars[t.scratch] + 0.5
        def nb(x): return next((b for b in bars if b >= x), 10**7)
        tl = sorted(s.tiles, key=lambda t: t.first_need)
        fixed = {}
        for t in tl:
            if t.cands is None: fixed.setdefault(t.slot, []).append(t)
        rel = {sl: -1 for sl in range(10)}; al = {}
        for t in tl:
            if t.cands is None: rel[t.slot] = t.last_use; continue
            best = None
            for sl in t.cands:
                nx = next((f for f in fixed.get(sl, []) if f.first_need > t.first_need), None)
                cost = 0
                if nx:
                    r_ = nb(t.last_use)
                    if r_ >= pub[nx.name]: cost += 10**8
                    cost += 4 * max(0, r_ - min(pub[nx.name] - nx.lead, getattr(nx, 'want_issue', 10**9)))
                ib = nb(rel[sl])
                if ib >= pub[t.name]: cost += 10**9
                cost += max(0, ib - (pub[t.name] - 100))
                key = (cost, ib, sl)
                if best is None or key < best[0]: best = (key, sl)
            assert best[0][0] < 10**8, (t.name, best)
            al[t.name] = best[1]; rel[best[1]] = t.last_use
        return al
    def weave(s):
        P = s.P; mf = s.MF; by_e = {}
        for f in s.FL: by_e.setdefault(max(int(f.earliest), -1), []).append(f)
        act = []; pen = 0
        need_at = dict(s.xneed)
        for fr in s.frags:
            for op in fr['reads']: need_at[id(op)] = fr['u0']
        issue_gap = {}
        HZ = OPT['hz']; DLATE = OPT['dlate']; LLATE = OPT['llate']; WAH = OPT['wah']
        def ready(f): return all(a.done for a in f.after)
        def kind(f): return cat(f.ops[0]) if len([o for o in f.ops if not callable(o)]) == 1 and not callable(f.ops[0]) else 'X'
        def put(f, g):
            P.emit(f.ops); f.done = True; act.remove(f)
            for o in f.ops:
                if not callable(o) and o.kind == 'L': issue_gap[id(o)] = g
        for g in range(-1, len(mf)):
            if g >= 0: P.emit(mf[g])
            act += by_e.get(g, [])
            used = []
            while True:
                fo = [f for f in act if f.deadline <= g]
                if not fo: break
                def pick(f):
                    for a in f.after:
                        if not a.done: return pick(a)
                    return f
                fo.sort(key=lambda f: f.want)
                f = pick(fo[0]); assert f in act, (f.name, f.earliest, g, fo[0].name)
                put(f, g); used.append(kind(f))
            if g >= 0:
                def room(k):
                    if not used: return True
                    if len(used) >= 2 or used[0] in 'EDX': return False
                    return True
                def best(kinds, lim):
                    c = [f for f in act if kind(f) in kinds and f.want <= lim and ready(f)]
                    return min(c, key=lambda f: f.want) if c else None
                def take(f): put(f, g); used.append(kind(f))
                if not used:
                    f = best('L', g) or best('E', g + 10**6) or best('D', g + HZ) or best('L', g + HZ) or best('X', g + HZ)
                    if f: take(f)
                if len(used) == 1 and used[0] == 'L':
                    f = best('D', g - DLATE) or best('L', g - LLATE)
                    if f: take(f); pen += 1
                for _ in range(2):
                    if room('V'):
                        f = best('S', g + 1) or best('VS', g + HZ)
                        if f: take(f)
                full = len(used) >= 2 or (used and used[0] in 'EDX')
                if P.lgkm:
                    nxt = min((need_at.get(id(o), 10**9) for o in P.lgkm), default=10**9)
                    if (not full and nxt - g <= WAH) or nxt <= g + 1:
                        k = 0
                        for o in P.lgkm:
                            if issue_gap.get(id(o), g) <= g - LAT or need_at.get(id(o), 10**9) <= g + 1: k += 1
                            else: break
                        for q_, o in enumerate(P.lgkm):
                            if need_at.get(id(o), 10**9) <= g + 1: k = max(k, q_ + 1)
                        covers = any(need_at.get(id(o), 10**9) == nxt for o in P.lgkm[:k]) and not any(need_at.get(id(o), 10**9) == nxt for o in P.lgkm[k:])
                        if k and covers:
                            P.wait_lgkm(len(P.lgkm) - k)
                            if full: pen += 1
            if len(used) > 2: pen += len(used) - 2
        assert not act, [(f.name, f.earliest, f.deadline) for f in act]
        sys.stderr.write(f"MFMA {len(mf)} instrs {len(P.out)} nops {P.nops} pen {pen} stats {P.stats}\n")

_old_barrier = Prog.barrier
def _barrier(p):
    idx = max((i for i, op in enumerate(p.lgkm) if op.txt.startswith('ds_write')), default=-1)
    if idx >= 0: p.wait_lgkm(len(p.lgkm) - 1 - idx)
    _old_barrier(p)
Prog.barrier = _barrier
_old_emit = Prog.emit
def _emit(p, ins):
    if isinstance(ins, I):
        tgt = []
        if ins.kind == 'D' and ins.slot is not None: tgt = [ins.slot]
        if ins.kind == 'L' and ins.txt.startswith('ds_write') and getattr(ins, 'note', None): tgt = list(ins.note)
        for sl in tgt:
            for u in p.unsafe:
                assert not (u == sl or (isinstance(u, tuple) and sl in u)), f"write into slot {sl} while reads unfenced ({u}): {ins.txt}"
    _old_emit(p, ins)
Prog.emit = _emit

def slow_path():
    P = Prog(); E = P.emit
    E(raw("L_slow:", 'X'))
    E(raw("s_nop 15", 'W')); E(raw("s_waitcnt vmcnt(0) lgkmcnt(0)", 'W'))
    SS = V_S; KF = V_S + 12; NMX = V_S + 28; ta, tv = V_S + 40, V_S + 41
    MX = Preg(1, 0); PB = Preg(1, 0) + 6
    E(salu("s_lshl_b32", "s50", f"s{S_HD}", "17")); E(salu("s_add_u32", "s48", "s48", "s50"))
    E(valu("v_and_b32", f"v{tv}", "15", "v0")); E(valu("v_lshlrev_b32", f"v{ta}", "8", f"v{tv}"))
    E(valu("v_lshrrev_b32", f"v{KF}", "4", "v0")); E(valu("v_lshl_add_u32", f"v{ta}", f"v{KF}", "4", f"v{ta}"))
    E(valu("v_lshlrev_b32", f"v{tv}", "1", f"v{tv}")); E(valu("v_lshl_add_u32", f"v{tv}", f"v{KF}", "10", f"v{tv}"))
    for qt in range(3): E(valu("v_mov_b32", f"v{MX+2*qt}", "0xff7fffff"))
    def scores(c):
        for ks in range(4):
            E(raw(f"buffer_load_dwordx4 v[{KF+4*ks}:{KF+4*ks+3}], v{ta}, {SK}, s49 offen offset:{64*ks}", 'D', rd=[f"v{ta}"], wr=[f"v[{KF+4*ks}:{KF+4*ks+3}]"]))
        for ks in range(4):
            for qt in range(3):
                E(mfma(R('v', SS + 4 * qt, 4), R('v', KF + 4 * ks, 4), QF(ks, qt), c(qt) if ks == 0 else R('v', SS + 4 * qt, 4)))
    def loop_end(lab):
        E(raw("s_nop 15", 'W')); E(raw("s_waitcnt vmcnt(0) lgkmcnt(0)", 'W')); P.vm = []; P.lgkm = []
        E(salu("s_add_u32", "s49", "s49", "4096")); E(salu("s_add_u32", "s51", "s51", "1"))
        E(raw("s_cmp_lt_u32 s51, 32", 'S')); E(raw(f"s_cbranch_scc1 {lab}", 'S'))
    E(salu("s_mov_b32", "s49", "s48")); E(salu("s_mov_b32", "s51", "0"))
    E(raw("L_sl1:", 'X'))
    scores(lambda qt: "0")
    for qt in range(3):
        x = SS + 4 * qt
        E(valu("v_max3_f32", f"v{MX+2*qt}", f"v{MX+2*qt}", f"v{x}", f"v{x+1}")); E(valu("v_max3_f32", f"v{MX+2*qt}", f"v{MX+2*qt}", f"v{x+2}", f"v{x+3}"))
    loop_end("L_sl1")
    for qt in range(3):
        a, b = f"v{MX+2*qt}", f"v{MX+2*qt+1}"
        E(valu("v_mov_b32", b, a)); E(valu("v_permlane16_swap_b32", a, b)); E(valu("v_max_f32", a, a, b))
        E(valu("v_mov_b32", b, a)); E(valu("v_permlane32_swap_b32", a, b)); E(valu("v_max_f32", a, a, b))
        for k in range(4): E(valu("v_sub_f32", f"v{NMX+4*qt+k}", "0", a))
    for k in range(96): E(valu("v_mov_b32", f"v{V_O+k}", "0"))
    for k in range(12): E(valu("v_accvgpr_write_b32", f"a{A_L+k}", "0"))
    E(salu("s_mov_b32", "s49", "s48")); E(salu("s_mov_b32", "s51", "0"))
    E(raw("L_sl2:", 'X'))
    scores(lambda qt: R('v', NMX + 4 * qt, 4))
    for k in range(12): E(valu("v_exp_f32", f"v{SS+k}", f"v{SS+k}"))
    for qt in range(3):
        for h in range(2): E(valu("v_cvt_pk_bf16_f32", f"v{PB+2*qt+h}", f"v{SS+4*qt+2*h}", f"v{SS+4*qt+2*h+1}"))
    E(raw("s_nop 7", 'W'))
    M16 = "v_mfma_f32_16x16x16_bf16"
    for qt in range(3): E(mfma(R('a', A_L + 4 * qt, 4), R('a', A_ONE, 2), R('v', PB + 2 * qt, 2), R('a', A_L + 4 * qt, 4), op=M16))
    for dh in range(2):
        for d4 in range(4):
            for h in range(2):
                for half in range(2):
                    E(raw(f"buffer_load_ushort v{KF+8*half+2*d4+h}, v{tv}, {SV}, s49 offen offset:{(2*h+half)*256+32*(4*dh+d4)}", 'D', rd=[f"v{tv}"], wr=[f"v{KF+8*half+2*d4+h}"]))
        for k in range(8): E(valu("v_lshl_or_b32", f"v{KF+k}", f"v{KF+8+k}", "16", f"v{KF+k}"))
        for d4 in range(4):
            for qt in range(3): E(mfma(R('v', Oacc(4 * dh + d4, qt), 4), R('v', KF + 2 * d4, 2), R('v', PB + 2 * qt, 2), R('v', Oacc(4 * dh + d4, qt), 4), op=M16))
        E(raw("s_nop 7", 'W'))
    loop_end("L_sl2")
    for k in range(12): E(valu("v_mov_b32", f"v{Preg(1,0)+k}", "0"))
    for qt in range(3): E(valu("v_accvgpr_read_b32", f"v{RL[qt]}", f"a{A_L+4*qt}"))
    E(raw("s_nop 7", 'W'))
    E(raw(f"s_setpc_b64 {S_RET}", 'S'))
    return P

def final(nst, CORD):
    P = Prog(); E = P.emit
    LDF = " sc1"
    E(raw("L_final:", 'X'))
    E(valu("v_min_u32", "v26", "7", "v0")); E(valu("v_lshlrev_b32", "v26", "3", "v26")); E(salu("s_mov_b32", "s61", lit(8 * 108 * 1024)))
    PL = f"buffer_load_dwordx2 v[4:5], v26, {SWS}, s99 offen sc1"
    E(salu("s_mov_b32", "s99", lit(8 * 108 * 1024)))
    E(valu("v_lshlrev_b32", "v2", "4", "v0"))
    E(salu("s_lshl_b32", "s52", "s46", "2")); E(salu("s_add_u32", "s52", "s52", f"s{S_W}"))
    E(salu("s_mov_b32", "s64", "s68")); E(salu("s_and_b32", "s65", "s69", "0xffff")); E(salu("s_mov_b32", "s66", lit(16 * 96 * 1152 * 2))); E(salu("s_mov_b32", "s67", "0x20000"))
    E(valu("v_and_b32", "v6", "15", "v0")); E(valu("v_mul_u32_u24", "v6", "2304", "v6"))
    E(valu("v_lshrrev_b32", "v7", "4", "v0")); E(valu("v_lshl_add_u32", "v6", "v7", "3", "v6"))
    E(valu("v_mov_b32", "v24", "0x3f80")); E(valu("v_mov_b32", "v25", "0x3f800000"))
    tab = sum(p << (4 * c) for c, p in enumerate(CORD))
    E(salu("s_mov_b32", "s62", lit(tab & 0xffffffff))); E(salu("s_mov_b32", "s63", lit(tab >> 32)))
    E(salu("s_mul_i32", "s60", "s44", str(96 * 2304))); E(salu("s_mul_i32", "s61", "s42", "1152")); E(salu("s_add_u32", "s60", "s60", "s61"))
    for k in range(4):
        E(salu("s_add_u32", "s53", "s52", str(32 * k)))
        E(salu("s_mul_hi_u32", "s54", "s53", str((2**32 + 11) // 12)))
        E(salu("s_mul_i32", "s55", "s54", "12")); E(salu("s_sub_u32", "s55", "s53", "s55"))
        E(salu("s_lshl_b32", "s54", "s54", "2")); E(raw("s_lshr_b64 s[36:37], s[62:63], s54", 'S', wr=["s[36:37]"])); E(salu("s_and_b32", "s36", "s36", "15"))
        E(salu("s_lshl_b32", "s36", "s36", "7")); E(salu("s_add_u32", "s36", "s36", "s41")); E(salu("s_sub_u32", "s37", "s36", "1152")); E(salu("s_min_u32", "s36", "s36", "s37"))
        E(raw("s_cmp_ge_u32 s55, 6", 'S')); E(raw("s_cselect_b32 s37, 64, 0", 'S', wr=["s37"])); E(raw("s_cselect_b32 s54, 6, 0", 'S', wr=["s54"]))
        E(salu("s_sub_u32", "s55", "s55", "s54")); E(salu("s_mul_i32", "s55", "s55", str(16 * 2304)))
        E(salu("s_add_u32", "s55", "s55", "s36")); E(salu("s_add_u32", "s55", "s55", "s37")); E(salu("s_add_u32", f"s{56+k}", "s55", "s60"))
        if k == 3: E(raw("s_cmp_lt_u32 s52, 12", 'S')); E(raw("s_cselect_b32 s59, s59, 0x70000000", 'S', wr=["s59"]))
    E(raw("s_waitcnt vmcnt(0) lgkmcnt(0)", 'W'))
    E(stamp_ops(nst)); nst += 1
    E(raw(f"s_cmp_lg_u32 s{S_W}, 0", 'S')); E(raw("s_cbranch_scc1 L_hok", 'S'))
    E(salu("s_mov_b32", "s48", "s70")); E(salu("s_and_b32", "s49", "s71", "0xffff")); E(salu("s_mov_b32", "s50", "256")); E(salu("s_mov_b32", "s51", "0x20000"))
    E(salu("s_lshl_b32", "s55", "s40", "3")); E(salu("s_mov_b32", "s53", "0"))
    E(raw("L_hp:", 'X'))
    E(raw(f"v_readfirstlane_b32 s54, v{V_H+7}", 'V')); E(raw("s_add_u32 s53, s53, 1", 'S')); E(raw("s_nop 1", 'W'))
    E(raw("s_cmp_ge_u32 s54, 8", 'S')); E(raw("s_cbranch_scc1 L_hok", 'S'))
    E(raw("s_sleep 16", 'S'))
    E(raw(f"buffer_load_dword v{V_H+7}, v{V_TB}, s[48:51], s55 offen sc1", 'D')); E(raw("s_waitcnt vmcnt(0)", 'W'))
    E(raw("s_cmp_lt_u32 s53, 0x400000", 'S')); E(raw("s_cbranch_scc1 L_hp", 'S'))
    E(raw("L_hok:", 'X'))
    E(raw("s_barrier", 'B'))
    E(raw(f"s_cmp_lg_u32 s{S_W}, 0", 'S')); E(raw("s_cbranch_scc1 L_npb", 'S'))
    E(raw("s_mov_b64 exec, 1", 'S'))
    E(raw(f"buffer_store_dword v{V_TA}, v{V_TB}, {SWS}, s101 offen offset:4 sc1", 'D'))
    E(raw("s_mov_b64 exec, -1", 'S'))
    E(raw("L_npb:", 'X'))
    def poll(reg, tag, first):
        E(salu("s_mov_b32", "s53", "0"))
        if first: E(raw(f"s_branch L_pl{tag}", 'S'))
        E(raw(f"L_poll{tag}:", 'X'))
        E(raw(f"v_cmp_eq_u32 vcc, 1, v{reg}", 'V')); E(raw("s_add_u32 s53, s53, 1", 'S')); E(raw("s_nop 1", 'W'))
        E(raw("s_cmp_eq_u64 vcc, -1", 'S')); E(raw(f"s_cbranch_scc1 L_pd{tag}", 'S'))
        if OPT['psleep']: E(raw(f"s_sleep {OPT['psleep']}", 'S'))
        E(raw(f"L_pl{tag}:", 'X'))
        E(raw(PL, 'D')); E(raw("s_waitcnt vmcnt(0)", 'W'))
        E(raw("s_cmp_lt_u32 s53, 0x400000", 'S')); E(raw(f"s_cbranch_scc1 L_poll{tag}", 'S'))
        E(raw(f"L_pd{tag}:", 'X'))
        P.vm = []
    def loads(k):
        E(salu("s_add_u32", "s53", "s52", str(32 * k))); E(salu("s_lshl_b32", "s53", "s53", "10"))
        if k == 3: E(raw("s_cmp_lt_u32 s52, 12", 'S')); E(raw("s_cselect_b32 s53, s53, 0x70000000", 'S', wr=["s53"]))
        for j in range(8):
            d = 32 + 32 * k + 4 * j
            E(raw(f"buffer_load_dwordx4 v[{d}:{d+3}], v2, {SWS}, s53 offen" + LDF, 'D', rd=["v2", "s53"], wr=[f"v[{d}:{d+3}]"]))
            if j < 7: E(salu("s_add_u32", "s53", "s53", str(108 * 1024)))
    def red(k):
        acc = 8
        for j in range(8):
            d = 32 + 32 * k + 4 * j
            for c in range(4):
                E(valu("v_dot2_f32_bf16", f"v{acc+2*c}", f"v{d+c}", "v24", "0" if j == 0 else f"v{acc+2*c}"))
                E(valu("v_dot2_f32_bf16", f"v{acc+2*c+1}", f"v{d+c}", "v25", "0" if j == 0 else f"v{acc+2*c+1}"))
        E(raw("s_nop 2", 'W'))
        o = 16 + 4 * (k & 1)
        for c in range(4): E(valu("v_cvt_pk_bf16_f32", f"v{o+c}", f"v{acc+2*c}", f"v{acc+2*c+1}"))
        E(raw(f"buffer_store_dwordx2 v[{o}:{o+1}], v6, s[64:67], s{56+k} offen", 'D', rd=[f"v[{o}:{o+1}]"]))
        E(raw(f"buffer_store_dwordx2 v[{o+2}:{o+3}], v6, s[64:67], s{56+k} offen offset:32", 'D', rd=[f"v[{o+2}:{o+3}]"]))
        E(raw("s_nop 2", 'W'))
    poll(4, "A", True)
    loads(0); loads(1)
    E(raw(PL, 'D', wr=["v[4:5]"]))
    red(0); red(1)
    E(raw("s_waitcnt vmcnt(4)", 'W'))
    poll(5, "B", False)
    E(stamp_ops(nst)); nst += 1
    loads(2); loads(3)
    red(2); red(3)
    if OPT['stamp']:
        E(raw("s_waitcnt vmcnt(0)", 'W'))
        E(stamp_ops(nst)); nst += 1
        E(salu("s_lshl_b32", "s40", "s2", "2")); E(salu("s_add_u32", "s40", "s40", f"s{S_W}")); E(salu("s_lshl_b32", "s40", "s40", "7"))
        E(salu("s_add_u32", "s40", "s40", hex(64 << 20)))
        E(salu("s_add_u32", "s72", "s72", "s40")); E(salu("s_addc_u32", "s73", "s73", "0"))
        E(valu("v_mov_b32", "v1", "0"))
        for k in range(nst):
            E(valu("v_mov_b32", "v2", f"s{78+k}")); E(valu("v_mov_b32", "v3", f"s{89+k}"))
            E(raw(f"global_store_dword v1, v2, s[72:73] offset:{4*k}", 'D', rd=['v1', 'v2']))
            E(raw(f"global_store_dword v1, v3, s[72:73] offset:{64+4*k}", 'D', rd=['v1', 'v3'])); E(raw("s_nop 1", 'W'))
        sys.stderr.write(f"stamps {nst}\n")
    E(raw("s_endpgm", 'X'))
    return P


d = Build({}); d.build(dry=True); al = d.allocate()
b = Build(al); P = b.build()
parts = [P0.text(), P.text(), final(b.nst, b.CORD).text()]
if OPT['slow']: parts.append(slow_path().text())
parts.append("L_end0:\ns_endpgm\nL_codeend:")
body = "\n".join(parts)

import re
MAC = """.macro mf d,a,b,c
v_mfma_f32_16x16x32_bf16 \\d,\\a,\\b,\\c
.endm
.macro tr d,a,o
ds_read_b64_tr_b16 \\d,\\a offset:\\o
.endm
.macro rq d,a,o
ds_read_b128 \\d,\\a offset:\\o
.endm
.macro dn v,r,s,o
buffer_load_dwordx4 \\v,\\r,\\s offen offset:\\o nt lds
.endm
.macro dl v,r,s,o
buffer_load_dwordx4 \\v,\\r,\\s offen offset:\\o lds
.endm
.macro wl n
s_waitcnt lgkmcnt(\\n)
.endm
.macro cv d,a,b
v_cvt_pk_bf16_f32 \\d,\\a,\\b
.endm
.macro ex d
v_exp_f32 \\d,\\d
.endm
"""
def compact(l):
    if l.startswith("v_mfma_f32_16x16x32_bf16 "): return "mf " + l[25:].replace(", ", ",")
    m = re.fullmatch(r"ds_read_b64_tr_b16 (\S+), (\S+) offset:(\d+)", l)
    if m: return f"tr {m.group(1)},{m.group(2)},{m.group(3)}"
    m = re.fullmatch(r"ds_read_b128 (\S+), (\S+) offset:(\d+)", l)
    if m: return f"rq {m.group(1)},{m.group(2)},{m.group(3)}"
    m = re.fullmatch(r"buffer_load_dwordx4 (\S+), (\S+), (\S+) offen offset:(\d+) (nt )?lds", l)
    if m: return f"{'dn' if m.group(5) else 'dl'} {m.group(1)},{m.group(2)},{m.group(3)},{m.group(4)}"
    m = re.fullmatch(r"s_waitcnt lgkmcnt\((\d+)\)", l)
    if m: return f"wl {m.group(1)}"
    m = re.fullmatch(r"v_cvt_pk_bf16_f32 (\S+), (\S+), (\S+)", l)
    if m: return f"cv {m.group(1)},{m.group(2)},{m.group(3)}"
    m = re.fullmatch(r"v_exp_f32 (\S+), (\S+)", l)
    if m and m.group(1) == m.group(2): return f"ex {m.group(1)}"
    return l
if OPT.get('compact', 1): body = "\n".join(compact(l) for l in body.split("\n"))
else: MAC = ""

def kd(name, vg, acc):
    return f""".amdhsa_kernel {name}
  .amdhsa_next_free_vgpr {vg}
  .amdhsa_next_free_sgpr 102
  .amdhsa_accum_offset {acc}
  .amdhsa_group_segment_fixed_size 0
  .amdhsa_kernarg_size 104
  .amdhsa_user_sgpr_count 2
  .amdhsa_user_sgpr_kernarg_segment_ptr 1
  .amdhsa_system_sgpr_workgroup_id_x 1
.end_amdhsa_kernel
"""
txt = f"""; generated by gen/gen5.py (hand-written generator; fused Qproj + attention + Oproj + in-kernel reduction)
; @launch grid=(256,1,1) block=(256,1,1) lds=163840
.amdgcn_target "amdgcn-amd-amdhsa--gfx950"
{MAC}.text
.globl {NAME}_kernel
.p2align 8
.type {NAME}_kernel,@function
{NAME}_kernel:
""" + body + '\n.section .rodata,"a"\n.p2align 6\n' + kd(NAME + "_kernel", 512, 256)
open(sys.argv[1], "w").write(txt)
```

```python
import re

def regs(spec):
    m = re.fullmatch(r'([vas])\[(\d+):(\d+)\]', spec)
    if m: return [(m.group(1), i) for i in range(int(m.group(2)), int(m.group(3)) + 1)]
    m = re.fullmatch(r'([vas])(\d+)', spec)
    if m: return [(m.group(1), int(m.group(2)))]
    if spec in ('vcc', 'm0', 'exec', 'scc'): return [(spec, 0)]
    return []

def R(kind, base, n=1):
    return f"{kind}{base}" if n == 1 else f"{kind}[{base}:{base+n-1}]"

class I:
    __slots__ = ('txt', 'kind', 'rd', 'wr', 'srcC', 'tag', 'slot', 'note', 'perm', 'wide_store')
    def __init__(s, txt, kind, rd=(), wr=(), srcC=(), tag=None, slot=None, perm=False, wide_store=False):
        s.txt = txt; s.kind = kind
        s.rd = set(r for x in rd for r in regs(x)); s.wr = set(r for x in wr for r in regs(x))
        s.srcC = tuple(r for x in srcC for r in regs(x))
        s.tag = tag; s.slot = slot; s.perm = perm; s.wide_store = wide_store

def mfma(d, a, b, c, op="v_mfma_f32_16x16x32_bf16"):
    return I(f"{op} {d}, {a}, {b}, {c}", 'M', rd=[a, b, c], wr=[d], srcC=[c])
def valu(op, d, *src, extra="", wr_extra=(), rd_extra=()):
    k = 'E' if op in ('v_exp_f32', 'v_rcp_f32', 'v_log_f32', 'v_rsq_f32') else 'V'
    perm = op.startswith('v_permlane')
    rd = list(src) + list(rd_extra); wr = [d] + list(wr_extra)
    if perm: rd = [d] + list(src); wr = [d] + list(src)
    rd = [x.lstrip('-') for x in rd]
    return I(f"{op} {d}, " + ", ".join(src) + extra, k, rd=rd, wr=wr, perm=perm)
def salu(op, d, *src):
    return I(f"{op} {d}" + "".join(", " + x for x in src), 'S', rd=list(src), wr=[d])
def ds_read(op, d, addr, off, slot=None):
    assert 0 <= off <= 65535, off
    return I(f"{op} {d}, {addr} offset:{off}", 'L', rd=[addr], wr=[d], slot=slot)
def ds_write(op, addr, data, off, slot=None):
    assert 0 <= off <= 65535, off
    return I(f"{op} {addr}, {data} offset:{off}", 'L', rd=[addr, data], wr=[], slot=slot)
def dma(voff, srd, soff, imm, flags="", tag=None, slot=None):
    assert 0 <= imm <= 4095
    return I(f"buffer_load_dwordx4 {voff}, {srd}, {soff} offen offset:{imm} {flags} lds".replace("  ", " "), 'D', rd=[voff, srd, soff, 'm0'], wr=[], tag=tag, slot=slot)
def raw(txt, kind='X', rd=(), wr=(), **kw):
    return I(txt, kind, rd=rd, wr=wr, **kw)

class Prog:
    def __init__(s):
        s.out = []
        s.lgkm = []
        s.vm = []
        s.slot_reads_pending = {}
        s.unsafe = {}
        s.nops = 0
        s.stats = {}
    def _need(s, new):
        need = 0
        dist = 0
        skip_to = None; seen = 0
        for prev in reversed(s.out):
            seen += 1
            if seen > 80: break
            if prev.kind == 'X' and prev.txt.endswith(':') and '\n' not in prev.txt:
                lab = prev.txt[:-1]
                if any(('branch' in q.txt and q.txt.split()[-1] == lab) for q in s.out[-(seen + 40):-seen] if True): skip_to = lab
                continue
            if skip_to and 'branch' in prev.txt and prev.txt.split()[-1] == skip_to: skip_to = None
            if dist >= 20 and not skip_to: break
            req = 0
            pk, nk = prev.kind, new.kind
            if pk in 'VE':
                vw = {r for r in prev.wr if r[0] in 'va'}
                sw = {r for r in prev.wr if r[0] in ('s', 'vcc')}
                if nk == 'M' and vw & new.rd: req = max(req, 2)
                if new.perm and vw & new.rd: req = max(req, 2)
                if new.txt.startswith(('v_readfirstlane', 'v_readlane')) and vw & new.rd: req = max(req, 1)
                if pk == 'E' and nk in 'V' and vw & (new.rd | new.wr): req = max(req, 1)
                if pk == 'E' and nk in 'LD' and vw & new.rd: req = max(req, 1)
                if nk == 'D' and sw & new.rd: req = max(req, 5)
                if nk in 'VE' and sw & new.rd: req = max(req, 2)
                if ('exec', 0) in prev.wr and nk == 'M': req = max(req, 4)
            if pk == 'M':
                p8 = '32x32' in prev.txt
                d = prev.wr
                if nk == 'M':
                    ab = new.rd - set(new.srcC)
                    if d & ab: req = max(req, 12 if p8 else 8)
                    if d & set(new.srcC):
                        if set(new.srcC) != d: req = max(req, 10 if p8 else 6)
                    elif d & new.wr: req = max(req, 10 if p8 else 6)
                elif nk in 'VELD':
                    if d & (new.rd | new.wr): req = max(req, 12 if p8 else 8)
                if nk in 'VE' and set(prev.srcC) & new.wr: req = max(req, 7 if p8 else 3)
            if pk == 'S' and ('m0', 0) in prev.wr and nk == 'D' and ('m0', 0) in new.rd: req = max(req, 1)
            if pk == 'D' and prev.wide_store and nk in 'VEL' and (prev.rd & new.wr): req = max(req, 2)
            if pk == 'L' and prev.txt.startswith('ds_write_b128') and nk in 'VE' and (prev.rd & new.wr): req = max(req, 2)
            need = max(need, req - dist)
            m = re.match(r's_nop (\d+)', prev.txt)
            if not skip_to: dist += (int(m.group(1)) + 1) if m else 1
        return max(0, need)
    def _push(s, ins):
        n = s._need(ins)
        if n > 0:
            s.nops += n
            while n > 0:
                k = min(n, 16)
                s.out.append(I(f"s_nop {k-1}", 'W')); n -= k
        s.out.append(ins)
        s.stats[ins.kind] = s.stats.get(ins.kind, 0) + 1
    def wait_lgkm(s, n):
        n = min(n, 15)
        if len(s.lgkm) > n:
            done = s.lgkm[:len(s.lgkm) - n]
            s.lgkm = s.lgkm[len(s.lgkm) - n:]
            s._push(I(f"s_waitcnt lgkmcnt({n})", 'W'))
            s._update_unsafe()
    def _update_unsafe(s):
        pend = {op.slot for op in s.lgkm if op.slot is not None}
        for sl, st in list(s.unsafe.items()):
            if st == 'issued' and sl not in pend: s.unsafe[sl] = 'waited'
    def wait_vm_tag(s, tag):
        idx = max((i for i, op in enumerate(s.vm) if op.tag == tag), default=-1)
        if idx < 0: return
        n = len(s.vm) - 1 - idx
        n = min(n, 63)
        s.vm = s.vm[len(s.vm) - n:] if n else []
        s._push(I(f"s_waitcnt vmcnt({n})", 'W'))
    def wait_vm_all(s):
        s.vm = []
        s._push(I("s_waitcnt vmcnt(0)", 'W'))
    def barrier(s):
        s._push(I("s_barrier", 'B'))
        for sl, st in list(s.unsafe.items()):
            if st == 'waited': del s.unsafe[sl]
    def emit(s, ins):
        if isinstance(ins, (list, tuple)):
            for x in ins: s.emit(x)
            return
        if callable(ins):
            ins(s); return
        touch = ins.rd | ins.wr
        last = -1
        for i, op in enumerate(s.lgkm):
            if op.wr & touch: last = i
            elif ins.kind != 'L' and not op.wr and (op.rd & ins.wr) and False: last = i
        if last >= 0: s.wait_lgkm(len(s.lgkm) - 1 - last)
        last = -1
        for i, op in enumerate(s.vm):
            if op.wr & touch: last = i
        if last >= 0:
            n = min(len(s.vm) - 1 - last, 63)
            s.vm = s.vm[len(s.vm) - n:] if n else []
            s._push(I(f"s_waitcnt vmcnt({n})", 'W'))
        if ins.kind == 'D' and ins.slot is not None:
            assert ins.slot not in s.unsafe, f"DMA into slot {ins.slot} while reads not fenced ({s.unsafe[ins.slot]}): {ins.txt}"
        if ins.kind == 'L' and len(s.lgkm) >= 15:
            s.wait_lgkm(14)
        s._push(ins)
        if ins.kind == 'L':
            s.lgkm.append(ins)
            if ins.slot is not None: s.unsafe[ins.slot] = 'issued'
        if ins.kind == 'D':
            s.vm.append(ins)
            assert len(s.vm) <= 63 + 64
    def text(s):
        return "\n".join(i.txt for i in s.out)

class Fill:
    __slots__ = ('ops', 'earliest', 'deadline', 'want', 'cost', 'excl', 'after', 'done', 'name')
    def __init__(s, ops, earliest, deadline, want=None, after=(), name=""):
        s.ops = ops if isinstance(ops, list) else [ops]
        s.earliest = earliest
        s.deadline = deadline
        s.want = deadline if want is None else want
        s.after = list(after); s.done = False; s.name = name
        c = 0; ex = False
        for o in s.ops:
            if callable(o): c += 1; continue
            if o.kind == 'E': ex = True; c += 2
            elif o.kind in 'W': c += 0
            else: c += 1
        s.cost = c; s.excl = ex

def weave(prog, mf, fills, cap=2, horizon=10**9):
    pend = list(fills)
    over = 0
    for g in range(-1, len(mf)):
        if g >= 0: prog.emit(mf[g])
        used = 0; had_e = False
        while True:
            avail = [f for f in pend if f.earliest <= g and all(a.done for a in f.after)]
            if not avail: break
            forced = [f for f in avail if f.deadline <= g]
            if forced:
                forced.sort(key=lambda f: (f.excl, f.want))
                f = forced[0]
            else:
                if g == -1 or used >= cap or had_e: break
                cand = [f for f in avail if f.want - g <= horizon and used + f.cost <= cap]
                if not cand: break
                f = min(cand, key=lambda f: f.want)
            prog.emit(f.ops); f.done = True; pend.remove(f)
            used += f.cost; had_e = had_e or f.excl
        if used > cap and g >= 0: over += used - cap
    assert not pend, [(f.name, f.earliest, f.deadline) for f in pend]
    return over
```

```python
import sys, math, struct, re
from asmlib import *

NAME = "concat_heads__mha_block_cached__mha_block_cached__near_ridge"
OPT = dict(LA=13, LAT=7, dlate=8, llate=3, wah=4, hz=5, nt_kv=1, stamp=0, cpf=1, fake=0, slow=1, forceslow=0, compact=1, rot=1, psleep=8,
           leadh=110, epoll=1, epg=30, rdm=4, std1=40, std2=46, pfsc=1, q0t=0, q0tw=4, q0tx=9, pf2=7, pfa=12, pfb=8, pfc=8, up=0, krot=1, plead=70, ptb=1, xb2=3, nost=0, puba=2, ntt=0, ntw0=0, cpf2=0, cps=10, ntq0=0, pfw=0, pft0=6, pfd=2, early=3, e0=150, estep=48, pft=0, pfs=10, ntx=0, npl0=3, npl1=0, hb=0, h0=1, h1=30, l0=45, l1=62, stf=1, ldf=1, wb=0, maxlead=200, o0start=2)
for a in sys.argv[2:]:
    k, v = a.split('='); OPT[k] = int(v) if k != 'at' else [int(x) for x in v.split(',')]
LA, LAT = OPT['LA'], OPT['LAT']

V_TA, V_AO0, V_TB = 1, 2, 3
V_PFD = 'PFD'
V_AK, V_AV = 4, 8
V_KA, V_KB, V_VA, V_VB = 16, 17, 18, 19
V_L = 20; V_WO0 = 24; V_T = 25
V_QF = 28; V_O = 76; V_S = 172; V_P = 220; V_NM = 244; V_H = 248
A_L = 216; A_ONE = 228; A_FR = 232; NFR = 6
def QFr(ks, qt): return V_QF + 4 * (ks * 3 + qt)
def QF(ks, qt): return R('v', QFr(ks, qt), 4)
def Oacc(dt, qt): return V_O + 4 * (dt * 3 + qt)
def Sreg(buf, t, qt): return V_S + 24 * buf + 4 * (t * 3 + qt)
def Preg(buf, qt): return V_P + 12 * buf + 4 * qt
NMR = R('v', V_NM, 4)
RL = [V_NM, V_NM + 2, V_H + 6]
def XFr(p, qt): return 12 * p + 4 * qt
def QaccQS(dt, qt): return QFr(dt >> 1, qt) if dt % 2 == 0 else (V_S + 4 * ((dt >> 1) * 3 + qt))
OBA = [96 + 4 * i for i in range(18)] + [192 + 4 * i for i in range(6)]
def OBa(hh, ks, qt): return OBA[(hh * 4 + ks) * 3 + qt]
ACCB = [0, 24]
PARK = [48, 60, 72, 84, 168, 180]
S_W, S_W4K, S_W3K = 3, 4, 5
SK, SV, SWQ, SWO, SX, SWS = 's[8:11]', 's[12:15]', 's[16:19]', 's[20:23]', 's[24:27]', 's[28:31]'
S_OFF, S_C, S_T0, S_T1, S_HD, S_QH, S_ST = 32, 34, 36, 37, 38, 39, 33
S_RET = 's[6:7]'
SLOT = 16384
KPW = [52 + p for p in range(9)]
KPX = [61, 62, 63, 64, 65, 66, 67, 43, 45]
def lit(x): return hex(x & 0xffffffff)
cval = struct.unpack('<I', struct.pack('<f', math.log2(math.e) / math.sqrt(128.0)))[0]
NT = "nt" if OPT['nt_kv'] else ""
def win(slot): return (2, (slot - 6) * SLOT) if slot >= 6 else ((1, (slot - 3) * SLOT) if slot >= 3 else (0, slot * SLOT))
WBASE = [0, 3 * SLOT, 6 * SLOT]
AW = {2: V_H, 1: V_P}
AX = {2: V_H + 4, 0: V_P + 4}
AO = {2: V_H, 1: V_H + 2, 0: V_H + 4}

class Tile:
    def __init__(s, name, slot, ops, cands=None, lead=None):
        s.name = name; s.slot = slot; s.ops = ops; s.cands = cands; s.lead = lead
        s.last_use = None; s.first_need = None
def touch(v, srd, so, off=0): return raw(f"buffer_load_dword v{V_H+7}, {v}, {srd}, {so} offen offset:{off}" + (" sc1 nt" if OPT['pfsc'] else " nt"), 'D', rd=[v, srd, so], wr=[], tag="pf")
def x_ops(n, i, slot):
    return ([touch(f"v{V_TA}", SX, f"s{KPX[i]}")] if OPT['q0t'] and n.startswith("X0") and i < OPT['q0tx'] else []) + [salu("s_add_u32", "m0", f"s{S_W3K}", lit(slot * SLOT))] + [dma(f"v{V_T+j}", SX, f"s{KPX[i]}", 1024 * j, "nt" if (OPT['ntx'] or (OPT['ntq0'] and n.startswith("X0"))) else "", tag=n, slot=slot) for j in range(3)]
def w_ops(srd, n, sreg, off, slot):
    ops = [salu("s_add_u32", "m0", f"s{S_W4K}", lit(slot * SLOT))]; so = f"s{sreg}"
    if off: ops.append(salu("s_add_u32", f"s{S_OFF}", so, lit(off))); so = f"s{S_OFF}"
    if OPT['q0t'] and n.startswith("WQ0") and int(n[4:]) < OPT['q0tw']: ops.append(touch(f"v{V_TB}", srd, so))
    return ops + [dma(f"v{V_L+j}", srd, so, 1024 * j, "nt" if (((OPT['ntq0'] or OPT['ntw0']) and n.startswith("WQ0")) or (OPT['ntt'] and n.startswith(("WO2", "WO3")))) else "", tag=n, slot=slot) for j in range(4)]
def wq_ops(r, p, slot): return w_ops(SWQ, f"WQ{r}_{p}", KPW[p >> 1], (p & 1) * 262144 + r * 512, slot)
def wo_ops(h4, nb, slot): return w_ops(SWO, f"WO{h4}_{nb}", KPW[nb], h4 * 128 * 1152, slot)
def kv_ops(kind, r, n_, slot):
    n = f"{kind}{r}_{n_}"
    va, vb, srd = (V_KA, V_KB, SK) if kind == 'K' else (V_VA, V_VB, SV)
    ops = [salu("s_add_u32", "m0", f"s{S_W4K}", lit(slot * SLOT)), salu("s_mov_b32", f"s{S_OFF}", lit((n_ & 1) * 8192 if OPT['fake'] in (1, 2) else r * 262144 + n_ * 8192))]
    if OPT['krot'] and OPT['fake'] not in (1, 2):
        ops = ops[:1] + [salu("s_add_u32", f"s{S_OFF}", "s98", lit(n_ * 8192)), salu("s_and_b32", f"s{S_OFF}", f"s{S_OFF}", "0x1ffff")]
        if r == 1 and n_ == 0: ops = [valu("v_add_u32", f"v{va}", "0x40000", f"v{va}"), valu("v_add_u32", f"v{vb}", "0x40000", f"v{vb}")] + ops
    return ops + [dma(f"v{va}", srd, f"s{S_OFF}", 0, NT, tag=n, slot=slot), dma(f"v{va}", srd, f"s{S_OFF}", 1024, NT, tag=n, slot=slot),
                  dma(f"v{vb}", srd, f"s{S_OFF}", 2048, NT, tag=n, slot=slot), dma(f"v{vb}", srd, f"s{S_OFF}", 3072, NT, tag=n, slot=slot)]
def set_L_wo():
    ops = [valu("v_mov_b32", f"v{V_L}", f"v{V_WO0}")] + [valu("v_add_u32", f"v{V_L+j}", str(8192 * j), f"v{V_WO0}") for j in (1, 2, 3)]
    for p in range(9):
        if OPT['fake'] > 1: ops.append(salu("s_mov_b32", f"s{KPW[p]}", str((p & 1) * 128))); continue
        ops.append(raw(f"s_add_u32 s{KPW[p]}, s41, {128*p}\ns_sub_u32 s{S_OFF}, s{KPW[p]}, 1152\ns_min_u32 s{KPW[p]}, s{KPW[p]}, s{S_OFF}", 'X', rd=["s41"], wr=[f"s{KPW[p]}", f"s{S_OFF}"]))
    return ops
def set_addr_o(w):
    return [valu("v_add_u32", f"v{AO[w]}", lit(WBASE[w]), f"v{V_AO0}"), valu("v_xor_b32", f"v{AO[w]+1}", "32", f"v{AO[w]}")]
def stamp_ops(k):
    if not OPT['stamp']: return []
    return [lambda p: p.wait_lgkm(0), raw("s_memrealtime s[74:75]", 'S'), raw("s_memtime s[76:77]", 'S'), raw("s_waitcnt lgkmcnt(0)", 'W'),
            raw(f"s_mov_b32 s{78+k}, s74", 'S'), raw(f"s_mov_b32 s{89+k}, s76", 'S')]
PRE = {"X0_0": 0, "WQ0_0": 6, "WQ0_1": 7, "X0_1": 1}
if OPT['up'] >= 3: PRE.update({"WQ0_2": 3, "WQ0_3": 4})

P0 = Prog(); E = P0.emit
E(raw("s_cmp_ge_u32 s2, 256", 'S')); E(raw("s_cbranch_scc1 L_end0", 'S'))
E(raw("s_load_dwordx16 s[80:95], s[0:1], 0", 'S'))
E(raw("s_load_dwordx4 s[96:99], s[0:1], 64", 'S'))
E(raw("s_load_dwordx4 s[68:71], s[0:1], 80", 'S'))
E(raw("s_load_dwordx2 s[72:73], s[0:1], 96", 'S'))
if OPT['stamp']: E(raw("s_memrealtime s[74:75]", 'S')); E(raw("s_memtime s[76:77]", 'S'))
E(valu("v_lshrrev_b32", "v1", "6", "v0")); E(valu("v_and_b32", "v0", "63", "v0"))
E(valu("v_readfirstlane_b32", f"s{S_W}", "v1"))
E(salu("s_and_b32", "s40", "s2", "7")); E(salu("s_lshr_b32", "s41", "s2", "3"))
E(salu("s_lshr_b32", "s42", "s40", "2")); E(salu("s_and_b32", "s43", "s40", "3"))
E(salu("s_lshr_b32", "s44", "s41", "1")); E(salu("s_and_b32", "s45", "s41", "1"))
E(salu("s_lshl_b32", "s46", "s43", "1")); E(salu("s_add_u32", "s46", "s46", "s45"))
E(salu("s_mul_i32", "s48", "s45", "5")); E(salu("s_add_u32", "s48", "s48", "s44"))
for _ in range(2):
    E(salu("s_sub_u32", "s49", "s48", "9")); E(raw("s_cmp_ge_u32 s48, 9", 'S')); E(raw("s_cselect_b32 s48, s49, s48", 'S', wr=["s48"]))
if not OPT['rot'] or OPT['fake'] > 1: E(salu("s_mov_b32", "s48", "0"))
E(salu("s_lshl_b32", f"s{KPW[0]}", "s48", "19")); E(salu("s_lshl_b32", f"s{KPX[0]}", "s48", "7"))
E(salu("s_lshl_b32", f"s{S_W4K}", f"s{S_W}", "12")); E(salu("s_mul_i32", f"s{S_W3K}", f"s{S_W}", "3072"))
T = V_S
i16, g4, r4, c4, i5, t0, t1, t2 = (f"v{T+k}" for k in range(8))
E(valu("v_lshrrev_b32", i5, "5", "v0")); E(valu("v_and_b32", t2, "7", "v0"))
E(salu("s_mul_i32", f"s{S_T0}", f"s{S_W}", "24"))
for j in range(3):
    E(valu("v_lshrrev_b32", t0, "3", "v0")); E(valu("v_add3_u32", t0, t0, f"s{S_T0}", str(8 * j)))
    E(valu("v_bfe_u32", t1, t0, "1", "3")); E(valu("v_xor_b32", t1, t1, t2))
    E(valu("v_mul_u32_u24", t0, "1152", t0)); E(valu("v_lshl_add_u32", f"v{V_T+j}", t1, "4", t0))
    if j: E(valu("v_subrev_u32", f"v{V_T+j}", str(1024 * j), f"v{V_T+j}"))
E(salu("s_lshl_b32", f"s{S_T0}", f"s{S_W}", "3"))
E(valu("v_add_u32", t0, f"s{S_T0}", i5)); E(valu("v_lshlrev_b32", t0, "13", t0))
E(valu("v_and_b32", t1, "31", "v0")); E(valu("v_lshlrev_b32", t2, "2", i5)); E(valu("v_xor_b32", t1, t1, t2))
E(valu("v_lshl_add_u32", f"v{V_L}", t1, "4", t0))
E(valu("v_xor_b32", f"v{V_L+1}", "0x80", f"v{V_L}")); E(valu("v_add_u32", f"v{V_L+2}", str(2 * 15360), f"v{V_L}"))
E(valu("v_add_u32", f"v{V_L+3}", str(3 * 15360), f"v{V_L+1}")); E(valu("v_add_u32", f"v{V_L+1}", str(15360), f"v{V_L+1}"))
if OPT['q0t']:
    E(valu("v_min_u32", t0, "23", "v0")); E(salu("s_mul_i32", f"s{S_T1}", f"s{S_W}", "24")); E(valu("v_add_u32", t0, f"s{S_T1}", t0)); E(valu("v_mul_u32_u24", f"v{V_TA}", "1152", t0))
    E(valu("v_bfe_u32", t0, "v0", "2", "3")); E(valu("v_add_u32", t0, f"s{S_T0}", t0)); E(valu("v_lshlrev_b32", t0, "13", t0))
    E(valu("v_and_b32", t1, "3", "v0")); E(valu("v_lshl_add_u32", f"v{V_TB}", t1, "7", t0))
E(salu("s_mul_i32", f"s{S_T0}", "s44", "110592")); E(salu("s_lshl_b32", f"s{S_T1}", "s46", "10"))
E(salu("s_mov_b32", "s26", lit(110592))); E(salu("s_mov_b32", "s27", "0x20000"))
E(salu("s_sub_u32", "s18", lit(576 * 8192), f"s{S_T1}")); E(salu("s_mov_b32", "s19", "0x20000"))
E(raw("s_waitcnt lgkmcnt(0)", 'W'))
E(raw("s_cmp_eq_u32 s42, 0", 'S'))
for (d, a, b) in [(24, 80, 90), (16, 86, 96), (8, 82, 92), (12, 84, 94), (20, 88, 98)]:
    E(raw(f"s_cselect_b64 s[{d}:{d+1}], s[{a}:{a+1}], s[{b}:{b+1}]", 'S', wr=[f"s[{d}:{d+1}]"]))
if OPT['stamp']: E(raw("s_mov_b32 s78, s74", 'S')); E(raw("s_mov_b32 s89, s76", 'S'))
def srd_base(E, d, off_s):
    E(salu("s_add_u32", f"s{d}", f"s{d}", off_s)); E(salu("s_addc_u32", f"s{d+1}", f"s{d+1}", "0")); E(salu("s_and_b32", f"s{d+1}", f"s{d+1}", "0xffff"))
def srd_finish(E, d, off_s, size):
    srd_base(E, d, off_s); E(salu("s_mov_b32", f"s{d+2}", lit(size))); E(salu("s_mov_b32", f"s{d+3}", "0x20000"))
srd_base(E, 24, f"s{S_T0}"); E(x_ops("X0_0", 0, PRE["X0_0"]))
srd_base(E, 16, f"s{S_T1}"); E(wq_ops(0, 0, PRE["WQ0_0"]))
if OPT['up'] >= 1: E(wq_ops(0, 1, PRE["WQ0_1"]))
if OPT['up'] >= 2:
    E(salu("s_add_u32", f"s{KPX[1]}", f"s{KPX[0]}", "128")); E(salu("s_sub_u32", "s49", f"s{KPX[1]}", "1152")); E(salu("s_min_u32", f"s{KPX[1]}", f"s{KPX[1]}", "s49"))
    E(x_ops("X0_1", 1, PRE["X0_1"]))
if OPT['cpf']:
    E(raw("s_getpc_b64 s[28:29]", 'S', wr=["s[28:29]"])); E(raw("L_pc0:", 'X'))
    E(salu("s_and_b32", "s29", "s29", "0xffff")); E(raw("s_mov_b32 s30, L_codeend-L_pc0", 'S', wr=["s30"])); E(salu("s_mov_b32", "s31", "0x20000"))
    E(salu("s_lshl_b32", "s47", "s41", "2")); E(salu("s_add_u32", "s47", "s47", f"s{S_W}")); E(salu("s_mul_i32", "s47", "s47", "640"))
    E(valu("v_min_u32", "v2", "4", "v0")); E(valu("v_lshlrev_b32", "v2", "7", "v2"))
    E(raw(f"buffer_load_dword v{V_NM+2}, v2, s[28:31], s47 offen", 'D', rd=["v2", "s[28:31]", "s47"], wr=[f"v{V_NM+2}"], tag="pf"))
E(salu("s_lshr_b32", f"s{S_HD}", f"s{S_W}", "1")); E(salu("s_and_b32", f"s{S_QH}", f"s{S_W}", "1"))
E(salu("s_sub_u32", "s49", "s44", "9")); E(salu("s_min_u32", "s41", "s44", "s49")); E(salu("s_lshl_b32", "s41", "s41", "7"))
if not OPT['rot']: E(salu("s_mov_b32", "s41", "0"))
for p in range(1, 9):
    if OPT['fake'] > 1: E(salu("s_mov_b32", "s48", str(p & 1)))
    else:
        E(salu("s_add_u32", "s48", "s48", "1")); E(raw("s_cmp_eq_u32 s48, 9", 'S')); E(raw("s_cselect_b32 s48, 0, s48", 'S', wr=["s48"]))
    E(salu("s_lshl_b32", f"s{KPW[p]}", "s48", "19")); E(salu("s_lshl_b32", f"s{KPX[p]}", "s48", "7"))
E(valu("v_and_b32", i16, "15", "v0")); E(valu("v_lshrrev_b32", g4, "4", "v0"))
E(valu("v_bfe_u32", r4, "v0", "2", "2")); E(valu("v_and_b32", c4, "3", "v0"))
E(valu("v_lshl_add_u32", t0, g4, "3", r4)); E(valu("v_lshlrev_b32", t0, "9", t0))
E(valu("v_lshl_add_u32", t1, r4, "2", c4)); E(valu("v_lshl_add_u32", t0, t1, "4", t0))
E(salu("s_lshl_b32", f"s{S_T0}", f"s{S_HD}", "8")); E(valu("v_add_u32", t0, f"s{S_T0}", t0))
for w in (2, 1):
    E(valu("v_add_u32", f"v{AW[w]}", lit(WBASE[w]), t0))
    for k in (1, 2, 3): E(valu("v_xor_b32", f"v{AW[w]+k}", str(k << 6), f"v{AW[w]}"))
E(salu("s_mul_i32", f"s{S_T0}", f"s{S_QH}", str(48 * 128)))
E(valu("v_lshlrev_b32", t0, "7", i16)); E(valu("v_add_u32", t0, f"s{S_T0}", t0))
E(valu("v_lshrrev_b32", t1, "1", i16)); E(valu("v_xor_b32", t1, t1, g4)); E(valu("v_lshl_add_u32", f"v{AX[0]}", t1, "4", t0))
E(valu("v_xor_b32", f"v{AX[0]+1}", "64", f"v{AX[0]}"))
E(valu("v_add_u32", f"v{AX[2]}", lit(WBASE[2]), f"v{AX[0]}")); E(valu("v_add_u32", f"v{AX[2]+1}", lit(WBASE[2]), f"v{AX[0]+1}"))
E(salu("s_lshl_b32", f"s{S_T0}", "s44", "22")); E(salu("s_lshl_b32", f"s{S_T1}", "s46", "19")); E(salu("s_add_u32", f"s{S_T0}", f"s{S_T0}", f"s{S_T1}"))
if OPT['fake'] in (1, 2): E(salu("s_mov_b32", f"s{S_T0}", "0"))
srd_finish(E, 8, f"s{S_T0}", 524288); srd_finish(E, 12, f"s{S_T0}", 524288)
E(salu("s_mul_i32", f"s{S_T0}", "s46", str(512 * 1152))); srd_finish(E, 20, f"s{S_T0}", 512 * 1152)
E(salu("s_lshl_b32", "s40", "s42", "4")); E(salu("s_add_u32", "s40", "s40", "s44"))
E(salu("s_mul_i32", f"s{S_T0}", "s40", str(8 * 108 * 1024 + 1024)))
E(raw("s_mov_b64 s[28:29], s[72:73]", 'S', wr=["s[28:29]"], rd=["s[28:29]"])); srd_finish(E, 28, f"s{S_T0}", 8 * 108 * 1024 + 1024)
E(salu("s_lshr_b32", "s49", "s2", "3")); E(salu("s_and_b32", "s49", "s49", "7")); E(salu("s_lshl_b32", "s100", f"s{S_W}", "8")); E(salu("s_add_u32", "s100", "s100", "s49"))
E(salu("s_lshl_b32", "s98", "s46", "1")); E(salu("s_add_u32", "s98", "s98", "s44")); E(salu("s_and_b32", "s98", "s98", "15")); E(salu("s_lshl_b32", "s98", "s98", "13"))
E(salu("s_lshl_b32", "s101", "s46", "3")); E(salu("s_add_u32", "s101", "s101", lit(8 * 108 * 1024)))
E(salu("s_mul_i32", "s47", "s46", str(108 * 1024))); E(salu("s_add_u32", "s47", "s47", f"s{S_W3K}"))
E(salu("s_mov_b32", f"s{S_C}", hex(cval))); E(salu("s_mov_b32", f"s{S_C+1}", hex(cval)))
E(salu("s_lshl_b32", f"s{S_T0}", f"s{S_W}", "3"))
E(valu("v_add_u32", t0, f"s{S_T0}", g4)); E(valu("v_lshlrev_b32", t0, "8", t0))
E(salu("s_lshl_b32", f"s{S_T1}", f"s{S_W}", "2"))
E(valu("v_or_b32", t1, f"s{S_T1}", g4)); E(valu("v_xor_b32", t1, t1, i16))
E(valu("v_lshl_add_u32", f"v{V_KA}", t1, "4", t0)); E(valu("v_add_u32", f"v{V_KB}", str(131072 - 2048), f"v{V_KA}"))
E(salu("s_lshl_b32", f"s{S_T1}", f"s{S_QH}", "2"))
E(valu("v_or_b32", t1, f"s{S_T1}", g4)); E(valu("v_lshlrev_b32", t1, "1", t1)); E(valu("v_xor_b32", t1, t1, i16))
E(valu("v_lshl_add_u32", f"v{V_VA}", t1, "4", t0)); E(valu("v_add_u32", f"v{V_VB}", str(131072 - 2048), f"v{V_VA}"))
E(salu("s_lshl_b32", f"s{S_T0}", f"s{S_W}", "5"))
E(valu("v_lshrrev_b32", t0, "3", "v0")); E(valu("v_add_u32", t0, f"s{S_T0}", t0)); E(valu("v_mul_u32_u24", t0, "1152", t0))
E(valu("v_lshlrev_b32", t1, "1", g4)); E(valu("v_and_b32", t2, "7", "v0")); E(valu("v_xor_b32", t1, t1, t2))
E(valu("v_lshl_add_u32", f"v{V_WO0}", t1, "4", t0))
E(salu("s_lshl_b32", f"s{S_T0}", f"s{S_HD}", "11"))
E(valu("v_lshrrev_b32", t0, "2", i16)); E(valu("v_lshlrev_b32", t0, "12", t0)); E(valu("v_add_u32", t0, f"s{S_T0}", t0))
E(valu("v_lshl_add_u32", t0, c4, "8", t0))
E(valu("v_xor_b32", t1, g4, i16)); E(valu("v_lshl_add_u32", f"v{V_AK}", t1, "4", t0))
for ks in (1, 2, 3): E(valu("v_xor_b32", f"v{V_AK+ks}", str(ks << 6), f"v{V_AK}"))
E(valu("v_lshlrev_b32", t0, "12", g4)); E(valu("v_add_u32", t0, f"s{S_T0}", t0)); E(valu("v_lshl_add_u32", t0, r4, "8", t0))
E(valu("v_lshl_add_u32", t0, c4, "3", t0))
E(valu("v_and_b32", t1, "1", g4)); E(valu("v_lshl_or_b32", t1, t1, "2", r4))
E(valu("v_lshl_add_u32", t0, t1, "5", t0)); E(valu("v_add_u32", f"v{V_AV}", lit(WBASE[1]), t0))
for dt in range(1, 8): E(valu("v_xor_b32", f"v{V_AV+dt}", str(dt << 5), f"v{V_AV}"))
E(valu("v_lshl_add_u32", t0, g4, "2", r4)); E(valu("v_bfe_u32", t1, t0, "1", "2"))
E(salu("s_lshl_b32", f"s{S_T0}", f"s{S_HD}", "1")); E(valu("v_xor_b32", t1, f"s{S_T0}", t1))
E(valu("v_lshlrev_b32", t0, "7", t0)); E(valu("v_lshl_add_u32", t0, t1, "5", t0)); E(valu("v_lshl_add_u32", f"v{V_AO0}", c4, "3", t0))
E(valu("v_mov_b32", t0, "0x3f803f80"))
for k in range(4): E(valu("v_accvgpr_write_b32", f"a{A_ONE+k}", t0))
if OPT['up'] < 1: E(wq_ops(0, 1, PRE["WQ0_1"]))
if OPT['up'] < 2: E(x_ops("X0_1", 1, PRE["X0_1"]))
if OPT['up'] >= 3: E(wq_ops(0, 2, PRE["WQ0_2"])); E(wq_ops(0, 3, PRE["WQ0_3"]))

def hcheck():
    return [raw(f"s_cmp_lg_u32 s{S_W}, 0", 'S'), raw("s_cbranch_scc1 L_hok", 'S'),
            salu("s_mov_b32", "s48", "s70"), salu("s_and_b32", "s49", "s71", "0xffff"), salu("s_mov_b32", "s50", "256"), salu("s_mov_b32", "s51", "0x20000"),
            salu("s_lshl_b32", f"s{S_T0}", "s40", "3"), salu("s_mov_b32", f"s{S_T1}", "0"), valu("v_mov_b32", f"v{V_TB}", "0"),
            raw("L_hp:", 'X'),
            raw(f"v_readfirstlane_b32 s100, v{V_H+7}", 'S'), raw(f"s_add_u32 s{S_T1}, s{S_T1}, 1", 'S'), raw("s_nop 1", 'W'),
            raw("s_cmp_ge_u32 s100, 8", 'S'), raw("s_cbranch_scc1 L_hok", 'S'), raw("s_sleep 16", 'S'),
            raw(f"buffer_load_dword v{V_H+7}, v{V_TB}, s[48:51], s{S_T0} offen sc1", 'S'), raw("s_waitcnt vmcnt(0)", 'S'),
            raw(f"s_cmp_lt_u32 s{S_T1}, 0x400000", 'S'), raw("s_cbranch_scc1 L_hp", 'S'),
            raw("L_hok:", 'X')]
def cat(op): return 'X' if callable(op) else op.kind
class Build:
    def __init__(s, alloc):
        s.alloc = alloc
        s.P = Prog(); s.P.vm = list(P0.vm)
        s.MF = []; s.FL = []; s.frags = []; s.bar_req = []; s.tiles = []; s.issued = set(PRE)
        s.nst = 1; s.late = []; s.xneed = {}; s.win_after = []
        s.KT = {r: [s.fixed(f"K{r}_{n}", (16 * r + n) % 3, lambda sl, r=r, n=n: kv_ops('K', r, n, sl)) for n in range(16)] for r in (0, 1)}
        s.VT = {r: [s.fixed(f"V{r}_{n}", 3 + (16 * r + n) % 3, lambda sl, r=r, n=n: kv_ops('V', r, n, sl)) for n in range(16)] for r in (0, 1)}
        s.pending_st = []
        for i, t in enumerate([s.KT[0][0], s.KT[0][1], s.VT[0][0], s.KT[0][2], s.VT[0][1], s.VT[0][2]][:OPT['early']]): t.want_issue = OPT['e0'] + i * OPT['estep']
    def fixed(s, name, slot, mk, lead=None):
        t = Tile(name, slot, mk(slot), lead=OPT['leadh'] if lead is None else lead); s.tiles.append(t); return t
    def free(s, name, cands, mk):
        sl = PRE.get(name, s.alloc.get(name, cands[0]))
        t = Tile(name, sl, mk(sl), cands=None if name in PRE else cands, lead=0); s.tiles.append(t); return t
    def g(s): return len(s.MF) - 1
    def fill(s, ops, e, d, want=None, after=(), name=""):
        f = Fill(ops, e, max(d, e), want=want, after=[a for a in after if a is not None], name=name); s.FL.append(f); return f
    def chain(s, ops, e, d, want0=None, step=0.5, after=(), name=""):
        prev = list(after); f = None
        for k, op in enumerate(ops):
            f = s.fill(op, e, d, want=(e if want0 is None else want0) + k * step, after=prev, name=name); prev = [f]
        return f
    def forced(s, ops, gap=None, name="", after=()):
        gg = s.g() if gap is None else gap
        f = Fill(ops, gg, gg, want=-10**9 + len(s.FL), after=after, name=name); f.excl = False; s.FL.append(f); return f
    def stamp(s):
        if OPT.get('at'): return
        if OPT['stamp']: s.forced(stamp_ops(s.nst), name="stamp")
        s.nst += 1
    def add_frag(s, tile, mk_reads, mk_mfmas, after=None):
        f = len(s.frags); base = A_FR + 4 * (f % NFR)
        u0 = len(s.MF); s.MF.extend(mk_mfmas(R('a', base, 4))); u1 = len(s.MF) - 1
        s.frags.append(dict(reads=mk_reads(base), u0=u0, u1=u1, tile=tile, after=after))
        tile.last_use = u1
        if tile.first_need is None: tile.first_need = u0
    def want_bar(s, tiles): s.bar_req.append([len(s.MF), list(tiles)]); return len(s.bar_req) - 1
    def q_frag(s, T_, dt, acc, xr, first):
        w, ib = win(T_.slot); ksp, odd = dt >> 1, dt & 1
        s.add_frag(T_, lambda b: [ds_read("ds_read_b64_tr_b16", R('a', b + 2 * hf, 2), f"v{AW[w]+ksp}", ib + hf * 2048 + odd * 8, slot=T_.slot) for hf in range(2)],
                   lambda a: [mfma(acc(dt, qt), a, R('a', xr + 4 * qt, 4), "0" if first else acc(dt, qt)) for qt in range(3)])
    def x_reads(s, X_, regs, e_list, need_list):
        X_.last_use = max(need_list) + 2
        def mk():
            b = s.tile_bar[X_.name]; w, ib = win(X_.slot); k = 0
            for ksl in range(2):
                for qt in range(3):
                    op = ds_read("ds_read_b128", R('a', regs[ksl] + 4 * qt, 4), f"v{AX[w]+ksl}", ib + qt * 2048, slot=X_.slot)
                    s.xneed[id(op)] = need_list[ksl]
                    e = max(b.earliest, e_list[ksl])
                    s.fill(op, e, need_list[ksl] - 1, want=max(e - 2, min(need_list[ksl] - LA - 6, e + 4)) + k * 0.7, after=[b], name="xrd"); k += 1
        s.late.append(mk)
    def conv(s, even, odd, scale, dst=None, pk=False):
        dst = even if dst is None else dst
        if pk: ops = [valu("v_pk_mul_f32", R('v', b, 2), R('v', b, 2), scale, extra="" if scale[0] == 's' else " op_sel_hi:[1,0]") for b in (even, even + 2, odd, odd + 2)]
        else:
            sc = scale[0] + scale[2:].split(':')[0]
            ops = [valu("v_mul_f32", f"v{b+k}", sc, f"v{b+k}") for b in (even, odd) for k in range(4)]
        ops += [valu("v_cvt_pk_bf16_f32", f"v{dst}", f"v{even}", f"v{even+1}"), valu("v_cvt_pk_bf16_f32", f"v{dst+1}", f"v{even+2}", f"v{even+3}"),
                valu("v_cvt_pk_bf16_f32", f"v{dst+2}", f"v{odd}", f"v{odd+1}"), valu("v_cvt_pk_bf16_f32", f"v{dst+3}", f"v{odd+2}", f"v{odd+3}")]
        return ops
    def k_frag(s, r, n, t, ks, dst, cinit):
        T_ = s.KT[r][n]
        s.add_frag(T_, lambda b: [ds_read("ds_read_b128", R('a', b, 4), f"v{V_AK+ks}", T_.slot * SLOT + t * 1024, slot=T_.slot)],
                   lambda a: [mfma(R('v', dst(qt), 4), a, QF(ks, qt), cinit if ks == 0 else R('v', dst(qt), 4)) for qt in range(3)])
    def m0(s, r, after=()):
        bi = s.want_bar([s.KT[r][0]])
        for ks in range(4): s.k_frag(r, 0, 0, ks, lambda qt: Sreg(1, 0, qt), "0")
        x = Sreg(1, 0, 0); a, b = f"v{x}", f"v{x+1}"
        ops = [valu("v_max3_f32", a, a, b, f"v{x+2}"), valu("v_max3_f32", f"v{x+3}", f"v{x+3}", f"v{x+4}", f"v{x+5}"), valu("v_max3_f32", f"v{x+6}", f"v{x+6}", f"v{x+7}", f"v{x+8}"),
               valu("v_max3_f32", f"v{x+9}", f"v{x+9}", f"v{x+10}", f"v{x+11}"), valu("v_max3_f32", a, a, f"v{x+3}", f"v{x+6}"), valu("v_max_f32", a, a, f"v{x+9}"),
               valu("v_mov_b32", b, a), valu("v_permlane16_swap_b32", a, b), valu("v_max_f32", a, a, b), valu("v_mov_b32", b, a),
               valu("v_permlane32_swap_b32", a, b), valu("v_max_f32", a, a, b)] + [valu("v_sub_f32", f"v{V_NM+k}", "0", a) for k in range(4)]
        f = s.forced(ops, name="m0v", after=after); f.want = 10**7
        return bi
    def phase_a(s, r, lwork, haslw):
        done_at = {}; info = {'bar': [], 'step0': []}
        def qk(n):
            for t in range(2):
                for ks in range(4): s.k_frag(r, n, t, ks, lambda qt: Sreg(n & 1, t, qt), NMR)
                for qt in range(3): done_at[(n, t, qt)] = len(s.MF) - 3 + qt
        qk(0)
        for n in range(16):
            if OPT['ptb'] and n < 15:
                bi = s.want_bar([s.KT[r][n + 1]])
            else: bi = s.want_bar(([s.KT[r][n + 1]] if n < 15 else []) + [s.VT[r][n]])
            info['bar'].append(bi); info['step0'].append(len(s.MF))
            if n < 15: qk(n + 1)
            if OPT['ptb'] and n < 15: s.want_bar([s.VT[r][n]]); s.bar_req[-1][0] += 3
            pv0 = len(s.MF); k = 0
            for t in range(2):
                for qt in range(3):
                    sr = Sreg(n & 1, t, qt); ef = []; e = done_at[(n, t, qt)] + 4
                    for c in range(4):
                        w = e + k * 0.01; k += 1
                        ef.append(s.fill(valu("v_exp_f32", f"v{sr+c}", f"v{sr+c}"), e, pv0 - 2, want=w, name="exp"))
                        if c & 1:
                            s.fill(valu("v_cvt_pk_bf16_f32", f"v{Preg(n&1,qt)+2*t+(c>>1)}", f"v{sr+c-1}", f"v{sr+c}"), e, pv0 - 1, want=w, after=ef[-2:], name="cvt")
            for qt in range(3):
                l = R('a', A_L + 4 * qt, 4)
                s.MF.append(mfma(l, R('a', A_ONE, 4), R('v', Preg(n & 1, qt), 4), "0" if n == 0 else l))
            T_ = s.VT[r][n]
            for dt in range(8):
                s.add_frag(T_, lambda b: [ds_read("ds_read_b64_tr_b16", R('a', b + 2 * t, 2), f"v{V_AV+dt}", (T_.slot - 3) * SLOT + t * 1024, slot=T_.slot) for t in range(2)],
                           lambda a: [mfma(R('v', Oacc(dt, qt), 4), a, R('v', Preg(n & 1, qt), 4), "0" if n == 0 else R('v', Oacc(dt, qt), 4)) for qt in range(3)])
                info[dt] = s.g()
            if n == 0: info['pv_first'] = pv0
            info['pv_last'] = pv0; info['pv_end'] = s.g()
            if OPT['ptb'] and haslw(n): bi = s.want_bar([])
            lwork(n, bi)
        return info
    def o_finish(s, r, info, dl):
        pv0 = info['pv_last']; ta, tb = f"v{V_NM+1}", f"v{V_NM+3}"
        ops = [valu("v_accvgpr_read_b32", f"v{RL[qt]}", f"a{A_L+4*qt}") for qt in range(3)]
        if OPT['slow']:
            lab = f"L_ok{r}"
            ops += [valu("v_add_f32", ta, f"v{RL[0]}", f"v{RL[1]}"), valu("v_min3_f32", tb, f"v{RL[0]}", f"v{RL[1]}", f"v{RL[2]}"), valu("v_add_f32", ta, ta, f"v{RL[2]}"),
                    salu("s_mov_b32", "s48", "0x5d800000" if not OPT['forceslow'] else "0"), salu("s_mov_b32", "s49", "0x21800000"),
                    raw(f"v_cmp_nge_f32 vcc, s48, {ta}", 'V', rd=[ta, "s48"], wr=['vcc']),
                    raw(f"v_cmp_nle_f32 s[50:51], s49, {tb}", 'V', rd=[tb, "s49"], wr=['s[50:51]']),
                    raw("s_nop 1", 'W'), raw("s_or_b64 vcc, vcc, s[50:51]", 'S'),
                    raw(f"s_cbranch_vccz {lab}", 'S', rd=['vcc']),
                    salu("s_mov_b32", "s48", lit(r * 262144)),
                    raw(f"s_getpc_b64 {S_RET}", 'S'), raw("s_add_u32 s6, s6, 12", 'S'), raw("s_addc_u32 s7, s7, 0", 'S'), raw("s_branch L_slow", 'S'),
                    raw(f"{lab}:", 'X')]
        chk = s.forced(ops, gap=pv0 + 5, name="lchk")
        rc = s.chain([valu("v_rcp_f32", f"v{RL[qt]}", f"v{RL[qt]}") for qt in range(3)], pv0 + 5, pv0 + 9, after=[chk], name="rcp")
        last = {}
        for ks in range(4):
            for qt in range(3):
                e = min(info[2 * ks + 1] + 3, dl(ks, qt))
                last[(ks, qt)] = s.chain(s.conv(Oacc(2 * ks, qt), Oacc(2 * ks + 1, qt), R('v', RL[qt], 2)), e, dl(ks, qt), want0=e + (ks * 3 + qt) * 0.01, step=0.5, after=[rc], name="ocv")
        return last
    def xaddr(s, e, stride):
        return s.chain([valu("v_lshlrev_b32", f"v{V_T}", "4", "v0"), salu("s_mul_i32", f"s{S_T1}", f"s{S_W}", str(stride)),
                        valu("v_add_u32", f"v{V_T+1}", f"s{S_T1}", f"v{V_T}"), salu("s_mul_i32", f"s{S_T1}", f"s{S_QH}", str(stride)),
                        valu("v_add_u32", f"v{V_T+2}", f"s{S_T1}", f"v{V_T}")], e, e + 8, name="xpre")
    def xround(s, name, fr, slots, stride, last, pre, bar_w, bar_pub, dst, rdead, addr_bias=0):
        res = [s.fixed(f"{name}_{sl}", sl, lambda sl: [], lead=0) for sl in slots]
        for t in res:
            t.first_need = s.bar_req[bar_w][0]; t.last_use = rdead + 1; t.scratch = bar_w
            s.issued.add(t.name)
        base = slots[0] * SLOT - addr_bias
        out = {}
        def mk():
            bw, bp = s.barfill[bar_w], s.barfill[bar_pub]
            for i, (ks, qt) in enumerate(fr):
                lf = last[(ks, qt)]
                op = ds_write("ds_write_b128", f"v{V_T+1}", R('v', Oacc(2 * ks, qt), 4), base + i * 1024); op.note = tuple(slots)
                w_ = s.fill(op, max(lf.earliest, bw.earliest), bp.earliest, want=max(lf.want, bw.earliest) + 0.1 + i * 0.01, after=[lf, pre, bw], name="xw")
                bp.after.append(w_)
            k = 0
            for i, (ks, qt) in enumerate(fr):
                for hh in range(2):
                    op = ds_read("ds_read_b128", dst(hh, ks, qt), f"v{V_T+2}", base + hh * 2 * stride + i * 1024, slot=('X',) + tuple(slots))
                    out[(hh, ks, qt)] = s.fill(op, bp.earliest, rdead, want=bp.earliest + 1 + k * 1.5, after=[bp], name="xr"); k += 1
        s.late.append(mk)
        return out
    def o_tile(s, T_, bfr, accr, first):
        w, ib = win(T_.slot)
        for ks in range(4):
            for ntl in range(2):
                s.add_frag(T_, lambda b: [ds_read("ds_read_b64_tr_b16", R('a', b + 2 * hf, 2), f"v{AO[w]+ntl}", ib + ks * 4096 + hf * 2048, slot=T_.slot) for hf in range(2)],
                           lambda a: [mfma(accr(ntl, qt), a, bfr(ks, qt), "0" if (first and ks == 0) else accr(ntl, qt)) for qt in range(3)], after=('O', w))
    def store_ops(s, src0, src1, tmp, c, qt, from_acc):
        ops = []
        if from_acc:
            for k in range(4): ops.append(valu("v_accvgpr_read_b32", f"v{tmp+k}", f"a{src0+k}"))
            for k in range(4): ops.append(valu("v_accvgpr_read_b32", f"v{tmp+4+k}", f"a{src1+k}"))
            src0, src1 = tmp, tmp + 4
        d = src0
        ops += [valu("v_cvt_pk_bf16_f32", f"v{d}", f"v{src0}", f"v{src0+1}"), valu("v_cvt_pk_bf16_f32", f"v{d+1}", f"v{src0+2}", f"v{src0+3}"),
                valu("v_cvt_pk_bf16_f32", f"v{d+2}", f"v{src1}", f"v{src1+1}"), valu("v_cvt_pk_bf16_f32", f"v{d+3}", f"v{src1+2}", f"v{src1+3}")]
        if qt == 0: ops += [salu("s_add_u32", f"s{S_ST}", "s47", lit(c * 12288))]
        ops += [raw(f"buffer_store_dwordx4 v[{d}:{d+3}], v{V_T}, {SWS}, s{S_ST} offen offset:{qt*1024}" + ["", " sc1", " sc0 sc1", " sc1 nt", " nt", " sc0 sc1 nt"][OPT['stf']], 'D', rd=[f"v[{d}:{d+3}]", f"v{V_T}", SWS, f"s{S_ST}"], tag="stA" if c <= 5 else "st", wide_store=True)]
        if OPT['nost']: ops = ops[:-1]
        return ops
    def pfpair(s, kind, e, dreg):
        tmp, dst = f"v{V_H+6}", f"v{V_NM+0}"
        tmp = f"v{V_H+6}"
        if kind == 'q':
            t2_ = f"v{V_NM+3}"
            ops = [valu("v_min_u32", tmp, "35", "v0"), valu("v_lshrrev_b32", t2_, "2", tmp),
                   salu("s_mul_i32", f"s{S_T0}", "s44", "36"), salu("s_mul_i32", f"s{S_T1}", f"s{S_W}", "9"), salu("s_add_u32", f"s{S_T0}", f"s{S_T0}", f"s{S_T1}"),
                   valu("v_add_u32", t2_, f"s{S_T0}", t2_), valu("v_lshlrev_b32", t2_, "13", t2_),
                   valu("v_and_b32", tmp, "3", tmp), valu("v_lshl_add_u32", tmp, tmp, "7", t2_)]
            srd, off = SWQ, 512
        else:
            ops = [valu("v_min_u32", tmp, "35", "v0"),
                   salu("s_mul_i32", f"s{S_T0}", "s44", "144"), salu("s_mul_i32", f"s{S_T1}", f"s{S_W}", "36"), salu("s_add_u32", f"s{S_T0}", f"s{S_T0}", f"s{S_T1}"),
                   salu("s_add_u32", f"s{S_T0}", f"s{S_T0}", str(kind * 2304)), valu("v_add_u32", tmp, f"s{S_T0}", tmp), valu("v_lshlrev_b32", tmp, "7", tmp)]
            srd, off = SWO, 0
        ops += [raw(f"buffer_load_dword v{dreg}, {tmp}, {srd}, 0 offen offset:{off}" + (" sc1 nt" if OPT['pfsc'] else " nt"), 'D', rd=[tmp, srd], wr=[], tag="pf"),
                raw(f"buffer_load_dword v{dreg}, {tmp}, {srd}, 0 offen offset:{off}" + (" sc1" if OPT['pfsc'] else ""), 'D', rd=[tmp, srd], wr=[f"v{dreg}"], tag="pf")]
        s.forced(ops, gap=e, name="pf")
    def build(s, dry=False):
        LHI = [6, 7, 8, 9]
        accq = lambda dt, qt: R('v', QaccQS(dt, qt), 4)
        W0 = [s.free(f"WQ0_{p}", [3, 4, 5, 6, 7, 8, 9], lambda sl, p=p: wq_ops(0, p, sl)) for p in range(18)]
        X0 = [s.free(f"X0_{i}", [0, 1, 2, 6, 7, 8, 9], lambda sl, i=i: x_ops(f"X0_{i}", i, sl)) for i in range(9)]
        done = {}
        for p in range(16):
            u = len(s.MF)
            s.want_bar([W0[p]] + ([X0[p // 2]] if p % 2 == 0 else []))
            if p % 2 == 0:
                X0[p // 2].first_need = u - 0.5; s.x_reads(X0[p // 2], [XFr(p, 0), XFr(p + 1, 0)], [-1, -1], [u, u + 24])
            if OPT['pfw'] and p >= OPT['pft0'] and (p - OPT['pft0']) % OPT['pfd'] == 0 and (p - OPT['pft0']) // OPT['pfd'] < 3:
                k_ = (p - OPT['pft0']) // OPT['pfd']; tmp, dst = f"v{V_TA}", f"v{V_TB}"
                if k_ == 0:
                    ops = [valu("v_min_u32", tmp, "35", "v0"), valu("v_lshrrev_b32", dst, "2", tmp),
                           salu("s_mul_i32", f"s{S_T0}", "s44", "36"), salu("s_mul_i32", f"s{S_T1}", f"s{S_W}", "9"), salu("s_add_u32", f"s{S_T0}", f"s{S_T0}", f"s{S_T1}"),
                           valu("v_add_u32", dst, f"s{S_T0}", dst), valu("v_lshlrev_b32", dst, "13", dst),
                           valu("v_and_b32", tmp, "3", tmp), valu("v_lshl_add_u32", tmp, tmp, "7", dst),
                           raw(f"buffer_load_dword v{V_H+7}, {tmp}, {SWQ}, 0 offen offset:512 nt", 'D', rd=[tmp, SWQ], wr=[], tag="pf")]
                else:
                    ops = [valu("v_min_u32", tmp, "35", "v0"),
                           salu("s_mul_i32", f"s{S_T0}", "s44", "144"), salu("s_mul_i32", f"s{S_T1}", f"s{S_W}", "36"), salu("s_add_u32", f"s{S_T0}", f"s{S_T0}", f"s{S_T1}"),
                           salu("s_add_u32", f"s{S_T0}", f"s{S_T0}", str((k_ - 1) * 2304)), valu("v_add_u32", tmp, f"s{S_T0}", tmp), valu("v_lshlrev_b32", tmp, "7", tmp),
                           raw(f"buffer_load_dword v{V_H+7}, {tmp}, {SWO}, 0 offen nt", 'D', rd=[tmp, SWO], wr=[], tag="pf")]
                s.chain(ops, u, u + 20, step=1.5, name="pf")
            if OPT['pf2'] & 1 and p == OPT['pfa']: s.pfpair('q', u + 3, V_NM + 1)
            for dt in range(8): s.q_frag(W0[p], dt, accq, XFr(p, 0), p == 0)
        u = len(s.MF); s.want_bar([W0[16], W0[17], X0[8]]); X0[8].first_need = u - 0.5
        s.x_reads(X0[8], [XFr(16, 0), XFr(17, 0)], [-1, -1], [u, u + 3])
        for dt in range(8):
            s.q_frag(W0[16], dt, accq, XFr(16, 0), False); s.q_frag(W0[17], dt, accq, XFr(17, 0), False); done[dt] = s.g()
        gq = s.g()
        for ks in range(4):
            for qt in range(3):
                pk = ks * 3 + qt >= OPT['npl0']
                e = gq if pk else min(done[2 * ks + 1] + 3, gq)
                s.chain(s.conv(QaccQS(2 * ks, qt), QaccQS(2 * ks + 1, qt), f"s[{S_C}:{S_C+1}]", pk=pk), e, gq, want0=e + (ks * 3 + qt) * 0.01, name="qcv")
        s.stamp()
        s.m0(0)
        order = list(range(8, 18)) + list(range(0, 8))
        xreg = {p: XFr(p, 0) for p in range(8, 18)}; xreg.update({p: XFr(8 + p, 0) for p in range(8)})
        acc1 = lambda dt, qt: R('a', 4 * (dt * 3 + qt), 4)
        W1 = {p: s.free(f"WQ1_{p}", LHI, lambda sl, p=p: wq_ops(1, p, sl)) if p not in (4, 5, 6, 7) else s.fixed(f"WQ1_{p}", {4: 8, 5: 9, 6: 6, 7: 7}[p], lambda sl, p=p: wq_ops(1, p, sl), lead=70) for p in order}
        X1 = [s.free(f"X1_{i}", LHI, lambda sl, i=i: x_ops(f"X1_{i}", i, sl)) for i in range(4)]
        lend = {}; lstart = {}
        def dbgsrd(): return [salu("s_mov_b32", "s48", "s70"), salu("s_and_b32", "s49", "s71", "0xffff"), salu("s_mov_b32", "s50", "256"), salu("s_mov_b32", "s51", "0x20000"),
                             salu("s_lshl_b32", f"s{S_T0}", "s40", "3")]
        def site(k, lab, ops):
            s.forced([raw(f"s_cmp_lg_u32 s100, {k}", 'S'), raw(f"s_cbranch_scc1 {lab}", 'S')] + ops + [raw(f"{lab}:", 'X')], name="site")
        def lw0(n, bi):
            if OPT['pf2'] & 2 and n == OPT['pfb'] + 5: s.pfpair(0, s.g() - 8, V_TA)
            if n == 0:
                s.forced([raw(f"s_cmp_lg_u32 s{S_W}, 0", 'S'), raw("s_cbranch_scc1 L_nz", 'S'), valu("v_mov_b32", f"v{V_H+6}", "0"), valu("v_mov_b32", f"v{V_H+7}", "0"), raw("s_mov_b64 exec, 1", 'S'),
                          raw(f"buffer_store_dwordx2 v[{V_H+6}:{V_H+7}], v{V_H+6}, {SWS}, s101 offen sc1", 'S'), raw("s_mov_b64 exec, -1", 'S'), raw("L_nz:", 'X')], name="fz")
            if 4 <= n < 12:
                site(n - 4, f"L_hs{n}", dbgsrd() + [valu("v_mov_b32", f"v{V_H+6}", "0"), valu("v_mov_b32", f"v{V_H+7}", "1"), raw("s_mov_b64 exec, 1", 'S'),
                     raw(f"buffer_atomic_add v{V_H+7}, v{V_H+6}, s[48:51], s{S_T0} offen sc1", 'S'), raw("s_mov_b64 exec, -1", 'S')])
            p = order[n]; s.bar_req[bi][1].append(W1[p]); lstart[p] = len(s.MF)
            for dt in range(8): s.q_frag(W1[p], dt, acc1, xreg[p], n == 0)
            lend[p] = s.g()
        i0 = s.phase_a(0, lw0, lambda n: True)
        s.stamp()
        bT = s.want_bar([W1[6], W1[7]]); lstart[6] = len(s.MF); lstart[7] = len(s.MF) + 3
        for dt in range(8):
            s.q_frag(W1[6], dt, acc1, xreg[6], False); s.q_frag(W1[7], dt, acc1, xreg[7], False); done[dt] = s.g()
        gT = s.g()
        for i, X_ in enumerate(X1):
            n = 3 + 2 * i
            s.bar_req[i0['bar'][n]][1].append(X_); X_.first_need = i0['step0'][n] - 0.5
            s.x_reads(X_, [xreg[2 * i], xreg[2 * i + 1]], [lend[8 + 2 * i] + 1, lend[9 + 2 * i] + 1], [i0['step0'][n] + 40, i0['step0'][n] + 44])
        qcv = []
        for ks in range(4):
            for qt in range(3):
                pk = ks * 3 + qt >= OPT['npl1']
                e = gT if pk else min(done[2 * ks + 1] + 3, gT); tmp = V_S + 8 * ((ks * 3 + qt) % 3)
                ops = [valu("v_accvgpr_read_b32", f"v{tmp+4*o+k}", f"a{4*((2*ks+o)*3+qt)+k}") for o in range(2) for k in range(4)]
                ops += s.conv(tmp, tmp + 4, f"s[{S_C}:{S_C+1}]", dst=QFr(ks, qt), pk=pk)
                qcv.append(s.chain(ops, e, gT, want0=e + (ks * 3 + qt) * 0.01, step=0.25, after=qcv[-3:-2] if len(qcv) >= 3 else [], name="qcv1"))
        wdl = gT - LA - 2
        last0 = s.o_finish(0, i0, lambda ks, qt: wdl - 2 if ks * 3 + qt < 4 else gT)
        pre0 = s.xaddr(i0['pv_last'] + 6, 4096)
        bias = s.chain([valu("v_add_u32", f"v{V_T+1}", lit(8 * SLOT), f"v{V_T+1}"), valu("v_add_u32", f"v{V_T+2}", lit(8 * SLOT), f"v{V_T+2}")], i0['pv_last'] + 8, i0['pv_last'] + 16, after=[pre0], name="xb")
        s.stamp()
        bM = s.m0(1, after=list(last0.values()))
        aoh = s.chain(set_addr_o(2), gT, gT + 30, name="ao2"); s.win_after.append((('O', 2), aoh))
        o0s = OPT['o0start']; nblk = (16 - o0s) // 2
        blk_done = {}
        def accA(nb): return ACCB[nb & 1]
        parkf = {}
        def lw1(n, bi):
            if OPT['pf2'] & 4 and n == OPT['pfc']: s.pfpair(1, s.g() - 8, V_T)
            if 4 <= n < 12:
                site(n - 4, f"L_hc{n}", dbgsrd() + [valu("v_mov_b32", f"v{V_H+7}", "0"), raw("s_nop 0", 'W'),
                     raw(f"buffer_load_dword v{V_H+7}, v{V_H+7}, s[48:51], s{S_T0} offen sc1", 'S')])
            if OPT['cpf2'] and n == OPT['cps']:
                tmp = f"v{V_H+7}"
                ops = [raw("s_getpc_b64 s[48:49]", 'S', wr=["s[48:49]"]), raw("L_pc2:", 'X'),
                       raw("s_add_u32 s48, s48, L_tailcode-L_pc2", 'S', wr=["s48"]), raw("s_addc_u32 s49, s49, 0", 'S', wr=["s49"]),
                       salu("s_and_b32", "s49", "s49", "0xffff"), raw("s_mov_b32 s50, L_slow-L_tailcode", 'S', wr=["s50"]), salu("s_mov_b32", "s51", "0x20000"),
                       salu("s_lshl_b32", f"s{S_T0}", "s41", "2"), salu("s_add_u32", f"s{S_T0}", f"s{S_T0}", f"s{S_W}"), salu("s_lshl_b32", f"s{S_T0}", f"s{S_T0}", "8"),
                       valu("v_and_b32", tmp, "1", "v0"), valu("v_lshlrev_b32", tmp, "7", tmp),
                       raw(f"buffer_load_dword {tmp}, {tmp}, s[48:51], s{S_T0} offen", 'D', rd=[tmp, "s[48:51]", f"s{S_T0}"], wr=[], tag="pf")]
                s.forced(ops, name="cpf2")
            if n == 14: s.forced([raw("L_tailcode:", 'X')], name="lab")
            if OPT['pft'] and n == OPT['pfs']:
                tmp = f"v{V_H+7}"
                s.chain([valu("v_min_u32", tmp, "35", "v0"),
                         salu("s_mul_i32", f"s{S_T0}", "s44", "144"), salu("s_mul_i32", f"s{S_T1}", f"s{S_W}", "36"), salu("s_add_u32", f"s{S_T0}", f"s{S_T0}", f"s{S_T1}"),
                         salu("s_add_u32", f"s{S_T0}", f"s{S_T0}", "2304"), valu("v_add_u32", tmp, f"s{S_T0}", tmp), valu("v_lshlrev_b32", tmp, "7", tmp),
                         raw(f"buffer_load_dword {tmp}, {tmp}, {SWO}, 0 offen", 'D', rd=[tmp, SWO], wr=[], tag="pf")], s.g(), s.g() + 40, step=2, name="pf")
            if n < o0s or (n - o0s) // 2 >= nblk: return
            nb, hh = (n - o0s) >> 1, (n - o0s) & 1
            T_ = s.free(f"WO{hh}_{nb}", LHI, lambda sl: wo_ops(hh, nb, sl)); s.bar_req[bi][1].append(T_)
            st = len(s.MF)
            if hh == 0 and nb >= 2:
                pb = nb - 2; ops = []
                for i in range(12):
                    ta, tb = (V_TA, V_TB) if i & 1 else (V_T + 1, V_T + 2)
                    ops += [valu("v_accvgpr_read_b32", f"v{ta}", f"a{accA(pb)+2*i}"), valu("v_accvgpr_read_b32", f"v{tb}", f"a{accA(pb)+2*i+1}"),
                            valu("v_cvt_pk_bf16_f32", f"v{ta}", f"v{ta}", f"v{tb}"), valu("v_accvgpr_write_b32", f"a{PARK[pb]+i}", f"v{ta}")]
                e = blk_done[pb] + 4
                pd = blk_done[pb + 1] + 3
                parkf[pb] = s.chain(ops, e, pd, want0=e, step=(pd - e - 20) / 48.0, after=[parkf.get(pb - 1)], name="park")
            s.o_tile(T_, lambda ks, qt: R('a', OBa(hh, ks, qt), 4), lambda ntl, qt: R('a', accA(nb) + 4 * (ntl * 3 + qt), 4), hh == 0)
            if hh == 1: blk_done[nb] = s.g()
        i1 = s.phase_a(1, lw1, lambda n: n >= o0s and (n - o0s) // 2 < nblk)
        gA1 = s.g()
        fr = [(ks, qt) for ks in range(4) for qt in range(3)]
        dstA = lambda hh, ks, qt: R('a', OBa(hh, ks, qt), 4)
        s.xround("XA", fr[:4], [8], 4096, last0, bias, bT, bM, dstA, i1['step0'][0] - LA - 9, addr_bias=8 * SLOT)
        s.xround("XB", fr[4:8], [9], 4096, last0, bias, bM, i1['bar'][0], dstA, i1['step0'][0] + 30, addr_bias=8 * SLOT)
        s.xround("XD", fr[8:], [8], 4096, last0, bias, i1['bar'][0], i1['bar'][1], dstA, i1['step0'][1] + 30, addr_bias=8 * SLOT)
        s.xb_dead = i1['pv_first'] - 1
        s.stamp()
        rest = list(range(nblk, 9))
        VB = [V_S, V_S + 24, V_QF, V_QF + 24]
        ALL = list(range(10))
        seq = [(nb, h) for nb in rest for h in (0, 1)]
        inacc = [nb for nb in range(nblk) if nb >= nblk - 2]; parked = [nb for nb in range(nblk) if nb < nblk - 2]
        seq += [(nb, h) for nb in rest + inacc + parked for h in (2, 3)]
        CORD = rest + inacc + parked; s.CORD = CORD
        vb = {}; vfree = {b: i1['pv_last'] + 6 for b in VB}; tst = {}; tbar = {}
        for nb in rest: vb[nb] = VB[rest.index(nb)]
        ao_lo = s.chain(set_addr_o(1) + set_addr_o(0), i1['pv_last'], i1['pv_last'] + 20, name="ao10"); s.win_after += [(('O', 1), ao_lo), (('O', 0), ao_lo)]
        PAIRS = [6, 4, 8, 2, 0]
        AP = {0: V_AK, 1: V_AV, 2: V_AV + 4}
        def pwin(sa): return (0, sa * SLOT) if sa < 4 else ((1, (sa - 3) * SLOT) if sa < 6 else (2, (sa - 6) * SLOT))
        ops = [salu("s_lshl_b32", f"s{S_T0}", f"s{S_HD}", "14"), valu("v_add_u32", f"v{V_AK}", f"s{S_T0}", f"v{V_AO0}"),
               valu("v_xor_b32", f"v{V_AK+1}", "32", f"v{V_AK}"), valu("v_xor_b32", f"v{V_AK+2}", "0x4000", f"v{V_AK}"), valu("v_xor_b32", f"v{V_AK+3}", "0x4020", f"v{V_AK}")]
        ops += [valu("v_add_u32", f"v{AP[w]+k}", lit(WBASE[w]), f"v{V_AK+k}") for w in (2, 1) for k in range(4)]
        apf = s.chain(ops, i1['pv_end'], i1['pv_end'] + 60, name="ap"); s.win_after.append((('P', 0), apf))
        live = set(rest); s.unp = []
        for (nb, h4) in seq:
            st = len(s.MF); tst[(nb, h4)] = st; hh = h4 & 1
            if h4 < 2:
                T_ = s.free(f"WO{h4}_{nb}", ALL, lambda sl: wo_ops(h4, nb, sl)); tbar[(nb, h4)] = s.want_bar([T_])
            elif h4 == 2:
                sa = PAIRS[CORD.index(nb) % 5]
                TP = [s.fixed(f"WO{2+k}_{nb}", sa + k, lambda sl, k=k: wo_ops(2 + k, nb, sl), lead=OPT['plead']) for k in range(2)]
                tbar[(nb, 2)] = tbar[(nb, 3)] = s.want_bar(TP); TP[1].first_need = st + 0.5
            if nb in parked and h4 == 2:
                b = min((x for x in VB if x not in [vb[k] for k in vb if k in live]), key=lambda x: vfree[x]); vb[nb] = b
                ops = []
                for i in range(12):
                    ops += [valu("v_accvgpr_read_b32", f"v{b+2*i+1}", f"a{PARK[nb]+i}"), valu("v_lshlrev_b32", f"v{b+2*i}", "16", f"v{b+2*i+1}"),
                            valu("v_and_b32", f"v{b+2*i+1}", "0xffff0000", f"v{b+2*i+1}")]
                e = max(vfree[b], st - 60)
                s.unp.append((ops, e, st - 2, b))
            if nb in inacc: accr = lambda ntl, qt: R('a', accA(nb) + 4 * (ntl * 3 + qt), 4)
            else: accr = lambda ntl, qt: R('v', vb[nb] + 4 * (ntl * 3 + qt), 4); live.add(nb)
            if h4 < 2: s.o_tile(T_, lambda ks, qt: R('a', OBa(hh, ks, qt), 4), accr, h4 == 0)
            else:
                w, ib = pwin(sa)
                for ks in range(4):
                    for ntl in range(2):
                        if nb == CORD[0] and h4 == 3 and ks * 2 + ntl == OPT['xb2']: pubx = s.want_bar([])
                        s.add_frag(TP[0], lambda b: [ds_read("ds_read_b64_tr_b16", R('a', b + 2 * hf, 2), f"v{AP[w]+2*hh+ntl}", ib + ks * 4096 + hf * 2048, slot=('P', sa, sa + 1)) for hf in range(2)],
                                   lambda a: [mfma(accr(ntl, qt), a, R('v', Oacc(2 * ks + hh, qt), 4), accr(ntl, qt)) for qt in range(3)], after=('P', 0))
                TP[1].last_use = TP[0].last_use
            if h4 == 3:
                dn = s.g()
                for qt in range(3):
                    c_ = CORD.index(nb)
                    if nb in inacc: ops = s.store_ops(accA(nb) + 4 * qt, accA(nb) + 12 + 4 * qt, V_P + 8 * qt, c_, qt, True)
                    else: ops = s.store_ops(vb[nb] + 4 * qt, vb[nb] + 12 + 4 * qt, None, c_, qt, False)
                    s.pending_st.append((ops, dn + 4, dn + (OPT['std2'] if nb in inacc else OPT['std1']), vb.get(nb)))
                if nb in vb: vfree[vb[nb]] = dn + OPT['std1'] + 2; live.discard(nb)
        s.pubA = tbar[seq[-1]]
        first2 = seq[2 * len(rest)]
        pub1 = tbar[first2]; pub2 = pubx
        wd = lambda ks: min(s.bar_req[pub1 if ks < 2 else pub2][0] - LA - 4, tst[first2] + 6 * ks - 3)
        last1 = s.o_finish(1, i1, lambda ks, qt: wd(ks))
        g0 = i1['pv_last'] + 6
        pre1 = s.chain([valu("v_lshlrev_b32", f"v{V_T}", "4", "v0"), salu("s_mul_i32", f"s{S_T1}", f"s{S_W}", "12288"),
                        valu("v_add_u32", f"v{V_T+1}", f"s{S_T1}", f"v{V_T}"), salu("s_xor_b32", f"s{S_T1}", f"s{S_W}", "2"), salu("s_mul_i32", f"s{S_T1}", f"s{S_T1}", "12288"),
                        valu("v_add_u32", f"v{V_T+2}", f"s{S_T1}", f"v{V_T}")], g0, g0 + 8, name="xpre")
        rd_end = tst[first2] + 48 - LA - 1 - OPT['rdm']
        res = [s.fixed(f"XC_{sl}", sl, lambda sl: [], lead=0) for sl in (0, 1, 2)]
        for t in res:
            t.first_need = s.bar_req[i1['bar'][15]][0]; t.last_use = rd_end + 1; t.scratch = i1['bar'][15]; s.issued.add(t.name)
        def mkx():
            bw = s.barfill[i1['bar'][15]]
            for i, (ks, qt) in enumerate(fr):
                bp = s.barfill[pub1 if ks < 2 else pub2]; lf = last1[(ks, qt)]
                op = ds_write("ds_write_b128", f"v{V_T+1}", R('v', Oacc(2 * ks, qt), 4), i * 1024); op.note = (0, 1, 2)
                w_ = s.fill(op, max(lf.earliest, bw.earliest), bp.earliest, want=max(lf.want, bw.earliest) + 0.1 + i * 0.01, after=[lf, pre1, bw], name="xw1")
                bp.after.append(w_)
                op = ds_read("ds_read_b128", R('v', Oacc(2 * ks + 1, qt), 4), f"v{V_T+2}", i * 1024, slot=('X', 100))
                need = tst[first2] + 24 + 6 * ks
                s.xneed[id(op)] = need
                s.fill(op, bp.earliest, min(need - 6, rd_end), want=bp.earliest + 1 + (i % 6) * (2 if ks < 2 else 1.2), after=[bp], name="xr1")
        s.late.append(mkx)
        NG = len(s.MF)
        if dry: return None
        for gp in OPT.get('at', []): s.forced(stamp_ops(s.nst), gap=gp, name="stamp"); s.nst += 1
        s.tile_bar = {}; s.bars = []; s.barfill = []; prev = -2
        for (need, tiles) in s.bar_req:
            gg = max(need - LA - 1, prev + 1, -1)
            def mk(tiles, fence, stA):
                def f(p):
                    names = [t.name for t in tiles]
                    for t in tiles: assert t.name in s.issued, t.name
                    idx = max((i for i, op in enumerate(p.vm) if op.tag in names), default=-1)
                    if idx >= 0: p.wait_vm_tag(p.vm[idx].tag)
                    if stA:
                        p.wait_vm_tag("stA")
                        if OPT['epoll']: p.emit(hcheck())
                    if fence:
                        ix = max((i for i, op in enumerate(p.lgkm) if isinstance(op.slot, tuple) and op.slot[0] == 'X'), default=-1)
                        if ix >= 0: p.wait_lgkm(len(p.lgkm) - 1 - ix)
                    p.barrier()
                    if stA:
                        p.emit([valu("v_mov_b32", f"v{V_TA}", "1"), valu("v_mov_b32", f"v{V_TB}", "0"),
                                raw(f"s_cmp_lg_u32 s{S_W}, 0", 'S'), raw("s_cbranch_scc1 L_npa", 'S'), raw("s_mov_b64 exec, 1", 'S'),
                                raw(f"buffer_store_dword v{V_TA}, v{V_TB}, {SWS}, s101 offen sc1", 'S'), raw("s_mov_b64 exec, -1", 'S'), raw("L_npa:", 'X')])
                        if OPT['epoll']:
                            p.emit([valu("v_min_u32", f"v{V_NM+2}", "7", "v0"), valu("v_lshlrev_b32", f"v{V_NM+2}", "3", f"v{V_NM+2}"), salu("s_mov_b32", "s99", lit(8 * 108 * 1024))])
                            s.epoll_gap = True
                return f
            fence = any(hasattr(t, 'scratch') and prev < t.last_use <= gg for t in s.tiles)
            fl = Fill([mk(tiles, fence, len(s.barfill) == s.pubA)], gg, gg, want=-10**9, name="bar"); s.FL.append(fl); s.bars.append((gg, fl)); s.barfill.append(fl)
            for t in tiles: s.tile_bar[t.name] = fl
            prev = gg
        if OPT['epoll']:
            s.fill(raw(f"buffer_load_dwordx2 v[{V_NM}:{V_NM+1}], v{V_NM+2}, {SWS}, s99 offen sc1", 'D', rd=[f"v{V_NM+2}", SWS], wr=[], tag="ep"), NG - OPT['epg'], NG - OPT['epg'] + 4, after=[s.barfill[s.pubA]], name="epoll")
        for cb in s.late: cb()
        for f in s.FL:
            if f.name == "xw" and f.deadline > s.xb_dead and f.earliest < s.xb_dead: f.deadline = s.xb_dead
        last = None
        for f, fr_ in enumerate(s.frags):
            e = s.frags[f - NFR]['u1'] if f >= NFR else -1
            b = s.tile_bar[fr_['tile'].name]; e = max(e, b.earliest)
            aft = [b, last] + [v for k, v in s.win_after if k == fr_['after']]
            for k, op in enumerate(fr_['reads']):
                last = s.fill(op, e, fr_['u0'] - 1, want=fr_['u0'] - LA + k, after=aft, name="rd"); aft = [last]
        prevf = None; stf = {}
        for (ops, e, d, b) in s.pending_st:
            prevf = s.chain(ops, min(e, NG - 1), min(d, NG - 1), want0=e, step=1.0, after=[prevf], name="st"); stf.setdefault(b, []).append(prevf)
        for (ops, e, d, b) in s.unp:
            aft = [f for f in stf.get(b, []) if f.deadline <= e]
            s.chain(ops, e, d, want0=e, step=1.0, after=aft[-1:], name="unp")
        order_t = sorted(s.tiles, key=lambda t: t.first_need)
        occ = {}; plan = []; floor = (-1, s.bars[0][1])
        for t in order_t:
            pv = occ.get(t.slot); occ[t.slot] = t
            if hasattr(t, 'scratch'):
                assert pv.last_use <= s.barfill[t.scratch].earliest, (t.name, pv.name, pv.last_use, s.barfill[t.scratch].earliest)
            if t.name in s.issued: continue
            lu = pv.last_use if pv else -1
            bg = next(x for x in s.bars if x[0] >= lu)
            if bg[0] < floor[0] and not hasattr(t, 'want_issue'): bg = floor
            if t.name.startswith(("WQ0", "X0")): floor = bg
            ml = next((x for x in s.bars if x[0] >= getattr(t, 'want_issue', t.first_need - OPT['maxlead'])), bg)
            if ml[0] > bg[0] and ml[0] < s.tile_bar[t.name].earliest: bg = ml
            plan.append((int(bg[0]), t.first_need, t, bg[1]))
        plan.sort(key=lambda x: (x[0], (x[2].name[0] not in 'KV') if OPT['hb'] and x[0] > 440 else 0, x[1]))
        lastd = None; cur = 'WQ'
        groups = {}
        for x in plan: groups.setdefault(x[0], []).append(x)
        for (gg, need, t, bf) in plan:
            ops = list(t.ops)
            if t.name.startswith('WO') and cur == 'WQ': ops = set_L_wo() + ops; cur = 'WO'
            assert not (t.name.startswith('WQ') and cur == 'WO')
            same = groups[gg]; k0 = [x[2] for x in same].index(t)
            nextbar = next((x[0] for x in s.bars if x[0] > gg), NG)
            span = max(nextbar - gg - 4, 1); tot = 6 * len(same)
            dl = s.tile_bar[t.name].earliest - 1
            assert dl >= gg, (t.name, dl, gg)
            if OPT.get('verbose'): sys.stderr.write(f"{t.name} slot {t.slot} issue@{gg} pub@{dl+1} lead {dl+1-gg}\n")
            for k, op in enumerate(ops):
                w = gg + 1 + ((k0 * 6 + min(k, 5)) * span) / tot
                if gg < 0: w = -12 + (k0 * 6 + k) * 1.0
                elif OPT['hb'] and span > 60:
                    isH = t.name[0] in 'KV'
                    grp = [x[2] for x in same if (x[2].name[0] in 'KV') == isH]
                    a_, b_ = (OPT['h0'], OPT['h1']) if isH else (OPT['l0'], OPT['l1'])
                    w = gg + a_ + (grp.index(t) * 6 + min(k, 5)) * (b_ - a_) / (6.0 * len(grp)) - OPT['dlate'] * (op.kind == 'D')
                o = [op]
                if k == len(ops) - 1: o = [op, (lambda nm: (lambda p: s.issued.add(nm)))(t.name)]
                lastd = s.fill(o, gg, dl, want=w, after=[bf, lastd], name="dma " + t.name)
        s.weave()
        s.P.emit(stamp_ops(s.nst)); s.nst += 1
        return s.P
    def allocate(s):
        bars = []; pub = {}; prev = -2
        for (need, tiles) in s.bar_req:
            gg = max(need - LA - 1, prev + 1, -1); bars.append(gg); prev = gg
            for t in tiles: pub[t.name] = gg
        for t in s.tiles:
            if hasattr(t, 'scratch'): pub[t.name] = bars[t.scratch] + 0.5
        def nb(x): return next((b for b in bars if b >= x), 10**7)
        tl = sorted(s.tiles, key=lambda t: t.first_need)
        fixed = {}
        for t in tl:
            if t.cands is None: fixed.setdefault(t.slot, []).append(t)
        rel = {sl: -1 for sl in range(10)}; al = {}
        for t in tl:
            if t.cands is None: rel[t.slot] = t.last_use; continue
            best = None
            for sl in t.cands:
                nx = next((f for f in fixed.get(sl, []) if f.first_need > t.first_need), None)
                cost = 0
                if nx:
                    r_ = nb(t.last_use)
                    if r_ >= pub[nx.name]: cost += 10**8
                    cost += 4 * max(0, r_ - min(pub[nx.name] - nx.lead, getattr(nx, 'want_issue', 10**9)))
                ib = nb(rel[sl])
                if ib >= pub[t.name]: cost += 10**9
                cost += max(0, ib - (pub[t.name] - 100))
                key = (cost, ib, sl)
                if best is None or key < best[0]: best = (key, sl)
            assert best[0][0] < 10**8, (t.name, best)
            al[t.name] = best[1]; rel[best[1]] = t.last_use
        return al
    def weave(s):
        P = s.P; mf = s.MF; by_e = {}
        for f in s.FL: by_e.setdefault(max(int(f.earliest), -1), []).append(f)
        act = []; pen = 0
        need_at = dict(s.xneed)
        for fr in s.frags:
            for op in fr['reads']: need_at[id(op)] = fr['u0']
        issue_gap = {}
        HZ = OPT['hz']; DLATE = OPT['dlate']; LLATE = OPT['llate']; WAH = OPT['wah']
        def ready(f): return all(a.done for a in f.after)
        def kind(f): return cat(f.ops[0]) if len([o for o in f.ops if not callable(o)]) == 1 and not callable(f.ops[0]) else 'X'
        def put(f, g):
            P.emit(f.ops); f.done = True; act.remove(f)
            for o in f.ops:
                if not callable(o) and o.kind == 'L': issue_gap[id(o)] = g
        for g in range(-1, len(mf)):
            if g >= 0: P.emit(mf[g])
            act += by_e.get(g, [])
            used = []
            while True:
                fo = [f for f in act if f.deadline <= g]
                if not fo: break
                def pick(f):
                    for a in f.after:
                        if not a.done: return pick(a)
                    return f
                fo.sort(key=lambda f: f.want)
                f = pick(fo[0]); assert f in act, (f.name, f.earliest, g, fo[0].name)
                put(f, g); used.append(kind(f))
            if g >= 0:
                def room(k):
                    if not used: return True
                    if len(used) >= 2 or used[0] in 'EDX': return False
                    return True
                def best(kinds, lim):
                    c = [f for f in act if kind(f) in kinds and f.want <= lim and ready(f)]
                    return min(c, key=lambda f: f.want) if c else None
                def take(f): put(f, g); used.append(kind(f))
                if not used:
                    f = best('L', g) or best('E', g + 10**6) or best('D', g + HZ) or best('L', g + HZ) or best('X', g + HZ)
                    if f: take(f)
                if len(used) == 1 and used[0] == 'L':
                    f = best('D', g - DLATE) or best('L', g - LLATE)
                    if f: take(f); pen += 1
                for _ in range(2):
                    if room('V'):
                        f = best('S', g + 1) or best('VS', g + HZ)
                        if f: take(f)
                full = len(used) >= 2 or (used and used[0] in 'EDX')
                if P.lgkm:
                    nxt = min((need_at.get(id(o), 10**9) for o in P.lgkm), default=10**9)
                    if (not full and nxt - g <= WAH) or nxt <= g + 1:
                        k = 0
                        for o in P.lgkm:
                            if issue_gap.get(id(o), g) <= g - LAT or need_at.get(id(o), 10**9) <= g + 1: k += 1
                            else: break
                        for q_, o in enumerate(P.lgkm):
                            if need_at.get(id(o), 10**9) <= g + 1: k = max(k, q_ + 1)
                        covers = any(need_at.get(id(o), 10**9) == nxt for o in P.lgkm[:k]) and not any(need_at.get(id(o), 10**9) == nxt for o in P.lgkm[k:])
                        if k and covers:
                            P.wait_lgkm(len(P.lgkm) - k)
                            if full: pen += 1
            if len(used) > 2: pen += len(used) - 2
        assert not act, [(f.name, f.earliest, f.deadline) for f in act]
        sys.stderr.write(f"MFMA {len(mf)} instrs {len(P.out)} nops {P.nops} pen {pen} stats {P.stats}\n")

_old_barrier = Prog.barrier
def _barrier(p):
    idx = max((i for i, op in enumerate(p.lgkm) if op.txt.startswith('ds_write')), default=-1)
    if idx >= 0: p.wait_lgkm(len(p.lgkm) - 1 - idx)
    _old_barrier(p)
Prog.barrier = _barrier
_old_emit = Prog.emit
def _emit(p, ins):
    if isinstance(ins, I):
        tgt = []
        if ins.kind == 'D' and ins.slot is not None: tgt = [ins.slot]
        if ins.kind == 'L' and ins.txt.startswith('ds_write') and getattr(ins, 'note', None): tgt = list(ins.note)
        for sl in tgt:
            for u in p.unsafe:
                assert not (u == sl or (isinstance(u, tuple) and sl in u)), f"write into slot {sl} while reads unfenced ({u}): {ins.txt}"
    _old_emit(p, ins)
Prog.emit = _emit

def slow_path():
    P = Prog(); E = P.emit
    E(raw("L_slow:", 'X'))
    E(raw("s_nop 15", 'W')); E(raw("s_waitcnt vmcnt(0) lgkmcnt(0)", 'W'))
    SS = V_S; KF = V_S + 12; NMX = V_S + 28; ta, tv = V_S + 40, V_S + 41
    MX = Preg(1, 0); PB = Preg(1, 0) + 6
    E(salu("s_lshl_b32", "s50", f"s{S_HD}", "17")); E(salu("s_add_u32", "s48", "s48", "s50"))
    E(valu("v_and_b32", f"v{tv}", "15", "v0")); E(valu("v_lshlrev_b32", f"v{ta}", "8", f"v{tv}"))
    E(valu("v_lshrrev_b32", f"v{KF}", "4", "v0")); E(valu("v_lshl_add_u32", f"v{ta}", f"v{KF}", "4", f"v{ta}"))
    E(valu("v_lshlrev_b32", f"v{tv}", "1", f"v{tv}")); E(valu("v_lshl_add_u32", f"v{tv}", f"v{KF}", "10", f"v{tv}"))
    for qt in range(3): E(valu("v_mov_b32", f"v{MX+2*qt}", "0xff7fffff"))
    def scores(c):
        for ks in range(4):
            E(raw(f"buffer_load_dwordx4 v[{KF+4*ks}:{KF+4*ks+3}], v{ta}, {SK}, s49 offen offset:{64*ks}", 'D', rd=[f"v{ta}"], wr=[f"v[{KF+4*ks}:{KF+4*ks+3}]"]))
        for ks in range(4):
            for qt in range(3):
                E(mfma(R('v', SS + 4 * qt, 4), R('v', KF + 4 * ks, 4), QF(ks, qt), c(qt) if ks == 0 else R('v', SS + 4 * qt, 4)))
    def loop_end(lab):
        E(raw("s_nop 15", 'W')); E(raw("s_waitcnt vmcnt(0) lgkmcnt(0)", 'W')); P.vm = []; P.lgkm = []
        E(salu("s_add_u32", "s49", "s49", "4096")); E(salu("s_add_u32", "s51", "s51", "1"))
        E(raw("s_cmp_lt_u32 s51, 32", 'S')); E(raw(f"s_cbranch_scc1 {lab}", 'S'))
    E(salu("s_mov_b32", "s49", "s48")); E(salu("s_mov_b32", "s51", "0"))
    E(raw("L_sl1:", 'X'))
    scores(lambda qt: "0")
    for qt in range(3):
        x = SS + 4 * qt
        E(valu("v_max3_f32", f"v{MX+2*qt}", f"v{MX+2*qt}", f"v{x}", f"v{x+1}")); E(valu("v_max3_f32", f"v{MX+2*qt}", f"v{MX+2*qt}", f"v{x+2}", f"v{x+3}"))
    loop_end("L_sl1")
    for qt in range(3):
        a, b = f"v{MX+2*qt}", f"v{MX+2*qt+1}"
        E(valu("v_mov_b32", b, a)); E(valu("v_permlane16_swap_b32", a, b)); E(valu("v_max_f32", a, a, b))
        E(valu("v_mov_b32", b, a)); E(valu("v_permlane32_swap_b32", a, b)); E(valu("v_max_f32", a, a, b))
        for k in range(4): E(valu("v_sub_f32", f"v{NMX+4*qt+k}", "0", a))
    for k in range(96): E(valu("v_mov_b32", f"v{V_O+k}", "0"))
    for k in range(12): E(valu("v_accvgpr_write_b32", f"a{A_L+k}", "0"))
    E(salu("s_mov_b32", "s49", "s48")); E(salu("s_mov_b32", "s51", "0"))
    E(raw("L_sl2:", 'X'))
    scores(lambda qt: R('v', NMX + 4 * qt, 4))
    for k in range(12): E(valu("v_exp_f32", f"v{SS+k}", f"v{SS+k}"))
    for qt in range(3):
        for h in range(2): E(valu("v_cvt_pk_bf16_f32", f"v{PB+2*qt+h}", f"v{SS+4*qt+2*h}", f"v{SS+4*qt+2*h+1}"))
    E(raw("s_nop 7", 'W'))
    M16 = "v_mfma_f32_16x16x16_bf16"
    for qt in range(3): E(mfma(R('a', A_L + 4 * qt, 4), R('a', A_ONE, 2), R('v', PB + 2 * qt, 2), R('a', A_L + 4 * qt, 4), op=M16))
    for dh in range(2):
        for d4 in range(4):
            for h in range(2):
                for half in range(2):
                    E(raw(f"buffer_load_ushort v{KF+8*half+2*d4+h}, v{tv}, {SV}, s49 offen offset:{(2*h+half)*256+32*(4*dh+d4)}", 'D', rd=[f"v{tv}"], wr=[f"v{KF+8*half+2*d4+h}"]))
        for k in range(8): E(valu("v_lshl_or_b32", f"v{KF+k}", f"v{KF+8+k}", "16", f"v{KF+k}"))
        for d4 in range(4):
            for qt in range(3): E(mfma(R('v', Oacc(4 * dh + d4, qt), 4), R('v', KF + 2 * d4, 2), R('v', PB + 2 * qt, 2), R('v', Oacc(4 * dh + d4, qt), 4), op=M16))
        E(raw("s_nop 7", 'W'))
    loop_end("L_sl2")
    for k in range(12): E(valu("v_mov_b32", f"v{Preg(1,0)+k}", "0"))
    for qt in range(3): E(valu("v_accvgpr_read_b32", f"v{RL[qt]}", f"a{A_L+4*qt}"))
    E(raw("s_nop 7", 'W'))
    E(raw(f"s_setpc_b64 {S_RET}", 'S'))
    return P

def final(nst, CORD):
    P = Prog(); E = P.emit
    LDF = " sc1"
    E(raw("L_final:", 'X'))
    E(valu("v_min_u32", "v26", "7", "v0")); E(valu("v_lshlrev_b32", "v26", "3", "v26")); E(salu("s_mov_b32", "s61", lit(8 * 108 * 1024)))
    PL = f"buffer_load_dwordx2 v[4:5], v26, {SWS}, s99 offen sc1"
    E(salu("s_mov_b32", "s99", lit(8 * 108 * 1024)))
    E(valu("v_lshlrev_b32", "v2", "4", "v0"))
    E(salu("s_lshl_b32", "s52", "s46", "2")); E(salu("s_add_u32", "s52", "s52", f"s{S_W}"))
    E(salu("s_mov_b32", "s64", "s68")); E(salu("s_and_b32", "s65", "s69", "0xffff")); E(salu("s_mov_b32", "s66", lit(16 * 96 * 1152 * 2))); E(salu("s_mov_b32", "s67", "0x20000"))
    E(valu("v_and_b32", "v6", "15", "v0")); E(valu("v_mul_u32_u24", "v6", "2304", "v6"))
    E(valu("v_lshrrev_b32", "v7", "4", "v0")); E(valu("v_lshl_add_u32", "v6", "v7", "3", "v6"))
    E(valu("v_mov_b32", "v24", "0x3f80")); E(valu("v_mov_b32", "v25", "0x3f800000"))
    tab = sum(p << (4 * c) for c, p in enumerate(CORD))
    E(salu("s_mov_b32", "s62", lit(tab & 0xffffffff))); E(salu("s_mov_b32", "s63", lit(tab >> 32)))
    E(salu("s_mul_i32", "s60", "s44", str(96 * 2304))); E(salu("s_mul_i32", "s61", "s42", "1152")); E(salu("s_add_u32", "s60", "s60", "s61"))
    for k in range(4):
        E(salu("s_add_u32", "s53", "s52", str(32 * k)))
        E(salu("s_mul_hi_u32", "s54", "s53", str((2**32 + 11) // 12)))
        E(salu("s_mul_i32", "s55", "s54", "12")); E(salu("s_sub_u32", "s55", "s53", "s55"))
        E(salu("s_lshl_b32", "s54", "s54", "2")); E(raw("s_lshr_b64 s[36:37], s[62:63], s54", 'S', wr=["s[36:37]"])); E(salu("s_and_b32", "s36", "s36", "15"))
        E(salu("s_lshl_b32", "s36", "s36", "7")); E(salu("s_add_u32", "s36", "s36", "s41")); E(salu("s_sub_u32", "s37", "s36", "1152")); E(salu("s_min_u32", "s36", "s36", "s37"))
        E(raw("s_cmp_ge_u32 s55, 6", 'S')); E(raw("s_cselect_b32 s37, 64, 0", 'S', wr=["s37"])); E(raw("s_cselect_b32 s54, 6, 0", 'S', wr=["s54"]))
        E(salu("s_sub_u32", "s55", "s55", "s54")); E(salu("s_mul_i32", "s55", "s55", str(16 * 2304)))
        E(salu("s_add_u32", "s55", "s55", "s36")); E(salu("s_add_u32", "s55", "s55", "s37")); E(salu("s_add_u32", f"s{56+k}", "s55", "s60"))
        if k == 3: E(raw("s_cmp_lt_u32 s52, 12", 'S')); E(raw("s_cselect_b32 s59, s59, 0x70000000", 'S', wr=["s59"]))
    E(raw("s_waitcnt vmcnt(0) lgkmcnt(0)", 'W'))
    E(stamp_ops(nst)); nst += 1
    if OPT['epoll']:
        E(valu("v_mov_b32", "v4", f"v{V_NM}")); E(valu("v_mov_b32", "v5", f"v{V_NM+1}"))
    else: E(hcheck())
    E(salu("s_lshl_b32", "s53", "s46", "3")); E(raw("v_cmp_eq_u32 s[48:49], s53, v26", 'V', rd=["v26", "s53"]))
    E(raw("s_barrier", 'B'))
    E(raw(f"s_cmp_lg_u32 s{S_W}, 0", 'S')); E(raw("s_cbranch_scc1 L_npb", 'S'))
    E(raw("s_mov_b64 exec, 1", 'S'))
    E(raw(f"buffer_store_dword v{V_TA}, v{V_TB}, {SWS}, s101 offen offset:4 sc1", 'D'))
    E(raw("s_mov_b64 exec, -1", 'S'))
    E(raw("L_npb:", 'X'))
    def poll(reg, tag, first):
        E(salu("s_mov_b32", "s53", "0"))
        if first: E(raw(f"s_branch L_pl{tag}", 'S'))
        E(raw(f"L_poll{tag}:", 'X'))
        E(raw(f"v_cmp_eq_u32 vcc, 1, v{reg}", 'V')); E(raw("s_add_u32 s53, s53, 1", 'S')); E(raw("s_nop 1", 'W'))
        E(raw("s_or_b64 vcc, vcc, s[48:49]", 'S'))
        E(raw("s_cmp_eq_u64 vcc, -1", 'S')); E(raw(f"s_cbranch_scc1 L_pd{tag}", 'S'))
        if OPT['psleep']: E(raw(f"s_sleep {OPT['psleep']}", 'S'))
        E(raw(f"L_pl{tag}:", 'X'))
        E(raw(PL, 'D')); E(raw("s_waitcnt vmcnt(0)", 'W'))
        E(raw("s_cmp_lt_u32 s53, 0x400000", 'S')); E(raw(f"s_cbranch_scc1 L_poll{tag}", 'S'))
        E(raw(f"L_pd{tag}:", 'X'))
        P.vm = []
    def loads(k):
        E(salu("s_add_u32", "s53", "s52", str(32 * k))); E(salu("s_lshl_b32", "s53", "s53", "10"))
        if k == 3: E(raw("s_cmp_lt_u32 s52, 12", 'S')); E(raw("s_cselect_b32 s53, s53, 0x70000000", 'S', wr=["s53"]))
        for j in range(8):
            d = 32 + 32 * k + 4 * j
            E(raw(f"buffer_load_dwordx4 v[{d}:{d+3}], v2, {SWS}, s53 offen" + LDF, 'D', rd=["v2", "s53"], wr=[f"v[{d}:{d+3}]"]))
            if j < 7: E(salu("s_add_u32", "s53", "s53", str(108 * 1024)))
    def red(k):
        acc = 8
        for j in range(8):
            d = 32 + 32 * k + 4 * j
            for c in range(4):
                E(valu("v_dot2_f32_bf16", f"v{acc+2*c}", f"v{d+c}", "v24", "0" if j == 0 else f"v{acc+2*c}"))
                E(valu("v_dot2_f32_bf16", f"v{acc+2*c+1}", f"v{d+c}", "v25", "0" if j == 0 else f"v{acc+2*c+1}"))
        E(raw("s_nop 2", 'W'))
        o = 16 + 4 * (k & 1)
        for c in range(4): E(valu("v_cvt_pk_bf16_f32", f"v{o+c}", f"v{acc+2*c}", f"v{acc+2*c+1}"))
        E(raw(f"buffer_store_dwordx2 v[{o}:{o+1}], v6, s[64:67], s{56+k} offen", 'D', rd=[f"v[{o}:{o+1}]"]))
        E(raw(f"buffer_store_dwordx2 v[{o+2}:{o+3}], v6, s[64:67], s{56+k} offen offset:32", 'D', rd=[f"v[{o+2}:{o+3}]"]))
        E(raw("s_nop 2", 'W'))
    poll(4, "A", not OPT['epoll'])
    if OPT['epoll']:
        E(raw("v_cmp_eq_u32 vcc, 1, v5", 'V')); E(raw("s_nop 1", 'W')); E(raw("s_or_b64 vcc, vcc, s[48:49]", 'S'))
        E(raw("s_cmp_eq_u64 vcc, -1", 'S')); E(raw("s_cbranch_scc0 L_two", 'S'))
        for k in range(4): loads(k)
        E(stamp_ops(nst))
        for k in range(4): red(k)
        E(raw("s_branch L_fin", 'S'))
        E(raw("L_two:", 'X')); P.vm = []
    loads(0); loads(1)
    E(raw(PL, 'D', wr=["v[4:5]"]))
    red(0); red(1)
    E(raw("s_waitcnt vmcnt(4)", 'W'))
    poll(5, "B", False)
    E(stamp_ops(nst)); nst += 1
    loads(2); loads(3)
    red(2); red(3)
    E(raw("L_fin:", 'X'))
    if OPT['stamp']:
        E(raw("s_waitcnt vmcnt(0)", 'W'))
        E(stamp_ops(nst)); nst += 1
        E(salu("s_lshl_b32", "s40", "s2", "2")); E(salu("s_add_u32", "s40", "s40", f"s{S_W}")); E(salu("s_lshl_b32", "s40", "s40", "7"))
        E(salu("s_add_u32", "s40", "s40", hex(64 << 20)))
        E(salu("s_add_u32", "s72", "s72", "s40")); E(salu("s_addc_u32", "s73", "s73", "0"))
        E(valu("v_mov_b32", "v1", "0"))
        for k in range(nst):
            E(valu("v_mov_b32", "v2", f"s{78+k}")); E(valu("v_mov_b32", "v3", f"s{89+k}"))
            E(raw(f"global_store_dword v1, v2, s[72:73] offset:{4*k}", 'D', rd=['v1', 'v2']))
            E(raw(f"global_store_dword v1, v3, s[72:73] offset:{64+4*k}", 'D', rd=['v1', 'v3'])); E(raw("s_nop 1", 'W'))
        sys.stderr.write(f"stamps {nst}\n")
    E(raw("s_endpgm", 'X'))
    return P


d = Build({}); d.build(dry=True); al = d.allocate()
b = Build(al); P = b.build()
parts = [P0.text(), P.text(), final(b.nst, b.CORD).text()]
if OPT['slow']: parts.append(slow_path().text())
parts.append("L_end0:\ns_endpgm\nL_codeend:")
body = "\n".join(parts)

import re
MAC = """.macro mf d,a,b,c
v_mfma_f32_16x16x32_bf16 \\d,\\a,\\b,\\c
.endm
.macro tr d,a,o
ds_read_b64_tr_b16 \\d,\\a offset:\\o
.endm
.macro rq d,a,o
ds_read_b128 \\d,\\a offset:\\o
.endm
.macro dn v,r,s,o
buffer_load_dwordx4 \\v,\\r,\\s offen offset:\\o nt lds
.endm
.macro dl v,r,s,o
buffer_load_dwordx4 \\v,\\r,\\s offen offset:\\o lds
.endm
.macro wl n
s_waitcnt lgkmcnt(\\n)
.endm
.macro cv d,a,b
v_cvt_pk_bf16_f32 \\d,\\a,\\b
.endm
.macro ex d
v_exp_f32 \\d,\\d
.endm
"""
def compact(l):
    if l.startswith("v_mfma_f32_16x16x32_bf16 "): return "mf " + l[25:].replace(", ", ",")
    m = re.fullmatch(r"ds_read_b64_tr_b16 (\S+), (\S+) offset:(\d+)", l)
    if m: return f"tr {m.group(1)},{m.group(2)},{m.group(3)}"
    m = re.fullmatch(r"ds_read_b128 (\S+), (\S+) offset:(\d+)", l)
    if m: return f"rq {m.group(1)},{m.group(2)},{m.group(3)}"
    m = re.fullmatch(r"buffer_load_dwordx4 (\S+), (\S+), (\S+) offen offset:(\d+) (nt )?lds", l)
    if m: return f"{'dn' if m.group(5) else 'dl'} {m.group(1)},{m.group(2)},{m.group(3)},{m.group(4)}"
    m = re.fullmatch(r"s_waitcnt lgkmcnt\((\d+)\)", l)
    if m: return f"wl {m.group(1)}"
    m = re.fullmatch(r"v_cvt_pk_bf16_f32 (\S+), (\S+), (\S+)", l)
    if m: return f"cv {m.group(1)},{m.group(2)},{m.group(3)}"
    m = re.fullmatch(r"v_exp_f32 (\S+), (\S+)", l)
    if m and m.group(1) == m.group(2): return f"ex {m.group(1)}"
    return l
if OPT.get('compact', 1): body = "\n".join(compact(l) for l in body.split("\n"))
else: MAC = ""

def kd(name, vg, acc):
    return f""".amdhsa_kernel {name}
  .amdhsa_next_free_vgpr {vg}
  .amdhsa_next_free_sgpr 102
  .amdhsa_accum_offset {acc}
  .amdhsa_group_segment_fixed_size 0
  .amdhsa_kernarg_size 104
  .amdhsa_user_sgpr_count 2
  .amdhsa_user_sgpr_kernarg_segment_ptr 1
  .amdhsa_system_sgpr_workgroup_id_x 1
.end_amdhsa_kernel
"""
txt = f"""; generated by gen/gen5.py (hand-written generator; fused Qproj + attention + Oproj + in-kernel reduction)
; @launch grid=(256,1,1) block=(256,1,1) lds=163840
.amdgcn_target "amdgcn-amd-amdhsa--gfx950"
{MAC}.text
.globl {NAME}_kernel
.p2align 8
.type {NAME}_kernel,@function
{NAME}_kernel:
""" + body + '\n.section .rodata,"a"\n.p2align 6\n' + kd(NAME + "_kernel", 512, 256)
open(sys.argv[1], "w").write(txt)
```

```python
import sys, math, struct, re
from asmlib import *

NAME = "concat_heads__mha_block_cached__mha_block_cached__near_ridge"
OPT = dict(LA=13, LAT=7, dlate=8, llate=3, wah=4, hz=5, nt_kv=1, stamp=0, cpf=1, fake=0, slow=1, forceslow=0, compact=1, rot=1, psleep=8,
           leadh=110, two=0, earlyB=6, e0B=-1, estepB=0, popm=1, epoll=1, epg=30, rdm=4, std1=40, std2=46, pfsc=1, q0t=0, q0tw=4, q0tx=9, pf2=0, pfa=12, pfb=8, pfc=8, up=0, krot=1, plead=70, ptb=1, xb2=3, nost=0, puba=2, ntt=0, ntw0=0, cpf2=0, cps=10, ntq0=0, pfw=0, pft0=6, pfd=2, early=3, e0=150, estep=48, pft=0, pfs=10, ntx=0, npl0=3, npl1=0, hb=0, h0=1, h1=30, l0=45, l1=62, stf=1, ldf=1, wb=0, maxlead=200, o0start=2)
for a in sys.argv[2:]:
    k, v = a.split('='); OPT[k] = int(v) if k != 'at' else [int(x) for x in v.split(',')]
LA, LAT = OPT['LA'], OPT['LAT']

V_TA, V_AO0, V_TB = 1, 2, 3
V_PFD = 'PFD'
V_AK, V_AV = 4, 8
V_KA, V_KB, V_VA, V_VB = 16, 17, 18, 19
V_L = 20; V_WO0 = 24; V_T = 25
V_QF = 28; V_O = 76; V_S = 172; V_P = 220; V_NM = 244; V_H = 248
A_L = 216; A_ONE = 228; A_FR = 232; NFR = 6
def QFr(ks, qt): return V_QF + 4 * (ks * 3 + qt)
def QF(ks, qt): return R('v', QFr(ks, qt), 4)
def Oacc(dt, qt): return V_O + 4 * (dt * 3 + qt)
def Sreg(buf, t, qt): return V_S + 24 * buf + 4 * (t * 3 + qt)
def Preg(buf, qt): return V_P + 12 * buf + 4 * qt
NMR = R('v', V_NM, 4)
RL = [V_NM, V_NM + 2, V_H + 6]
def XFr(p, qt): return 12 * p + 4 * qt
def QaccQS(dt, qt): return QFr(dt >> 1, qt) if dt % 2 == 0 else (V_S + 4 * ((dt >> 1) * 3 + qt))
OBA = [96 + 4 * i for i in range(18)] + [192 + 4 * i for i in range(6)]
def OBa(hh, ks, qt): return OBA[(hh * 4 + ks) * 3 + qt]
ACCB = [0, 24]
PARK = [48, 60, 72, 84, 168, 180]
S_W, S_W4K, S_W3K = 3, 4, 5
SK, SV, SWQ, SWO, SX, SWS = 's[8:11]', 's[12:15]', 's[16:19]', 's[20:23]', 's[24:27]', 's[28:31]'
S_OFF, S_C, S_T0, S_T1, S_HD, S_QH, S_ST = 32, 34, 36, 37, 38, 39, 33
S_RET = 's[6:7]'
SLOT = 16384
KPW = [52 + p for p in range(9)]
KPX = [61, 62, 63, 64, 65, 66, 67, 43, 45]
def lit(x): return hex(x & 0xffffffff)
cval = struct.unpack('<I', struct.pack('<f', math.log2(math.e) / math.sqrt(128.0)))[0]
NT = "nt" if OPT['nt_kv'] else ""
def win(slot): return (2, (slot - 6) * SLOT) if slot >= 6 else ((1, (slot - 3) * SLOT) if slot >= 3 else (0, slot * SLOT))
WBASE = [0, 3 * SLOT, 6 * SLOT]
AW = {2: V_H, 1: V_P}
AX = {2: V_H + 4, 0: V_P + 4}
AO = {2: V_H, 1: V_H + 2, 0: V_H + 4}

class Tile:
    def __init__(s, name, slot, ops, cands=None, lead=None):
        s.name = name; s.slot = slot; s.ops = ops; s.cands = cands; s.lead = lead
        s.last_use = None; s.first_need = None
def touch(v, srd, so, off=0): return raw(f"buffer_load_dword v{V_H+7}, {v}, {srd}, {so} offen offset:{off}" + (" sc1 nt" if OPT['pfsc'] else " nt"), 'D', rd=[v, srd, so], wr=[], tag="pf")
def x_ops(n, i, slot):
    return ([touch(f"v{V_TA}", SX, f"s{KPX[i]}")] if OPT['q0t'] and n.startswith("X0") and i < OPT['q0tx'] else []) + [salu("s_add_u32", "m0", f"s{S_W3K}", lit(slot * SLOT))] + [dma(f"v{V_T+j}", SX, f"s{KPX[i]}", 1024 * j, "nt" if (OPT['ntx'] or (OPT['ntq0'] and n.startswith("X0"))) else "", tag=n, slot=slot) for j in range(3)]
def w_ops(srd, n, sreg, off, slot):
    ops = [salu("s_add_u32", "m0", f"s{S_W4K}", lit(slot * SLOT))]; so = f"s{sreg}"
    if off: ops.append(salu("s_add_u32", f"s{S_OFF}", so, lit(off))); so = f"s{S_OFF}"
    if OPT['q0t'] and n.startswith("WQ0") and int(n[4:]) < OPT['q0tw']: ops.append(touch(f"v{V_TB}", srd, so))
    return ops + [dma(f"v{V_L+j}", srd, so, 1024 * j, "nt" if (((OPT['ntq0'] or OPT['ntw0']) and n.startswith("WQ0")) or (OPT['ntt'] and n.startswith(("WO2", "WO3")))) else "", tag=n, slot=slot) for j in range(4)]
def wq_ops(r, p, slot): return w_ops(SWQ, f"WQ{r}_{p}", KPW[p >> 1], (p & 1) * 262144 + r * 512, slot)
def wo_ops(h4, nb, slot): return w_ops(SWO, f"WO{h4}_{nb}", KPW[nb], h4 * 128 * 1152, slot)
def kv_ops(kind, r, n_, slot):
    n = f"{kind}{r}_{n_}"
    va, vb, srd = (V_KA, V_KB, SK) if kind == 'K' else (V_VA, V_VB, SV)
    ops = [salu("s_add_u32", "m0", f"s{S_W4K}", lit(slot * SLOT)), salu("s_mov_b32", f"s{S_OFF}", lit((n_ & 1) * 8192 if OPT['fake'] in (1, 2) else r * 262144 + n_ * 8192))]
    if OPT['krot'] and OPT['fake'] not in (1, 2):
        ops = ops[:1] + [salu("s_add_u32", f"s{S_OFF}", "s98", lit(n_ * 8192)), salu("s_and_b32", f"s{S_OFF}", f"s{S_OFF}", "0x1ffff")]
        if r == 1 and n_ == 0: ops = [valu("v_add_u32", f"v{va}", "0x40000", f"v{va}"), valu("v_add_u32", f"v{vb}", "0x40000", f"v{vb}")] + ops
    return ops + [dma(f"v{va}", srd, f"s{S_OFF}", 0, NT, tag=n, slot=slot), dma(f"v{va}", srd, f"s{S_OFF}", 1024, NT, tag=n, slot=slot),
                  dma(f"v{vb}", srd, f"s{S_OFF}", 2048, NT, tag=n, slot=slot), dma(f"v{vb}", srd, f"s{S_OFF}", 3072, NT, tag=n, slot=slot)]
def set_L_wo():
    ops = [valu("v_mov_b32", f"v{V_L}", f"v{V_WO0}")] + [valu("v_add_u32", f"v{V_L+j}", str(8192 * j), f"v{V_WO0}") for j in (1, 2, 3)]
    for p in range(9):
        if OPT['fake'] > 1: ops.append(salu("s_mov_b32", f"s{KPW[p]}", str((p & 1) * 128))); continue
        ops.append(raw(f"s_add_u32 s{KPW[p]}, s41, {128*p}\ns_sub_u32 s{S_OFF}, s{KPW[p]}, 1152\ns_min_u32 s{KPW[p]}, s{KPW[p]}, s{S_OFF}", 'X', rd=["s41"], wr=[f"s{KPW[p]}", f"s{S_OFF}"]))
    return ops
def set_addr_o(w):
    return [valu("v_add_u32", f"v{AO[w]}", lit(WBASE[w]), f"v{V_AO0}"), valu("v_xor_b32", f"v{AO[w]+1}", "32", f"v{AO[w]}")]
def stamp_ops(k):
    if not OPT['stamp']: return []
    return [lambda p: p.wait_lgkm(0), raw("s_memrealtime s[74:75]", 'S'), raw("s_memtime s[76:77]", 'S'), raw("s_waitcnt lgkmcnt(0)", 'W'),
            raw(f"s_mov_b32 s{78+k}, s74", 'S'), raw(f"s_mov_b32 s{89+k}, s76", 'S')]
PRE = {"X0_0": 0, "WQ0_0": 6, "WQ0_1": 7, "X0_1": 1}
if OPT['two']: PRE = {"X0_0": 8, "WQ0_0": 6, "WQ0_1": 7, "X0_1": 9}
if OPT['up'] >= 3: PRE.update({"WQ0_2": 3, "WQ0_3": 4})

P0 = Prog(); E = P0.emit
E(raw("s_cmp_ge_u32 s2, 256", 'S')); E(raw("s_cbranch_scc1 L_end0", 'S'))
E(raw("s_load_dwordx16 s[80:95], s[0:1], 0", 'S'))
E(raw("s_load_dwordx4 s[96:99], s[0:1], 64", 'S'))
E(raw("s_load_dwordx4 s[68:71], s[0:1], 80", 'S'))
E(raw("s_load_dwordx2 s[72:73], s[0:1], 96", 'S'))
if OPT['stamp']: E(raw("s_memrealtime s[74:75]", 'S')); E(raw("s_memtime s[76:77]", 'S'))
E(valu("v_lshrrev_b32", "v1", "6", "v0")); E(valu("v_and_b32", "v0", "63", "v0"))
E(valu("v_readfirstlane_b32", f"s{S_W}", "v1"))
E(salu("s_and_b32", "s40", "s2", "7")); E(salu("s_lshr_b32", "s41", "s2", "3"))
E(salu("s_lshr_b32", "s42", "s40", "2")); E(salu("s_and_b32", "s43", "s40", "3"))
E(salu("s_lshr_b32", "s44", "s41", "1")); E(salu("s_and_b32", "s45", "s41", "1"))
E(salu("s_lshl_b32", "s46", "s43", "1")); E(salu("s_add_u32", "s46", "s46", "s45"))
E(salu("s_mul_i32", "s48", "s45", "5")); E(salu("s_add_u32", "s48", "s48", "s44"))
for _ in range(2):
    E(salu("s_sub_u32", "s49", "s48", "9")); E(raw("s_cmp_ge_u32 s48, 9", 'S')); E(raw("s_cselect_b32 s48, s49, s48", 'S', wr=["s48"]))
if not OPT['rot'] or OPT['fake'] > 1: E(salu("s_mov_b32", "s48", "0"))
E(salu("s_lshl_b32", f"s{KPW[0]}", "s48", "19")); E(salu("s_lshl_b32", f"s{KPX[0]}", "s48", "7"))
E(salu("s_lshl_b32", f"s{S_W4K}", f"s{S_W}", "12")); E(salu("s_mul_i32", f"s{S_W3K}", f"s{S_W}", "3072"))
T = V_S
i16, g4, r4, c4, i5, t0, t1, t2 = (f"v{T+k}" for k in range(8))
E(valu("v_lshrrev_b32", i5, "5", "v0")); E(valu("v_and_b32", t2, "7", "v0"))
E(salu("s_mul_i32", f"s{S_T0}", f"s{S_W}", "24"))
for j in range(3):
    E(valu("v_lshrrev_b32", t0, "3", "v0")); E(valu("v_add3_u32", t0, t0, f"s{S_T0}", str(8 * j)))
    E(valu("v_bfe_u32", t1, t0, "1", "3")); E(valu("v_xor_b32", t1, t1, t2))
    E(valu("v_mul_u32_u24", t0, "1152", t0)); E(valu("v_lshl_add_u32", f"v{V_T+j}", t1, "4", t0))
    if j: E(valu("v_subrev_u32", f"v{V_T+j}", str(1024 * j), f"v{V_T+j}"))
E(salu("s_lshl_b32", f"s{S_T0}", f"s{S_W}", "3"))
E(valu("v_add_u32", t0, f"s{S_T0}", i5)); E(valu("v_lshlrev_b32", t0, "13", t0))
E(valu("v_and_b32", t1, "31", "v0")); E(valu("v_lshlrev_b32", t2, "2", i5)); E(valu("v_xor_b32", t1, t1, t2))
E(valu("v_lshl_add_u32", f"v{V_L}", t1, "4", t0))
E(valu("v_xor_b32", f"v{V_L+1}", "0x80", f"v{V_L}")); E(valu("v_add_u32", f"v{V_L+2}", str(2 * 15360), f"v{V_L}"))
E(valu("v_add_u32", f"v{V_L+3}", str(3 * 15360), f"v{V_L+1}")); E(valu("v_add_u32", f"v{V_L+1}", str(15360), f"v{V_L+1}"))
if OPT['q0t']:
    E(valu("v_min_u32", t0, "23", "v0")); E(salu("s_mul_i32", f"s{S_T1}", f"s{S_W}", "24")); E(valu("v_add_u32", t0, f"s{S_T1}", t0)); E(valu("v_mul_u32_u24", f"v{V_TA}", "1152", t0))
    E(valu("v_bfe_u32", t0, "v0", "2", "3")); E(valu("v_add_u32", t0, f"s{S_T0}", t0)); E(valu("v_lshlrev_b32", t0, "13", t0))
    E(valu("v_and_b32", t1, "3", "v0")); E(valu("v_lshl_add_u32", f"v{V_TB}", t1, "7", t0))
E(salu("s_mul_i32", f"s{S_T0}", "s44", "110592")); E(salu("s_lshl_b32", f"s{S_T1}", "s46", "10"))
E(salu("s_mov_b32", "s26", lit(110592))); E(salu("s_mov_b32", "s27", "0x20000"))
E(salu("s_sub_u32", "s18", lit(576 * 8192), f"s{S_T1}")); E(salu("s_mov_b32", "s19", "0x20000"))
E(raw("s_waitcnt lgkmcnt(0)", 'W'))
E(raw("s_cmp_eq_u32 s42, 0", 'S'))
for (d, a, b) in [(24, 80, 90), (16, 86, 96), (8, 82, 92), (12, 84, 94), (20, 88, 98)]:
    E(raw(f"s_cselect_b64 s[{d}:{d+1}], s[{a}:{a+1}], s[{b}:{b+1}]", 'S', wr=[f"s[{d}:{d+1}]"]))
if OPT['stamp']: E(raw("s_mov_b32 s78, s74", 'S')); E(raw("s_mov_b32 s89, s76", 'S'))
def srd_base(E, d, off_s):
    E(salu("s_add_u32", f"s{d}", f"s{d}", off_s)); E(salu("s_addc_u32", f"s{d+1}", f"s{d+1}", "0")); E(salu("s_and_b32", f"s{d+1}", f"s{d+1}", "0xffff"))
def srd_finish(E, d, off_s, size):
    srd_base(E, d, off_s); E(salu("s_mov_b32", f"s{d+2}", lit(size))); E(salu("s_mov_b32", f"s{d+3}", "0x20000"))
srd_base(E, 24, f"s{S_T0}"); E(x_ops("X0_0", 0, PRE["X0_0"]))
srd_base(E, 16, f"s{S_T1}"); E(wq_ops(0, 0, PRE["WQ0_0"]))
if OPT['up'] >= 1: E(wq_ops(0, 1, PRE["WQ0_1"]))
if OPT['up'] >= 2:
    E(salu("s_add_u32", f"s{KPX[1]}", f"s{KPX[0]}", "128")); E(salu("s_sub_u32", "s49", f"s{KPX[1]}", "1152")); E(salu("s_min_u32", f"s{KPX[1]}", f"s{KPX[1]}", "s49"))
    E(x_ops("X0_1", 1, PRE["X0_1"]))
if OPT['cpf']:
    E(raw("s_getpc_b64 s[28:29]", 'S', wr=["s[28:29]"])); E(raw("L_pc0:", 'X'))
    E(salu("s_and_b32", "s29", "s29", "0xffff")); E(raw("s_mov_b32 s30, L_codeend-L_pc0", 'S', wr=["s30"])); E(salu("s_mov_b32", "s31", "0x20000"))
    E(salu("s_lshl_b32", "s47", "s41", "2")); E(salu("s_add_u32", "s47", "s47", f"s{S_W}")); E(salu("s_mul_i32", "s47", "s47", "1408" if OPT['two'] else "640"))
    E(valu("v_min_u32", "v2", "10" if OPT['two'] else "4", "v0")); E(valu("v_lshlrev_b32", "v2", "7", "v2"))
    E(raw(f"buffer_load_dword v{V_NM+2}, v2, s[28:31], s47 offen", 'D', rd=["v2", "s[28:31]", "s47"], wr=[f"v{V_NM+2}"], tag="pf"))
E(salu("s_lshr_b32", f"s{S_HD}", f"s{S_W}", "1")); E(salu("s_and_b32", f"s{S_QH}", f"s{S_W}", "1"))
E(salu("s_sub_u32", "s49", "s44", "9")); E(salu("s_min_u32", "s41", "s44", "s49")); E(salu("s_lshl_b32", "s41", "s41", "7"))
if not OPT['rot']: E(salu("s_mov_b32", "s41", "0"))
for p in range(1, 9):
    if OPT['fake'] > 1: E(salu("s_mov_b32", "s48", str(p & 1)))
    else:
        E(salu("s_add_u32", "s48", "s48", "1")); E(raw("s_cmp_eq_u32 s48, 9", 'S')); E(raw("s_cselect_b32 s48, 0, s48", 'S', wr=["s48"]))
    E(salu("s_lshl_b32", f"s{KPW[p]}", "s48", "19")); E(salu("s_lshl_b32", f"s{KPX[p]}", "s48", "7"))
E(valu("v_and_b32", i16, "15", "v0")); E(valu("v_lshrrev_b32", g4, "4", "v0"))
E(valu("v_bfe_u32", r4, "v0", "2", "2")); E(valu("v_and_b32", c4, "3", "v0"))
E(valu("v_lshl_add_u32", t0, g4, "3", r4)); E(valu("v_lshlrev_b32", t0, "9", t0))
E(valu("v_lshl_add_u32", t1, r4, "2", c4)); E(valu("v_lshl_add_u32", t0, t1, "4", t0))
E(salu("s_lshl_b32", f"s{S_T0}", f"s{S_HD}", "8")); E(valu("v_add_u32", t0, f"s{S_T0}", t0))
for w in (2, 1):
    E(valu("v_add_u32", f"v{AW[w]}", lit(WBASE[w]), t0))
    for k in (1, 2, 3): E(valu("v_xor_b32", f"v{AW[w]+k}", str(k << 6), f"v{AW[w]}"))
E(salu("s_mul_i32", f"s{S_T0}", f"s{S_QH}", str(48 * 128)))
E(valu("v_lshlrev_b32", t0, "7", i16)); E(valu("v_add_u32", t0, f"s{S_T0}", t0))
E(valu("v_lshrrev_b32", t1, "1", i16)); E(valu("v_xor_b32", t1, t1, g4)); E(valu("v_lshl_add_u32", f"v{AX[0]}", t1, "4", t0))
E(valu("v_xor_b32", f"v{AX[0]+1}", "64", f"v{AX[0]}"))
E(valu("v_add_u32", f"v{AX[2]}", lit(WBASE[2]), f"v{AX[0]}")); E(valu("v_add_u32", f"v{AX[2]+1}", lit(WBASE[2]), f"v{AX[0]+1}"))
E(salu("s_lshl_b32", f"s{S_T0}", "s44", "22")); E(salu("s_lshl_b32", f"s{S_T1}", "s46", "19")); E(salu("s_add_u32", f"s{S_T0}", f"s{S_T0}", f"s{S_T1}"))
if OPT['fake'] in (1, 2): E(salu("s_mov_b32", f"s{S_T0}", "0"))
srd_finish(E, 8, f"s{S_T0}", 524288); srd_finish(E, 12, f"s{S_T0}", 524288)
E(salu("s_mul_i32", f"s{S_T0}", "s46", str(512 * 1152))); srd_finish(E, 20, f"s{S_T0}", 512 * 1152)
E(salu("s_lshl_b32", "s40", "s42", "4")); E(salu("s_add_u32", "s40", "s40", "s44"))
E(salu("s_mul_i32", f"s{S_T0}", "s40", str(8 * 108 * 1024 + 1024)))
E(raw("s_mov_b64 s[28:29], s[72:73]", 'S', wr=["s[28:29]"], rd=["s[28:29]"])); srd_finish(E, 28, f"s{S_T0}", 8 * 108 * 1024 + 1024)
E(salu("s_lshr_b32", "s49", "s2", "3")); E(salu("s_and_b32", "s49", "s49", "7")); E(salu("s_lshl_b32", "s100", f"s{S_W}", "8")); E(salu("s_add_u32", "s100", "s100", "s49"))
E(salu("s_lshl_b32", "s98", "s46", "1")); E(salu("s_add_u32", "s98", "s98", "s44")); E(salu("s_and_b32", "s98", "s98", "15")); E(salu("s_lshl_b32", "s98", "s98", "13"))
E(salu("s_lshl_b32", "s101", "s46", "3")); E(salu("s_add_u32", "s101", "s101", lit(8 * 108 * 1024)))
E(salu("s_mul_i32", "s47", "s46", str(108 * 1024))); E(salu("s_add_u32", "s47", "s47", f"s{S_W3K}"))
E(salu("s_mov_b32", f"s{S_C}", hex(cval))); E(salu("s_mov_b32", f"s{S_C+1}", hex(cval)))
E(salu("s_lshl_b32", f"s{S_T0}", f"s{S_W}", "3"))
E(valu("v_add_u32", t0, f"s{S_T0}", g4)); E(valu("v_lshlrev_b32", t0, "8", t0))
E(salu("s_lshl_b32", f"s{S_T1}", f"s{S_W}", "2"))
E(valu("v_or_b32", t1, f"s{S_T1}", g4)); E(valu("v_xor_b32", t1, t1, i16))
E(valu("v_lshl_add_u32", f"v{V_KA}", t1, "4", t0)); E(valu("v_add_u32", f"v{V_KB}", str(131072 - 2048), f"v{V_KA}"))
E(salu("s_lshl_b32", f"s{S_T1}", f"s{S_QH}", "2"))
E(valu("v_or_b32", t1, f"s{S_T1}", g4)); E(valu("v_lshlrev_b32", t1, "1", t1)); E(valu("v_xor_b32", t1, t1, i16))
E(valu("v_lshl_add_u32", f"v{V_VA}", t1, "4", t0)); E(valu("v_add_u32", f"v{V_VB}", str(131072 - 2048), f"v{V_VA}"))
E(salu("s_lshl_b32", f"s{S_T0}", f"s{S_W}", "5"))
E(valu("v_lshrrev_b32", t0, "3", "v0")); E(valu("v_add_u32", t0, f"s{S_T0}", t0)); E(valu("v_mul_u32_u24", t0, "1152", t0))
E(valu("v_lshlrev_b32", t1, "1", g4)); E(valu("v_and_b32", t2, "7", "v0")); E(valu("v_xor_b32", t1, t1, t2))
E(valu("v_lshl_add_u32", f"v{V_WO0}", t1, "4", t0))
E(salu("s_lshl_b32", f"s{S_T0}", f"s{S_HD}", "11"))
E(valu("v_lshrrev_b32", t0, "2", i16)); E(valu("v_lshlrev_b32", t0, "12", t0)); E(valu("v_add_u32", t0, f"s{S_T0}", t0))
E(valu("v_lshl_add_u32", t0, c4, "8", t0))
E(valu("v_xor_b32", t1, g4, i16)); E(valu("v_lshl_add_u32", f"v{V_AK}", t1, "4", t0))
for ks in (1, 2, 3): E(valu("v_xor_b32", f"v{V_AK+ks}", str(ks << 6), f"v{V_AK}"))
E(valu("v_lshlrev_b32", t0, "12", g4)); E(valu("v_add_u32", t0, f"s{S_T0}", t0)); E(valu("v_lshl_add_u32", t0, r4, "8", t0))
E(valu("v_lshl_add_u32", t0, c4, "3", t0))
E(valu("v_and_b32", t1, "1", g4)); E(valu("v_lshl_or_b32", t1, t1, "2", r4))
E(valu("v_lshl_add_u32", t0, t1, "5", t0)); E(valu("v_add_u32", f"v{V_AV}", lit(WBASE[1]), t0))
for dt in range(1, 8): E(valu("v_xor_b32", f"v{V_AV+dt}", str(dt << 5), f"v{V_AV}"))
E(valu("v_lshl_add_u32", t0, g4, "2", r4)); E(valu("v_bfe_u32", t1, t0, "1", "2"))
E(salu("s_lshl_b32", f"s{S_T0}", f"s{S_HD}", "1")); E(valu("v_xor_b32", t1, f"s{S_T0}", t1))
E(valu("v_lshlrev_b32", t0, "7", t0)); E(valu("v_lshl_add_u32", t0, t1, "5", t0)); E(valu("v_lshl_add_u32", f"v{V_AO0}", c4, "3", t0))
E(valu("v_mov_b32", t0, "0x3f803f80"))
for k in range(4): E(valu("v_accvgpr_write_b32", f"a{A_ONE+k}", t0))
if OPT['up'] < 1: E(wq_ops(0, 1, PRE["WQ0_1"]))
if OPT['up'] < 2: E(x_ops("X0_1", 1, PRE["X0_1"]))
if OPT['up'] >= 3: E(wq_ops(0, 2, PRE["WQ0_2"])); E(wq_ops(0, 3, PRE["WQ0_3"]))
if OPT['two']:
    E(salu("s_and_b32", "s49", "s44", str(OPT['popm']))); E(raw(f"s_cmp_eq_u32 s49, {OPT['popm']}", 'S')); E(raw("s_cbranch_scc1 L_progB", 'S'))

def hcheck():
    return [raw(f"s_cmp_lg_u32 s{S_W}, 0", 'S'), raw("s_cbranch_scc1 L_hok", 'S'),
            salu("s_mov_b32", "s48", "s70"), salu("s_and_b32", "s49", "s71", "0xffff"), salu("s_mov_b32", "s50", "256"), salu("s_mov_b32", "s51", "0x20000"),
            salu("s_lshl_b32", f"s{S_T0}", "s40", "3"), salu("s_mov_b32", f"s{S_T1}", "0"), valu("v_mov_b32", f"v{V_TB}", "0"),
            raw("L_hp:", 'X'),
            raw(f"v_readfirstlane_b32 s100, v{V_H+7}", 'S'), raw(f"s_add_u32 s{S_T1}, s{S_T1}, 1", 'S'), raw("s_nop 1", 'W'),
            raw("s_cmp_ge_u32 s100, 8", 'S'), raw("s_cbranch_scc1 L_hok", 'S'), raw("s_sleep 16", 'S'),
            raw(f"buffer_load_dword v{V_H+7}, v{V_TB}, s[48:51], s{S_T0} offen sc1", 'S'), raw("s_waitcnt vmcnt(0)", 'S'),
            raw(f"s_cmp_lt_u32 s{S_T1}, 0x400000", 'S'), raw("s_cbranch_scc1 L_hp", 'S'),
            raw("L_hok:", 'X')]
def cat(op): return 'X' if callable(op) else op.kind
class Build:
    def __init__(s, alloc):
        s.alloc = alloc
        s.P = Prog(); s.P.vm = list(P0.vm)
        s.MF = []; s.FL = []; s.frags = []; s.bar_req = []; s.tiles = []; s.issued = set(PRE)
        s.nst = 1; s.late = []; s.xneed = {}; s.win_after = []
        s.KT = {r: [s.fixed(f"K{r}_{n}", (16 * r + n) % 3, lambda sl, r=r, n=n: kv_ops('K', r, n, sl)) for n in range(16)] for r in (0, 1)}
        s.VT = {r: [s.fixed(f"V{r}_{n}", 3 + (16 * r + n) % 3, lambda sl, r=r, n=n: kv_ops('V', r, n, sl)) for n in range(16)] for r in (0, 1)}
        s.pending_st = []
        for i, t in enumerate([s.KT[0][0], s.KT[0][1], s.VT[0][0], s.KT[0][2], s.VT[0][1], s.VT[0][2]][:OPT['early']]): t.want_issue = OPT['e0'] + i * OPT['estep']
    def fixed(s, name, slot, mk, lead=None):
        t = Tile(name, slot, mk(slot), lead=OPT['leadh'] if lead is None else lead); s.tiles.append(t); return t
    def free(s, name, cands, mk):
        sl = PRE.get(name, s.alloc.get(name, cands[0]))
        t = Tile(name, sl, mk(sl), cands=None if name in PRE else cands, lead=0); s.tiles.append(t); return t
    def g(s): return len(s.MF) - 1
    def fill(s, ops, e, d, want=None, after=(), name=""):
        f = Fill(ops, e, max(d, e), want=want, after=[a for a in after if a is not None], name=name); s.FL.append(f); return f
    def chain(s, ops, e, d, want0=None, step=0.5, after=(), name=""):
        prev = list(after); f = None
        for k, op in enumerate(ops):
            f = s.fill(op, e, d, want=(e if want0 is None else want0) + k * step, after=prev, name=name); prev = [f]
        return f
    def forced(s, ops, gap=None, name="", after=()):
        gg = s.g() if gap is None else gap
        f = Fill(ops, gg, gg, want=-10**9 + len(s.FL), after=after, name=name); f.excl = False; s.FL.append(f); return f
    def stamp(s):
        if OPT.get('at'): return
        if OPT['stamp']: s.forced(stamp_ops(s.nst), name="stamp")
        s.nst += 1
    def add_frag(s, tile, mk_reads, mk_mfmas, after=None):
        f = len(s.frags); base = A_FR + 4 * (f % NFR)
        u0 = len(s.MF); s.MF.extend(mk_mfmas(R('a', base, 4))); u1 = len(s.MF) - 1
        s.frags.append(dict(reads=mk_reads(base), u0=u0, u1=u1, tile=tile, after=after))
        tile.last_use = u1
        if tile.first_need is None: tile.first_need = u0
    def want_bar(s, tiles): s.bar_req.append([len(s.MF), list(tiles)]); return len(s.bar_req) - 1
    def q_frag(s, T_, dt, acc, xr, first):
        w, ib = win(T_.slot); ksp, odd = dt >> 1, dt & 1
        s.add_frag(T_, lambda b: [ds_read("ds_read_b64_tr_b16", R('a', b + 2 * hf, 2), f"v{AW[w]+ksp}", ib + hf * 2048 + odd * 8, slot=T_.slot) for hf in range(2)],
                   lambda a: [mfma(acc(dt, qt), a, R('a', xr + 4 * qt, 4), "0" if first else acc(dt, qt)) for qt in range(3)])
    def x_reads(s, X_, regs, e_list, need_list):
        X_.last_use = max(need_list) + 2
        def mk():
            b = s.tile_bar[X_.name]; w, ib = win(X_.slot); k = 0
            for ksl in range(2):
                for qt in range(3):
                    op = ds_read("ds_read_b128", R('a', regs[ksl] + 4 * qt, 4), f"v{AX[w]+ksl}", ib + qt * 2048, slot=X_.slot)
                    s.xneed[id(op)] = need_list[ksl]
                    e = max(b.earliest, e_list[ksl])
                    s.fill(op, e, need_list[ksl] - 1, want=max(e - 2, min(need_list[ksl] - LA - 6, e + 4)) + k * 0.7, after=[b], name="xrd"); k += 1
        s.late.append(mk)
    def conv(s, even, odd, scale, dst=None, pk=False):
        dst = even if dst is None else dst
        if pk: ops = [valu("v_pk_mul_f32", R('v', b, 2), R('v', b, 2), scale, extra="" if scale[0] == 's' else " op_sel_hi:[1,0]") for b in (even, even + 2, odd, odd + 2)]
        else:
            sc = scale[0] + scale[2:].split(':')[0]
            ops = [valu("v_mul_f32", f"v{b+k}", sc, f"v{b+k}") for b in (even, odd) for k in range(4)]
        ops += [valu("v_cvt_pk_bf16_f32", f"v{dst}", f"v{even}", f"v{even+1}"), valu("v_cvt_pk_bf16_f32", f"v{dst+1}", f"v{even+2}", f"v{even+3}"),
                valu("v_cvt_pk_bf16_f32", f"v{dst+2}", f"v{odd}", f"v{odd+1}"), valu("v_cvt_pk_bf16_f32", f"v{dst+3}", f"v{odd+2}", f"v{odd+3}")]
        return ops
    def k_frag(s, r, n, t, ks, dst, cinit):
        T_ = s.KT[r][n]
        s.add_frag(T_, lambda b: [ds_read("ds_read_b128", R('a', b, 4), f"v{V_AK+ks}", T_.slot * SLOT + t * 1024, slot=T_.slot)],
                   lambda a: [mfma(R('v', dst(qt), 4), a, QF(ks, qt), cinit if ks == 0 else R('v', dst(qt), 4)) for qt in range(3)])
    def m0(s, r, after=()):
        bi = s.want_bar([s.KT[r][0]])
        for ks in range(4): s.k_frag(r, 0, 0, ks, lambda qt: Sreg(1, 0, qt), "0")
        x = Sreg(1, 0, 0); a, b = f"v{x}", f"v{x+1}"
        ops = [valu("v_max3_f32", a, a, b, f"v{x+2}"), valu("v_max3_f32", f"v{x+3}", f"v{x+3}", f"v{x+4}", f"v{x+5}"), valu("v_max3_f32", f"v{x+6}", f"v{x+6}", f"v{x+7}", f"v{x+8}"),
               valu("v_max3_f32", f"v{x+9}", f"v{x+9}", f"v{x+10}", f"v{x+11}"), valu("v_max3_f32", a, a, f"v{x+3}", f"v{x+6}"), valu("v_max_f32", a, a, f"v{x+9}"),
               valu("v_mov_b32", b, a), valu("v_permlane16_swap_b32", a, b), valu("v_max_f32", a, a, b), valu("v_mov_b32", b, a),
               valu("v_permlane32_swap_b32", a, b), valu("v_max_f32", a, a, b)] + [valu("v_sub_f32", f"v{V_NM+k}", "0", a) for k in range(4)]
        f = s.forced(ops, name="m0v", after=after); f.want = 10**7
        return bi
    def phase_a(s, r, lwork, haslw):
        done_at = {}; info = {'bar': [], 'step0': []}
        def qk(n):
            for t in range(2):
                for ks in range(4): s.k_frag(r, n, t, ks, lambda qt: Sreg(n & 1, t, qt), NMR)
                for qt in range(3): done_at[(n, t, qt)] = len(s.MF) - 3 + qt
        qk(0)
        for n in range(16):
            if OPT['ptb'] and n < 15:
                bi = s.want_bar([s.KT[r][n + 1]])
            else: bi = s.want_bar(([s.KT[r][n + 1]] if n < 15 else []) + [s.VT[r][n]])
            info['bar'].append(bi); info['step0'].append(len(s.MF))
            if n < 15: qk(n + 1)
            if OPT['ptb'] and n < 15: s.want_bar([s.VT[r][n]]); s.bar_req[-1][0] += 3
            pv0 = len(s.MF); k = 0
            for t in range(2):
                for qt in range(3):
                    sr = Sreg(n & 1, t, qt); ef = []; e = done_at[(n, t, qt)] + 4
                    for c in range(4):
                        w = e + k * 0.01; k += 1
                        ef.append(s.fill(valu("v_exp_f32", f"v{sr+c}", f"v{sr+c}"), e, pv0 - 2, want=w, name="exp"))
                        if c & 1:
                            s.fill(valu("v_cvt_pk_bf16_f32", f"v{Preg(n&1,qt)+2*t+(c>>1)}", f"v{sr+c-1}", f"v{sr+c}"), e, pv0 - 1, want=w, after=ef[-2:], name="cvt")
            for qt in range(3):
                l = R('a', A_L + 4 * qt, 4)
                s.MF.append(mfma(l, R('a', A_ONE, 4), R('v', Preg(n & 1, qt), 4), "0" if n == 0 else l))
            T_ = s.VT[r][n]
            for dt in range(8):
                s.add_frag(T_, lambda b: [ds_read("ds_read_b64_tr_b16", R('a', b + 2 * t, 2), f"v{V_AV+dt}", (T_.slot - 3) * SLOT + t * 1024, slot=T_.slot) for t in range(2)],
                           lambda a: [mfma(R('v', Oacc(dt, qt), 4), a, R('v', Preg(n & 1, qt), 4), "0" if n == 0 else R('v', Oacc(dt, qt), 4)) for qt in range(3)])
                info[dt] = s.g()
            if n == 0: info['pv_first'] = pv0
            info['pv_last'] = pv0; info['pv_end'] = s.g()
            if OPT['ptb'] and haslw(n): bi = s.want_bar([])
            lwork(n, bi)
        return info
    def o_finish(s, r, info, dl):
        pv0 = info['pv_last']; ta, tb = f"v{V_NM+1}", f"v{V_NM+3}"
        ops = [valu("v_accvgpr_read_b32", f"v{RL[qt]}", f"a{A_L+4*qt}") for qt in range(3)]
        if OPT['slow']:
            lab = f"L_ok{r}"
            ops += [valu("v_add_f32", ta, f"v{RL[0]}", f"v{RL[1]}"), valu("v_min3_f32", tb, f"v{RL[0]}", f"v{RL[1]}", f"v{RL[2]}"), valu("v_add_f32", ta, ta, f"v{RL[2]}"),
                    salu("s_mov_b32", "s48", "0x5d800000" if not OPT['forceslow'] else "0"), salu("s_mov_b32", "s49", "0x21800000"),
                    raw(f"v_cmp_nge_f32 vcc, s48, {ta}", 'V', rd=[ta, "s48"], wr=['vcc']),
                    raw(f"v_cmp_nle_f32 s[50:51], s49, {tb}", 'V', rd=[tb, "s49"], wr=['s[50:51]']),
                    raw("s_nop 1", 'W'), raw("s_or_b64 vcc, vcc, s[50:51]", 'S'),
                    raw(f"s_cbranch_vccz {lab}", 'S', rd=['vcc']),
                    salu("s_mov_b32", "s48", lit(r * 262144)),
                    raw(f"s_getpc_b64 {S_RET}", 'S'), raw("s_add_u32 s6, s6, 12", 'S'), raw("s_addc_u32 s7, s7, 0", 'S'), raw("s_branch L_slow", 'S'),
                    raw(f"{lab}:", 'X')]
        chk = s.forced(ops, gap=pv0 + 5, name="lchk")
        rc = s.chain([valu("v_rcp_f32", f"v{RL[qt]}", f"v{RL[qt]}") for qt in range(3)], pv0 + 5, pv0 + 9, after=[chk], name="rcp")
        last = {}
        for ks in range(4):
            for qt in range(3):
                e = min(info[2 * ks + 1] + 3, dl(ks, qt))
                last[(ks, qt)] = s.chain(s.conv(Oacc(2 * ks, qt), Oacc(2 * ks + 1, qt), R('v', RL[qt], 2)), e, dl(ks, qt), want0=e + (ks * 3 + qt) * 0.01, step=0.5, after=[rc], name="ocv")
        return last
    def xaddr(s, e, stride):
        return s.chain([valu("v_lshlrev_b32", f"v{V_T}", "4", "v0"), salu("s_mul_i32", f"s{S_T1}", f"s{S_W}", str(stride)),
                        valu("v_add_u32", f"v{V_T+1}", f"s{S_T1}", f"v{V_T}"), salu("s_mul_i32", f"s{S_T1}", f"s{S_QH}", str(stride)),
                        valu("v_add_u32", f"v{V_T+2}", f"s{S_T1}", f"v{V_T}")], e, e + 8, name="xpre")
    def xround(s, name, fr, slots, stride, last, pre, bar_w, bar_pub, dst, rdead, addr_bias=0):
        res = [s.fixed(f"{name}_{sl}", sl, lambda sl: [], lead=0) for sl in slots]
        for t in res:
            t.first_need = s.bar_req[bar_w][0]; t.last_use = rdead + 1; t.scratch = bar_w
            s.issued.add(t.name)
        base = slots[0] * SLOT - addr_bias
        out = {}
        def mk():
            bw, bp = s.barfill[bar_w], s.barfill[bar_pub]
            for i, (ks, qt) in enumerate(fr):
                lf = last[(ks, qt)]
                op = ds_write("ds_write_b128", f"v{V_T+1}", R('v', Oacc(2 * ks, qt), 4), base + i * 1024); op.note = tuple(slots)
                w_ = s.fill(op, max(lf.earliest, bw.earliest), bp.earliest, want=max(lf.want, bw.earliest) + 0.1 + i * 0.01, after=[lf, pre, bw], name="xw")
                bp.after.append(w_)
            k = 0
            for i, (ks, qt) in enumerate(fr):
                for hh in range(2):
                    op = ds_read("ds_read_b128", dst(hh, ks, qt), f"v{V_T+2}", base + hh * 2 * stride + i * 1024, slot=('X',) + tuple(slots))
                    out[(hh, ks, qt)] = s.fill(op, bp.earliest, rdead, want=bp.earliest + 1 + k * 1.5, after=[bp], name="xr"); k += 1
        s.late.append(mk)
        return out
    def o_tile(s, T_, bfr, accr, first):
        w, ib = win(T_.slot)
        for ks in range(4):
            for ntl in range(2):
                s.add_frag(T_, lambda b: [ds_read("ds_read_b64_tr_b16", R('a', b + 2 * hf, 2), f"v{AO[w]+ntl}", ib + ks * 4096 + hf * 2048, slot=T_.slot) for hf in range(2)],
                           lambda a: [mfma(accr(ntl, qt), a, bfr(ks, qt), "0" if (first and ks == 0) else accr(ntl, qt)) for qt in range(3)], after=('O', w))
    def store_ops(s, src0, src1, tmp, c, qt, from_acc):
        ops = []
        if from_acc:
            for k in range(4): ops.append(valu("v_accvgpr_read_b32", f"v{tmp+k}", f"a{src0+k}"))
            for k in range(4): ops.append(valu("v_accvgpr_read_b32", f"v{tmp+4+k}", f"a{src1+k}"))
            src0, src1 = tmp, tmp + 4
        d = src0
        ops += [valu("v_cvt_pk_bf16_f32", f"v{d}", f"v{src0}", f"v{src0+1}"), valu("v_cvt_pk_bf16_f32", f"v{d+1}", f"v{src0+2}", f"v{src0+3}"),
                valu("v_cvt_pk_bf16_f32", f"v{d+2}", f"v{src1}", f"v{src1+1}"), valu("v_cvt_pk_bf16_f32", f"v{d+3}", f"v{src1+2}", f"v{src1+3}")]
        if qt == 0: ops += [salu("s_add_u32", f"s{S_ST}", "s47", lit(c * 12288))]
        ops += [raw(f"buffer_store_dwordx4 v[{d}:{d+3}], v{V_T}, {SWS}, s{S_ST} offen offset:{qt*1024}" + ["", " sc1", " sc0 sc1", " sc1 nt", " nt", " sc0 sc1 nt"][OPT['stf']], 'D', rd=[f"v[{d}:{d+3}]", f"v{V_T}", SWS, f"s{S_ST}"], tag="stA" if c <= 5 else "st", wide_store=True)]
        if OPT['nost']: ops = ops[:-1]
        return ops
    def pfpair(s, kind, e, dreg):
        tmp, dst = f"v{V_H+6}", f"v{V_NM+0}"
        tmp = f"v{V_H+6}"
        if kind == 'q':
            t2_ = f"v{V_NM+3}"
            ops = [valu("v_min_u32", tmp, "35", "v0"), valu("v_lshrrev_b32", t2_, "2", tmp),
                   salu("s_mul_i32", f"s{S_T0}", "s44", "36"), salu("s_mul_i32", f"s{S_T1}", f"s{S_W}", "9"), salu("s_add_u32", f"s{S_T0}", f"s{S_T0}", f"s{S_T1}"),
                   valu("v_add_u32", t2_, f"s{S_T0}", t2_), valu("v_lshlrev_b32", t2_, "13", t2_),
                   valu("v_and_b32", tmp, "3", tmp), valu("v_lshl_add_u32", tmp, tmp, "7", t2_)]
            srd, off = SWQ, 512
        else:
            ops = [valu("v_min_u32", tmp, "35", "v0"),
                   salu("s_mul_i32", f"s{S_T0}", "s44", "144"), salu("s_mul_i32", f"s{S_T1}", f"s{S_W}", "36"), salu("s_add_u32", f"s{S_T0}", f"s{S_T0}", f"s{S_T1}"),
                   salu("s_add_u32", f"s{S_T0}", f"s{S_T0}", str(kind * 2304)), valu("v_add_u32", tmp, f"s{S_T0}", tmp), valu("v_lshlrev_b32", tmp, "7", tmp)]
            srd, off = SWO, 0
        ops += [raw(f"buffer_load_dword v{dreg}, {tmp}, {srd}, 0 offen offset:{off}" + (" sc1 nt" if OPT['pfsc'] else " nt"), 'D', rd=[tmp, srd], wr=[], tag="pf"),
                raw(f"buffer_load_dword v{dreg}, {tmp}, {srd}, 0 offen offset:{off}" + (" sc1" if OPT['pfsc'] else ""), 'D', rd=[tmp, srd], wr=[f"v{dreg}"], tag="pf")]
        s.forced(ops, gap=e, name="pf")
    def build(s, dry=False):
        LHI = [6, 7, 8, 9]
        accq = lambda dt, qt: R('v', QaccQS(dt, qt), 4)
        W0 = [s.free(f"WQ0_{p}", [3, 4, 5, 6, 7, 8, 9], lambda sl, p=p: wq_ops(0, p, sl)) for p in range(18)]
        X0 = [s.free(f"X0_{i}", [0, 1, 2, 6, 7, 8, 9], lambda sl, i=i: x_ops(f"X0_{i}", i, sl)) for i in range(9)]
        done = {}
        for p in range(16):
            u = len(s.MF)
            s.want_bar([W0[p]] + ([X0[p // 2]] if p % 2 == 0 else []))
            if p % 2 == 0:
                X0[p // 2].first_need = u - 0.5; s.x_reads(X0[p // 2], [XFr(p, 0), XFr(p + 1, 0)], [-1, -1], [u, u + 24])
            if OPT['pfw'] and p >= OPT['pft0'] and (p - OPT['pft0']) % OPT['pfd'] == 0 and (p - OPT['pft0']) // OPT['pfd'] < 3:
                k_ = (p - OPT['pft0']) // OPT['pfd']; tmp, dst = f"v{V_TA}", f"v{V_TB}"
                if k_ == 0:
                    ops = [valu("v_min_u32", tmp, "35", "v0"), valu("v_lshrrev_b32", dst, "2", tmp),
                           salu("s_mul_i32", f"s{S_T0}", "s44", "36"), salu("s_mul_i32", f"s{S_T1}", f"s{S_W}", "9"), salu("s_add_u32", f"s{S_T0}", f"s{S_T0}", f"s{S_T1}"),
                           valu("v_add_u32", dst, f"s{S_T0}", dst), valu("v_lshlrev_b32", dst, "13", dst),
                           valu("v_and_b32", tmp, "3", tmp), valu("v_lshl_add_u32", tmp, tmp, "7", dst),
                           raw(f"buffer_load_dword v{V_H+7}, {tmp}, {SWQ}, 0 offen offset:512 nt", 'D', rd=[tmp, SWQ], wr=[], tag="pf")]
                else:
                    ops = [valu("v_min_u32", tmp, "35", "v0"),
                           salu("s_mul_i32", f"s{S_T0}", "s44", "144"), salu("s_mul_i32", f"s{S_T1}", f"s{S_W}", "36"), salu("s_add_u32", f"s{S_T0}", f"s{S_T0}", f"s{S_T1}"),
                           salu("s_add_u32", f"s{S_T0}", f"s{S_T0}", str((k_ - 1) * 2304)), valu("v_add_u32", tmp, f"s{S_T0}", tmp), valu("v_lshlrev_b32", tmp, "7", tmp),
                           raw(f"buffer_load_dword v{V_H+7}, {tmp}, {SWO}, 0 offen nt", 'D', rd=[tmp, SWO], wr=[], tag="pf")]
                s.chain(ops, u, u + 20, step=1.5, name="pf")
            if OPT['pf2'] & 1 and p == OPT['pfa']: s.pfpair('q', u + 3, V_NM + 1)
            for dt in range(8): s.q_frag(W0[p], dt, accq, XFr(p, 0), p == 0)
        u = len(s.MF); s.want_bar([W0[16], W0[17], X0[8]]); X0[8].first_need = u - 0.5
        s.x_reads(X0[8], [XFr(16, 0), XFr(17, 0)], [-1, -1], [u, u + 3])
        for dt in range(8):
            s.q_frag(W0[16], dt, accq, XFr(16, 0), False); s.q_frag(W0[17], dt, accq, XFr(17, 0), False); done[dt] = s.g()
        gq = s.g()
        for ks in range(4):
            for qt in range(3):
                pk = ks * 3 + qt >= OPT['npl0']
                e = gq if pk else min(done[2 * ks + 1] + 3, gq)
                s.chain(s.conv(QaccQS(2 * ks, qt), QaccQS(2 * ks + 1, qt), f"s[{S_C}:{S_C+1}]", pk=pk), e, gq, want0=e + (ks * 3 + qt) * 0.01, name="qcv")
        s.stamp()
        s.m0(0)
        order = list(range(8, 18)) + list(range(0, 8))
        xreg = {p: XFr(p, 0) for p in range(8, 18)}; xreg.update({p: XFr(8 + p, 0) for p in range(8)})
        acc1 = lambda dt, qt: R('a', 4 * (dt * 3 + qt), 4)
        W1 = {p: s.free(f"WQ1_{p}", LHI, lambda sl, p=p: wq_ops(1, p, sl)) if p not in (4, 5, 6, 7) else s.fixed(f"WQ1_{p}", {4: 8, 5: 9, 6: 6, 7: 7}[p], lambda sl, p=p: wq_ops(1, p, sl), lead=70) for p in order}
        X1 = [s.free(f"X1_{i}", LHI, lambda sl, i=i: x_ops(f"X1_{i}", i, sl)) for i in range(4)]
        lend = {}; lstart = {}
        def dbgsrd(): return [salu("s_mov_b32", "s48", "s70"), salu("s_and_b32", "s49", "s71", "0xffff"), salu("s_mov_b32", "s50", "256"), salu("s_mov_b32", "s51", "0x20000"),
                             salu("s_lshl_b32", f"s{S_T0}", "s40", "3")]
        def site(k, lab, ops):
            s.forced([raw(f"s_cmp_lg_u32 s100, {k}", 'S'), raw(f"s_cbranch_scc1 {lab}", 'S')] + ops + [raw(f"{lab}:", 'X')], name="site")
        def lw0(n, bi):
            if OPT['pf2'] & 2 and n == OPT['pfb'] + 5: s.pfpair(0, s.g() - 8, V_TA)
            if n == 0:
                s.forced([raw(f"s_cmp_lg_u32 s{S_W}, 0", 'S'), raw("s_cbranch_scc1 L_nz", 'S'), valu("v_mov_b32", f"v{V_H+6}", "0"), valu("v_mov_b32", f"v{V_H+7}", "0"), raw("s_mov_b64 exec, 1", 'S'),
                          raw(f"buffer_store_dwordx2 v[{V_H+6}:{V_H+7}], v{V_H+6}, {SWS}, s101 offen sc1", 'S'), raw("s_mov_b64 exec, -1", 'S'), raw("L_nz:", 'X')], name="fz")
            if 4 <= n < 12:
                site(n - 4, f"L_hs{n}", dbgsrd() + [valu("v_mov_b32", f"v{V_H+6}", "0"), valu("v_mov_b32", f"v{V_H+7}", "1"), raw("s_mov_b64 exec, 1", 'S'),
                     raw(f"buffer_atomic_add v{V_H+7}, v{V_H+6}, s[48:51], s{S_T0} offen sc1", 'S'), raw("s_mov_b64 exec, -1", 'S')])
            p = order[n]; s.bar_req[bi][1].append(W1[p]); lstart[p] = len(s.MF)
            for dt in range(8): s.q_frag(W1[p], dt, acc1, xreg[p], n == 0)
            lend[p] = s.g()
        i0 = s.phase_a(0, lw0, lambda n: True)
        s.stamp()
        bT = s.want_bar([W1[6], W1[7]]); lstart[6] = len(s.MF); lstart[7] = len(s.MF) + 3
        for dt in range(8):
            s.q_frag(W1[6], dt, acc1, xreg[6], False); s.q_frag(W1[7], dt, acc1, xreg[7], False); done[dt] = s.g()
        gT = s.g()
        for i, X_ in enumerate(X1):
            n = 3 + 2 * i
            s.bar_req[i0['bar'][n]][1].append(X_); X_.first_need = i0['step0'][n] - 0.5
            s.x_reads(X_, [xreg[2 * i], xreg[2 * i + 1]], [lend[8 + 2 * i] + 1, lend[9 + 2 * i] + 1], [i0['step0'][n] + 40, i0['step0'][n] + 44])
        qcv = []
        for ks in range(4):
            for qt in range(3):
                pk = ks * 3 + qt >= OPT['npl1']
                e = gT if pk else min(done[2 * ks + 1] + 3, gT); tmp = V_S + 8 * ((ks * 3 + qt) % 3)
                ops = [valu("v_accvgpr_read_b32", f"v{tmp+4*o+k}", f"a{4*((2*ks+o)*3+qt)+k}") for o in range(2) for k in range(4)]
                ops += s.conv(tmp, tmp + 4, f"s[{S_C}:{S_C+1}]", dst=QFr(ks, qt), pk=pk)
                qcv.append(s.chain(ops, e, gT, want0=e + (ks * 3 + qt) * 0.01, step=0.25, after=qcv[-3:-2] if len(qcv) >= 3 else [], name="qcv1"))
        wdl = gT - LA - 2
        last0 = s.o_finish(0, i0, lambda ks, qt: wdl - 2 if ks * 3 + qt < 4 else gT)
        pre0 = s.xaddr(i0['pv_last'] + 6, 4096)
        bias = s.chain([valu("v_add_u32", f"v{V_T+1}", lit(8 * SLOT), f"v{V_T+1}"), valu("v_add_u32", f"v{V_T+2}", lit(8 * SLOT), f"v{V_T+2}")], i0['pv_last'] + 8, i0['pv_last'] + 16, after=[pre0], name="xb")
        s.stamp()
        bM = s.m0(1, after=list(last0.values()))
        aoh = s.chain(set_addr_o(2), gT, gT + 30, name="ao2"); s.win_after.append((('O', 2), aoh))
        o0s = OPT['o0start']; nblk = (16 - o0s) // 2
        blk_done = {}
        def accA(nb): return ACCB[nb & 1]
        parkf = {}
        def lw1(n, bi):
            if OPT['pf2'] & 4 and n == OPT['pfc']: s.pfpair(1, s.g() - 8, V_T)
            if 4 <= n < 12:
                site(n - 4, f"L_hc{n}", dbgsrd() + [valu("v_mov_b32", f"v{V_H+7}", "0"), raw("s_nop 0", 'W'),
                     raw(f"buffer_load_dword v{V_H+7}, v{V_H+7}, s[48:51], s{S_T0} offen sc1", 'S')])
            if OPT['cpf2'] and n == OPT['cps']:
                tmp = f"v{V_H+7}"
                ops = [raw("s_getpc_b64 s[48:49]", 'S', wr=["s[48:49]"]), raw("L_pc2:", 'X'),
                       raw("s_add_u32 s48, s48, L_tailcode-L_pc2", 'S', wr=["s48"]), raw("s_addc_u32 s49, s49, 0", 'S', wr=["s49"]),
                       salu("s_and_b32", "s49", "s49", "0xffff"), raw("s_mov_b32 s50, L_slow-L_tailcode", 'S', wr=["s50"]), salu("s_mov_b32", "s51", "0x20000"),
                       salu("s_lshl_b32", f"s{S_T0}", "s41", "2"), salu("s_add_u32", f"s{S_T0}", f"s{S_T0}", f"s{S_W}"), salu("s_lshl_b32", f"s{S_T0}", f"s{S_T0}", "8"),
                       valu("v_and_b32", tmp, "1", "v0"), valu("v_lshlrev_b32", tmp, "7", tmp),
                       raw(f"buffer_load_dword {tmp}, {tmp}, s[48:51], s{S_T0} offen", 'D', rd=[tmp, "s[48:51]", f"s{S_T0}"], wr=[], tag="pf")]
                s.forced(ops, name="cpf2")
            if n == 14: s.forced([raw("L_tailcode:", 'X')], name="lab")
            if OPT['pft'] and n == OPT['pfs']:
                tmp = f"v{V_H+7}"
                s.chain([valu("v_min_u32", tmp, "35", "v0"),
                         salu("s_mul_i32", f"s{S_T0}", "s44", "144"), salu("s_mul_i32", f"s{S_T1}", f"s{S_W}", "36"), salu("s_add_u32", f"s{S_T0}", f"s{S_T0}", f"s{S_T1}"),
                         salu("s_add_u32", f"s{S_T0}", f"s{S_T0}", "2304"), valu("v_add_u32", tmp, f"s{S_T0}", tmp), valu("v_lshlrev_b32", tmp, "7", tmp),
                         raw(f"buffer_load_dword {tmp}, {tmp}, {SWO}, 0 offen", 'D', rd=[tmp, SWO], wr=[], tag="pf")], s.g(), s.g() + 40, step=2, name="pf")
            if n < o0s or (n - o0s) // 2 >= nblk: return
            nb, hh = (n - o0s) >> 1, (n - o0s) & 1
            T_ = s.free(f"WO{hh}_{nb}", LHI, lambda sl: wo_ops(hh, nb, sl)); s.bar_req[bi][1].append(T_)
            st = len(s.MF)
            if hh == 0 and nb >= 2:
                pb = nb - 2; ops = []
                for i in range(12):
                    ta, tb = (V_TA, V_TB) if i & 1 else (V_T + 1, V_T + 2)
                    ops += [valu("v_accvgpr_read_b32", f"v{ta}", f"a{accA(pb)+2*i}"), valu("v_accvgpr_read_b32", f"v{tb}", f"a{accA(pb)+2*i+1}"),
                            valu("v_cvt_pk_bf16_f32", f"v{ta}", f"v{ta}", f"v{tb}"), valu("v_accvgpr_write_b32", f"a{PARK[pb]+i}", f"v{ta}")]
                e = blk_done[pb] + 4
                pd = blk_done[pb + 1] + 3
                parkf[pb] = s.chain(ops, e, pd, want0=e, step=(pd - e - 20) / 48.0, after=[parkf.get(pb - 1)], name="park")
            s.o_tile(T_, lambda ks, qt: R('a', OBa(hh, ks, qt), 4), lambda ntl, qt: R('a', accA(nb) + 4 * (ntl * 3 + qt), 4), hh == 0)
            if hh == 1: blk_done[nb] = s.g()
        i1 = s.phase_a(1, lw1, lambda n: n >= o0s and (n - o0s) // 2 < nblk)
        gA1 = s.g()
        fr = [(ks, qt) for ks in range(4) for qt in range(3)]
        dstA = lambda hh, ks, qt: R('a', OBa(hh, ks, qt), 4)
        s.xround("XA", fr[:4], [8], 4096, last0, bias, bT, bM, dstA, i1['step0'][0] - LA - 9, addr_bias=8 * SLOT)
        s.xround("XB", fr[4:8], [9], 4096, last0, bias, bM, i1['bar'][0], dstA, i1['step0'][0] + 30, addr_bias=8 * SLOT)
        s.xround("XD", fr[8:], [8], 4096, last0, bias, i1['bar'][0], i1['bar'][1], dstA, i1['step0'][1] + 30, addr_bias=8 * SLOT)
        s.xb_dead = i1['pv_first'] - 1
        s.stamp()
        rest = list(range(nblk, 9))
        VB = [V_S, V_S + 24, V_QF, V_QF + 24]
        ALL = list(range(10))
        seq = [(nb, h) for nb in rest for h in (0, 1)]
        inacc = [nb for nb in range(nblk) if nb >= nblk - 2]; parked = [nb for nb in range(nblk) if nb < nblk - 2]
        seq += [(nb, h) for nb in rest + inacc + parked for h in (2, 3)]
        CORD = rest + inacc + parked; s.CORD = CORD
        vb = {}; vfree = {b: i1['pv_last'] + 6 for b in VB}; tst = {}; tbar = {}
        for nb in rest: vb[nb] = VB[rest.index(nb)]
        ao_lo = s.chain(set_addr_o(1) + set_addr_o(0), i1['pv_last'], i1['pv_last'] + 20, name="ao10"); s.win_after += [(('O', 1), ao_lo), (('O', 0), ao_lo)]
        PAIRS = [6, 4, 8, 2, 0]
        AP = {0: V_AK, 1: V_AV, 2: V_AV + 4}
        def pwin(sa): return (0, sa * SLOT) if sa < 4 else ((1, (sa - 3) * SLOT) if sa < 6 else (2, (sa - 6) * SLOT))
        ops = [salu("s_lshl_b32", f"s{S_T0}", f"s{S_HD}", "14"), valu("v_add_u32", f"v{V_AK}", f"s{S_T0}", f"v{V_AO0}"),
               valu("v_xor_b32", f"v{V_AK+1}", "32", f"v{V_AK}"), valu("v_xor_b32", f"v{V_AK+2}", "0x4000", f"v{V_AK}"), valu("v_xor_b32", f"v{V_AK+3}", "0x4020", f"v{V_AK}")]
        ops += [valu("v_add_u32", f"v{AP[w]+k}", lit(WBASE[w]), f"v{V_AK+k}") for w in (2, 1) for k in range(4)]
        apf = s.chain(ops, i1['pv_end'], i1['pv_end'] + 60, name="ap"); s.win_after.append((('P', 0), apf))
        live = set(rest); s.unp = []
        for (nb, h4) in seq:
            st = len(s.MF); tst[(nb, h4)] = st; hh = h4 & 1
            if h4 < 2:
                T_ = s.free(f"WO{h4}_{nb}", ALL, lambda sl: wo_ops(h4, nb, sl)); tbar[(nb, h4)] = s.want_bar([T_])
            elif h4 == 2:
                sa = PAIRS[CORD.index(nb) % 5]
                TP = [s.fixed(f"WO{2+k}_{nb}", sa + k, lambda sl, k=k: wo_ops(2 + k, nb, sl), lead=OPT['plead']) for k in range(2)]
                tbar[(nb, 2)] = tbar[(nb, 3)] = s.want_bar(TP); TP[1].first_need = st + 0.5
            if nb in parked and h4 == 2:
                b = min((x for x in VB if x not in [vb[k] for k in vb if k in live]), key=lambda x: vfree[x]); vb[nb] = b
                ops = []
                for i in range(12):
                    ops += [valu("v_accvgpr_read_b32", f"v{b+2*i+1}", f"a{PARK[nb]+i}"), valu("v_lshlrev_b32", f"v{b+2*i}", "16", f"v{b+2*i+1}"),
                            valu("v_and_b32", f"v{b+2*i+1}", "0xffff0000", f"v{b+2*i+1}")]
                e = max(vfree[b], st - 60)
                s.unp.append((ops, e, st - 2, b))
            if nb in inacc: accr = lambda ntl, qt: R('a', accA(nb) + 4 * (ntl * 3 + qt), 4)
            else: accr = lambda ntl, qt: R('v', vb[nb] + 4 * (ntl * 3 + qt), 4); live.add(nb)
            if h4 < 2: s.o_tile(T_, lambda ks, qt: R('a', OBa(hh, ks, qt), 4), accr, h4 == 0)
            else:
                w, ib = pwin(sa)
                for ks in range(4):
                    for ntl in range(2):
                        if nb == CORD[0] and h4 == 3 and ks * 2 + ntl == OPT['xb2']: pubx = s.want_bar([])
                        s.add_frag(TP[0], lambda b: [ds_read("ds_read_b64_tr_b16", R('a', b + 2 * hf, 2), f"v{AP[w]+2*hh+ntl}", ib + ks * 4096 + hf * 2048, slot=('P', sa, sa + 1)) for hf in range(2)],
                                   lambda a: [mfma(accr(ntl, qt), a, R('v', Oacc(2 * ks + hh, qt), 4), accr(ntl, qt)) for qt in range(3)], after=('P', 0))
                TP[1].last_use = TP[0].last_use
            if h4 == 3:
                dn = s.g()
                for qt in range(3):
                    c_ = CORD.index(nb)
                    if nb in inacc: ops = s.store_ops(accA(nb) + 4 * qt, accA(nb) + 12 + 4 * qt, V_P + 8 * qt, c_, qt, True)
                    else: ops = s.store_ops(vb[nb] + 4 * qt, vb[nb] + 12 + 4 * qt, None, c_, qt, False)
                    s.pending_st.append((ops, dn + 4, dn + (OPT['std2'] if nb in inacc else OPT['std1']), vb.get(nb)))
                if nb in vb: vfree[vb[nb]] = dn + OPT['std1'] + 2; live.discard(nb)
        s.pubA = tbar[seq[-1]]
        first2 = seq[2 * len(rest)]
        pub1 = tbar[first2]; pub2 = pubx
        wd = lambda ks: min(s.bar_req[pub1 if ks < 2 else pub2][0] - LA - 4, tst[first2] + 6 * ks - 3)
        last1 = s.o_finish(1, i1, lambda ks, qt: wd(ks))
        g0 = i1['pv_last'] + 6
        pre1 = s.chain([valu("v_lshlrev_b32", f"v{V_T}", "4", "v0"), salu("s_mul_i32", f"s{S_T1}", f"s{S_W}", "12288"),
                        valu("v_add_u32", f"v{V_T+1}", f"s{S_T1}", f"v{V_T}"), salu("s_xor_b32", f"s{S_T1}", f"s{S_W}", "2"), salu("s_mul_i32", f"s{S_T1}", f"s{S_T1}", "12288"),
                        valu("v_add_u32", f"v{V_T+2}", f"s{S_T1}", f"v{V_T}")], g0, g0 + 8, name="xpre")
        rd_end = tst[first2] + 48 - LA - 1 - OPT['rdm']
        res = [s.fixed(f"XC_{sl}", sl, lambda sl: [], lead=0) for sl in (0, 1, 2)]
        for t in res:
            t.first_need = s.bar_req[i1['bar'][15]][0]; t.last_use = rd_end + 1; t.scratch = i1['bar'][15]; s.issued.add(t.name)
        def mkx():
            bw = s.barfill[i1['bar'][15]]
            for i, (ks, qt) in enumerate(fr):
                bp = s.barfill[pub1 if ks < 2 else pub2]; lf = last1[(ks, qt)]
                op = ds_write("ds_write_b128", f"v{V_T+1}", R('v', Oacc(2 * ks, qt), 4), i * 1024); op.note = (0, 1, 2)
                w_ = s.fill(op, max(lf.earliest, bw.earliest), bp.earliest, want=max(lf.want, bw.earliest) + 0.1 + i * 0.01, after=[lf, pre1, bw], name="xw1")
                bp.after.append(w_)
                op = ds_read("ds_read_b128", R('v', Oacc(2 * ks + 1, qt), 4), f"v{V_T+2}", i * 1024, slot=('X', 100))
                need = tst[first2] + 24 + 6 * ks
                s.xneed[id(op)] = need
                s.fill(op, bp.earliest, min(need - 6, rd_end), want=bp.earliest + 1 + (i % 6) * (2 if ks < 2 else 1.2), after=[bp], name="xr1")
        s.late.append(mkx)
        NG = len(s.MF)
        if dry: return None
        for gp in OPT.get('at', []): s.forced(stamp_ops(s.nst), gap=gp, name="stamp"); s.nst += 1
        s.tile_bar = {}; s.bars = []; s.barfill = []; prev = -2
        for (need, tiles) in s.bar_req:
            gg = max(need - LA - 1, prev + 1, -1)
            def mk(tiles, fence, stA):
                def f(p):
                    names = [t.name for t in tiles]
                    for t in tiles: assert t.name in s.issued, t.name
                    idx = max((i for i, op in enumerate(p.vm) if op.tag in names), default=-1)
                    if idx >= 0: p.wait_vm_tag(p.vm[idx].tag)
                    if stA:
                        p.wait_vm_tag("stA")
                        if OPT['epoll']: p.emit(hcheck())
                    if fence:
                        ix = max((i for i, op in enumerate(p.lgkm) if isinstance(op.slot, tuple) and op.slot[0] == 'X'), default=-1)
                        if ix >= 0: p.wait_lgkm(len(p.lgkm) - 1 - ix)
                    p.barrier()
                    if stA:
                        p.emit([valu("v_mov_b32", f"v{V_TA}", "1"), valu("v_mov_b32", f"v{V_TB}", "0"),
                                raw(f"s_cmp_lg_u32 s{S_W}, 0", 'S'), raw("s_cbranch_scc1 L_npa", 'S'), raw("s_mov_b64 exec, 1", 'S'),
                                raw(f"buffer_store_dword v{V_TA}, v{V_TB}, {SWS}, s101 offen sc1", 'S'), raw("s_mov_b64 exec, -1", 'S'), raw("L_npa:", 'X')])
                        if OPT['epoll']:
                            p.emit([valu("v_min_u32", f"v{V_NM+2}", "7", "v0"), valu("v_lshlrev_b32", f"v{V_NM+2}", "3", f"v{V_NM+2}"), salu("s_mov_b32", "s99", lit(8 * 108 * 1024))])
                            s.epoll_gap = True
                return f
            fence = any(hasattr(t, 'scratch') and prev < t.last_use <= gg for t in s.tiles)
            fl = Fill([mk(tiles, fence, len(s.barfill) == s.pubA)], gg, gg, want=-10**9, name="bar"); s.FL.append(fl); s.bars.append((gg, fl)); s.barfill.append(fl)
            for t in tiles: s.tile_bar[t.name] = fl
            prev = gg
        if OPT['epoll']:
            s.fill(raw(f"buffer_load_dwordx2 v[{V_NM}:{V_NM+1}], v{V_NM+2}, {SWS}, s99 offen sc1", 'D', rd=[f"v{V_NM+2}", SWS], wr=[], tag="ep"), NG - OPT['epg'], NG - OPT['epg'] + 4, after=[s.barfill[s.pubA]], name="epoll")
        for cb in s.late: cb()
        for f in s.FL:
            if f.name == "xw" and f.deadline > s.xb_dead and f.earliest < s.xb_dead: f.deadline = s.xb_dead
        last = None
        for f, fr_ in enumerate(s.frags):
            e = s.frags[f - NFR]['u1'] if f >= NFR else -1
            b = s.tile_bar[fr_['tile'].name]; e = max(e, b.earliest)
            aft = [b, last] + [v for k, v in s.win_after if k == fr_['after']]
            for k, op in enumerate(fr_['reads']):
                last = s.fill(op, e, fr_['u0'] - 1, want=fr_['u0'] - LA + k, after=aft, name="rd"); aft = [last]
        prevf = None; stf = {}
        for (ops, e, d, b) in s.pending_st:
            prevf = s.chain(ops, min(e, NG - 1), min(d, NG - 1), want0=e, step=1.0, after=[prevf], name="st"); stf.setdefault(b, []).append(prevf)
        for (ops, e, d, b) in s.unp:
            aft = [f for f in stf.get(b, []) if f.deadline <= e]
            s.chain(ops, e, d, want0=e, step=1.0, after=aft[-1:], name="unp")
        order_t = sorted(s.tiles, key=lambda t: t.first_need)
        occ = {}; plan = []; floor = (-1, s.bars[0][1])
        for t in order_t:
            pv = occ.get(t.slot); occ[t.slot] = t
            if hasattr(t, 'scratch'):
                assert pv.last_use <= s.barfill[t.scratch].earliest, (t.name, pv.name, pv.last_use, s.barfill[t.scratch].earliest)
            if t.name in s.issued: continue
            lu = pv.last_use if pv else -1
            bg = next(x for x in s.bars if x[0] >= lu)
            if bg[0] < floor[0] and not hasattr(t, 'want_issue'): bg = floor
            if t.name.startswith(("WQ0", "X0")): floor = bg
            ml = next((x for x in s.bars if x[0] >= getattr(t, 'want_issue', t.first_need - OPT['maxlead'])), bg)
            if ml[0] > bg[0] and ml[0] < s.tile_bar[t.name].earliest: bg = ml
            plan.append((int(bg[0]), t.first_need, t, bg[1]))
        plan.sort(key=lambda x: (x[0], (x[2].name[0] not in 'KV') if OPT['hb'] and x[0] > 440 else 0, x[1]))
        lastd = None; cur = 'WQ'
        groups = {}
        for x in plan: groups.setdefault(x[0], []).append(x)
        for (gg, need, t, bf) in plan:
            ops = list(t.ops)
            if t.name.startswith('WO') and cur == 'WQ': ops = set_L_wo() + ops; cur = 'WO'
            assert not (t.name.startswith('WQ') and cur == 'WO')
            same = groups[gg]; k0 = [x[2] for x in same].index(t)
            nextbar = next((x[0] for x in s.bars if x[0] > gg), NG)
            span = max(nextbar - gg - 4, 1); tot = 6 * len(same)
            dl = s.tile_bar[t.name].earliest - 1
            assert dl >= gg, (t.name, dl, gg)
            if OPT.get('verbose'): sys.stderr.write(f"{t.name} slot {t.slot} issue@{gg} pub@{dl+1} lead {dl+1-gg}\n")
            for k, op in enumerate(ops):
                w = gg + 1 + ((k0 * 6 + min(k, 5)) * span) / tot
                if gg < 0: w = -12 + (k0 * 6 + k) * 1.0
                elif OPT['hb'] and span > 60:
                    isH = t.name[0] in 'KV'
                    grp = [x[2] for x in same if (x[2].name[0] in 'KV') == isH]
                    a_, b_ = (OPT['h0'], OPT['h1']) if isH else (OPT['l0'], OPT['l1'])
                    w = gg + a_ + (grp.index(t) * 6 + min(k, 5)) * (b_ - a_) / (6.0 * len(grp)) - OPT['dlate'] * (op.kind == 'D')
                o = [op]
                if k == len(ops) - 1: o = [op, (lambda nm: (lambda p: s.issued.add(nm)))(t.name)]
                lastd = s.fill(o, gg, dl, want=w, after=[bf, lastd], name="dma " + t.name)
        s.weave()
        s.P.emit(stamp_ops(s.nst)); s.nst += 1
        return s.P
    def allocate(s):
        bars = []; pub = {}; prev = -2
        for (need, tiles) in s.bar_req:
            gg = max(need - LA - 1, prev + 1, -1); bars.append(gg); prev = gg
            for t in tiles: pub[t.name] = gg
        for t in s.tiles:
            if hasattr(t, 'scratch'): pub[t.name] = bars[t.scratch] + 0.5
        def nb(x): return next((b for b in bars if b >= x), 10**7)
        tl = sorted(s.tiles, key=lambda t: t.first_need)
        fixed = {}
        for t in tl:
            if t.cands is None: fixed.setdefault(t.slot, []).append(t)
        rel = {sl: -1 for sl in range(10)}; al = {}
        for t in tl:
            if t.cands is None: rel[t.slot] = t.last_use; continue
            best = None
            for sl in t.cands:
                nx = next((f for f in fixed.get(sl, []) if f.first_need > t.first_need), None)
                cost = 0
                if nx:
                    r_ = nb(t.last_use)
                    if r_ >= pub[nx.name]: cost += 10**8
                    cost += 4 * max(0, r_ - min(pub[nx.name] - nx.lead, getattr(nx, 'want_issue', 10**9)))
                ib = nb(rel[sl])
                if ib >= pub[t.name]: cost += 10**9
                cost += max(0, ib - (pub[t.name] - 100))
                key = (cost, ib, sl)
                if best is None or key < best[0]: best = (key, sl)
            assert best[0][0] < 10**8, (t.name, best)
            al[t.name] = best[1]; rel[best[1]] = t.last_use
        return al
    def weave(s):
        P = s.P; mf = s.MF; by_e = {}
        for f in s.FL: by_e.setdefault(max(int(f.earliest), -1), []).append(f)
        act = []; pen = 0
        need_at = dict(s.xneed)
        for fr in s.frags:
            for op in fr['reads']: need_at[id(op)] = fr['u0']
        issue_gap = {}
        HZ = OPT['hz']; DLATE = OPT['dlate']; LLATE = OPT['llate']; WAH = OPT['wah']
        def ready(f): return all(a.done for a in f.after)
        def kind(f): return cat(f.ops[0]) if len([o for o in f.ops if not callable(o)]) == 1 and not callable(f.ops[0]) else 'X'
        def put(f, g):
            P.emit(f.ops); f.done = True; act.remove(f)
            for o in f.ops:
                if not callable(o) and o.kind == 'L': issue_gap[id(o)] = g
        for g in range(-1, len(mf)):
            if g >= 0: P.emit(mf[g])
            act += by_e.get(g, [])
            used = []
            while True:
                fo = [f for f in act if f.deadline <= g]
                if not fo: break
                def pick(f):
                    for a in f.after:
                        if not a.done: return pick(a)
                    return f
                fo.sort(key=lambda f: f.want)
                f = pick(fo[0]); assert f in act, (f.name, f.earliest, g, fo[0].name)
                put(f, g); used.append(kind(f))
            if g >= 0:
                def room(k):
                    if not used: return True
                    if len(used) >= 2 or used[0] in 'EDX': return False
                    return True
                def best(kinds, lim):
                    c = [f for f in act if kind(f) in kinds and f.want <= lim and ready(f)]
                    return min(c, key=lambda f: f.want) if c else None
                def take(f): put(f, g); used.append(kind(f))
                if not used:
                    f = best('L', g) or best('E', g + 10**6) or best('D', g + HZ) or best('L', g + HZ) or best('X', g + HZ)
                    if f: take(f)
                if len(used) == 1 and used[0] == 'L':
                    f = best('D', g - DLATE) or best('L', g - LLATE)
                    if f: take(f); pen += 1
                for _ in range(2):
                    if room('V'):
                        f = best('S', g + 1) or best('VS', g + HZ)
                        if f: take(f)
                full = len(used) >= 2 or (used and used[0] in 'EDX')
                if P.lgkm:
                    nxt = min((need_at.get(id(o), 10**9) for o in P.lgkm), default=10**9)
                    if (not full and nxt - g <= WAH) or nxt <= g + 1:
                        k = 0
                        for o in P.lgkm:
                            if issue_gap.get(id(o), g) <= g - LAT or need_at.get(id(o), 10**9) <= g + 1: k += 1
                            else: break
                        for q_, o in enumerate(P.lgkm):
                            if need_at.get(id(o), 10**9) <= g + 1: k = max(k, q_ + 1)
                        covers = any(need_at.get(id(o), 10**9) == nxt for o in P.lgkm[:k]) and not any(need_at.get(id(o), 10**9) == nxt for o in P.lgkm[k:])
                        if k and covers:
                            P.wait_lgkm(len(P.lgkm) - k)
                            if full: pen += 1
            if len(used) > 2: pen += len(used) - 2
        assert not act, [(f.name, f.earliest, f.deadline) for f in act]
        sys.stderr.write(f"MFMA {len(mf)} instrs {len(P.out)} nops {P.nops} pen {pen} stats {P.stats}\n")

_old_barrier = Prog.barrier
def _barrier(p):
    idx = max((i for i, op in enumerate(p.lgkm) if op.txt.startswith('ds_write')), default=-1)
    if idx >= 0: p.wait_lgkm(len(p.lgkm) - 1 - idx)
    _old_barrier(p)
Prog.barrier = _barrier
_old_emit = Prog.emit
def _emit(p, ins):
    if isinstance(ins, I):
        tgt = []
        if ins.kind == 'D' and ins.slot is not None: tgt = [ins.slot]
        if ins.kind == 'L' and ins.txt.startswith('ds_write') and getattr(ins, 'note', None): tgt = list(ins.note)
        for sl in tgt:
            for u in p.unsafe:
                assert not (u == sl or (isinstance(u, tuple) and sl in u)), f"write into slot {sl} while reads unfenced ({u}): {ins.txt}"
    _old_emit(p, ins)
Prog.emit = _emit

def slow_path():
    P = Prog(); E = P.emit
    E(raw("L_slow:", 'X'))
    E(raw("s_nop 15", 'W')); E(raw("s_waitcnt vmcnt(0) lgkmcnt(0)", 'W'))
    SS = V_S; KF = V_S + 12; NMX = V_S + 28; ta, tv = V_S + 40, V_S + 41
    MX = Preg(1, 0); PB = Preg(1, 0) + 6
    E(salu("s_lshl_b32", "s50", f"s{S_HD}", "17")); E(salu("s_add_u32", "s48", "s48", "s50"))
    E(valu("v_and_b32", f"v{tv}", "15", "v0")); E(valu("v_lshlrev_b32", f"v{ta}", "8", f"v{tv}"))
    E(valu("v_lshrrev_b32", f"v{KF}", "4", "v0")); E(valu("v_lshl_add_u32", f"v{ta}", f"v{KF}", "4", f"v{ta}"))
    E(valu("v_lshlrev_b32", f"v{tv}", "1", f"v{tv}")); E(valu("v_lshl_add_u32", f"v{tv}", f"v{KF}", "10", f"v{tv}"))
    for qt in range(3): E(valu("v_mov_b32", f"v{MX+2*qt}", "0xff7fffff"))
    def scores(c):
        for ks in range(4):
            E(raw(f"buffer_load_dwordx4 v[{KF+4*ks}:{KF+4*ks+3}], v{ta}, {SK}, s49 offen offset:{64*ks}", 'D', rd=[f"v{ta}"], wr=[f"v[{KF+4*ks}:{KF+4*ks+3}]"]))
        for ks in range(4):
            for qt in range(3):
                E(mfma(R('v', SS + 4 * qt, 4), R('v', KF + 4 * ks, 4), QF(ks, qt), c(qt) if ks == 0 else R('v', SS + 4 * qt, 4)))
    def loop_end(lab):
        E(raw("s_nop 15", 'W')); E(raw("s_waitcnt vmcnt(0) lgkmcnt(0)", 'W')); P.vm = []; P.lgkm = []
        E(salu("s_add_u32", "s49", "s49", "4096")); E(salu("s_add_u32", "s51", "s51", "1"))
        E(raw("s_cmp_lt_u32 s51, 32", 'S')); E(raw(f"s_cbranch_scc1 {lab}", 'S'))
    E(salu("s_mov_b32", "s49", "s48")); E(salu("s_mov_b32", "s51", "0"))
    E(raw("L_sl1:", 'X'))
    scores(lambda qt: "0")
    for qt in range(3):
        x = SS + 4 * qt
        E(valu("v_max3_f32", f"v{MX+2*qt}", f"v{MX+2*qt}", f"v{x}", f"v{x+1}")); E(valu("v_max3_f32", f"v{MX+2*qt}", f"v{MX+2*qt}", f"v{x+2}", f"v{x+3}"))
    loop_end("L_sl1")
    for qt in range(3):
        a, b = f"v{MX+2*qt}", f"v{MX+2*qt+1}"
        E(valu("v_mov_b32", b, a)); E(valu("v_permlane16_swap_b32", a, b)); E(valu("v_max_f32", a, a, b))
        E(valu("v_mov_b32", b, a)); E(valu("v_permlane32_swap_b32", a, b)); E(valu("v_max_f32", a, a, b))
        for k in range(4): E(valu("v_sub_f32", f"v{NMX+4*qt+k}", "0", a))
    for k in range(96): E(valu("v_mov_b32", f"v{V_O+k}", "0"))
    for k in range(12): E(valu("v_accvgpr_write_b32", f"a{A_L+k}", "0"))
    E(salu("s_mov_b32", "s49", "s48")); E(salu("s_mov_b32", "s51", "0"))
    E(raw("L_sl2:", 'X'))
    scores(lambda qt: R('v', NMX + 4 * qt, 4))
    for k in range(12): E(valu("v_exp_f32", f"v{SS+k}", f"v{SS+k}"))
    for qt in range(3):
        for h in range(2): E(valu("v_cvt_pk_bf16_f32", f"v{PB+2*qt+h}", f"v{SS+4*qt+2*h}", f"v{SS+4*qt+2*h+1}"))
    E(raw("s_nop 7", 'W'))
    M16 = "v_mfma_f32_16x16x16_bf16"
    for qt in range(3): E(mfma(R('a', A_L + 4 * qt, 4), R('a', A_ONE, 2), R('v', PB + 2 * qt, 2), R('a', A_L + 4 * qt, 4), op=M16))
    for dh in range(2):
        for d4 in range(4):
            for h in range(2):
                for half in range(2):
                    E(raw(f"buffer_load_ushort v{KF+8*half+2*d4+h}, v{tv}, {SV}, s49 offen offset:{(2*h+half)*256+32*(4*dh+d4)}", 'D', rd=[f"v{tv}"], wr=[f"v{KF+8*half+2*d4+h}"]))
        for k in range(8): E(valu("v_lshl_or_b32", f"v{KF+k}", f"v{KF+8+k}", "16", f"v{KF+k}"))
        for d4 in range(4):
            for qt in range(3): E(mfma(R('v', Oacc(4 * dh + d4, qt), 4), R('v', KF + 2 * d4, 2), R('v', PB + 2 * qt, 2), R('v', Oacc(4 * dh + d4, qt), 4), op=M16))
        E(raw("s_nop 7", 'W'))
    loop_end("L_sl2")
    for k in range(12): E(valu("v_mov_b32", f"v{Preg(1,0)+k}", "0"))
    for qt in range(3): E(valu("v_accvgpr_read_b32", f"v{RL[qt]}", f"a{A_L+4*qt}"))
    E(raw("s_nop 7", 'W'))
    E(raw(f"s_setpc_b64 {S_RET}", 'S'))
    return P

def final(nst, CORD):
    P = Prog(); E = P.emit
    LDF = ["", " sc1", " sc0 sc1", " sc1 nt"][OPT["ldf"]]
    E(raw("L_final:", 'X'))
    E(valu("v_min_u32", "v26", "7", "v0")); E(valu("v_lshlrev_b32", "v26", "3", "v26")); E(salu("s_mov_b32", "s61", lit(8 * 108 * 1024)))
    PL = f"buffer_load_dwordx2 v[4:5], v26, {SWS}, s99 offen sc1"
    E(salu("s_mov_b32", "s99", lit(8 * 108 * 1024)))
    E(valu("v_lshlrev_b32", "v2", "4", "v0"))
    E(salu("s_lshl_b32", "s52", "s46", "2")); E(salu("s_add_u32", "s52", "s52", f"s{S_W}"))
    E(salu("s_mov_b32", "s64", "s68")); E(salu("s_and_b32", "s65", "s69", "0xffff")); E(salu("s_mov_b32", "s66", lit(16 * 96 * 1152 * 2))); E(salu("s_mov_b32", "s67", "0x20000"))
    E(valu("v_and_b32", "v6", "15", "v0")); E(valu("v_mul_u32_u24", "v6", "2304", "v6"))
    E(valu("v_lshrrev_b32", "v7", "4", "v0")); E(valu("v_lshl_add_u32", "v6", "v7", "3", "v6"))
    E(valu("v_mov_b32", "v24", "0x3f80")); E(valu("v_mov_b32", "v25", "0x3f800000"))
    tab = sum(p << (4 * c) for c, p in enumerate(CORD))
    E(salu("s_mov_b32", "s62", lit(tab & 0xffffffff))); E(salu("s_mov_b32", "s63", lit(tab >> 32)))
    E(salu("s_mul_i32", "s60", "s44", str(96 * 2304))); E(salu("s_mul_i32", "s61", "s42", "1152")); E(salu("s_add_u32", "s60", "s60", "s61"))
    for k in range(4):
        E(salu("s_add_u32", "s53", "s52", str(32 * k)))
        E(salu("s_mul_hi_u32", "s54", "s53", str((2**32 + 11) // 12)))
        E(salu("s_mul_i32", "s55", "s54", "12")); E(salu("s_sub_u32", "s55", "s53", "s55"))
        E(salu("s_lshl_b32", "s54", "s54", "2")); E(raw("s_lshr_b64 s[36:37], s[62:63], s54", 'S', wr=["s[36:37]"])); E(salu("s_and_b32", "s36", "s36", "15"))
        E(salu("s_lshl_b32", "s36", "s36", "7")); E(salu("s_add_u32", "s36", "s36", "s41")); E(salu("s_sub_u32", "s37", "s36", "1152")); E(salu("s_min_u32", "s36", "s36", "s37"))
        E(raw("s_cmp_ge_u32 s55, 6", 'S')); E(raw("s_cselect_b32 s37, 64, 0", 'S', wr=["s37"])); E(raw("s_cselect_b32 s54, 6, 0", 'S', wr=["s54"]))
        E(salu("s_sub_u32", "s55", "s55", "s54")); E(salu("s_mul_i32", "s55", "s55", str(16 * 2304)))
        E(salu("s_add_u32", "s55", "s55", "s36")); E(salu("s_add_u32", "s55", "s55", "s37")); E(salu("s_add_u32", f"s{56+k}", "s55", "s60"))
        if k == 3: E(raw("s_cmp_lt_u32 s52, 12", 'S')); E(raw("s_cselect_b32 s59, s59, 0x70000000", 'S', wr=["s59"]))
    E(raw("s_waitcnt vmcnt(0) lgkmcnt(0)", 'W'))
    E(stamp_ops(nst)); nst += 1
    if OPT['epoll']:
        E(valu("v_mov_b32", "v4", f"v{V_NM}")); E(valu("v_mov_b32", "v5", f"v{V_NM+1}"))
    else: E(hcheck())
    E(salu("s_lshl_b32", "s53", "s46", "3")); E(raw("v_cmp_eq_u32 s[48:49], s53, v26", 'V', rd=["v26", "s53"]))
    E(raw("s_barrier", 'B'))
    E(raw(f"s_cmp_lg_u32 s{S_W}, 0", 'S')); E(raw("s_cbranch_scc1 L_npb", 'S'))
    E(raw("s_mov_b64 exec, 1", 'S'))
    E(raw(f"buffer_store_dword v{V_TA}, v{V_TB}, {SWS}, s101 offen offset:4 sc1", 'D'))
    E(raw("s_mov_b64 exec, -1", 'S'))
    E(raw("L_npb:", 'X'))
    def poll(reg, tag, first):
        E(salu("s_mov_b32", "s53", "0"))
        if first: E(raw(f"s_branch L_pl{tag}", 'S'))
        E(raw(f"L_poll{tag}:", 'X'))
        E(raw(f"v_cmp_eq_u32 vcc, 1, v{reg}", 'V')); E(raw("s_add_u32 s53, s53, 1", 'S')); E(raw("s_nop 1", 'W'))
        E(raw("s_or_b64 vcc, vcc, s[48:49]", 'S'))
        E(raw("s_cmp_eq_u64 vcc, -1", 'S')); E(raw(f"s_cbranch_scc1 L_pd{tag}", 'S'))
        if OPT['psleep']: E(raw(f"s_sleep {OPT['psleep']}", 'S'))
        E(raw(f"L_pl{tag}:", 'X'))
        E(raw(PL, 'D')); E(raw("s_waitcnt vmcnt(0)", 'W'))
        E(raw("s_cmp_lt_u32 s53, 0x400000", 'S')); E(raw(f"s_cbranch_scc1 L_poll{tag}", 'S'))
        E(raw(f"L_pd{tag}:", 'X'))
        P.vm = []
    def loads(k):
        E(salu("s_add_u32", "s53", "s52", str(32 * k))); E(salu("s_lshl_b32", "s53", "s53", "10"))
        if k == 3: E(raw("s_cmp_lt_u32 s52, 12", 'S')); E(raw("s_cselect_b32 s53, s53, 0x70000000", 'S', wr=["s53"]))
        for j in range(8):
            d = 32 + 32 * k + 4 * j
            E(raw(f"buffer_load_dwordx4 v[{d}:{d+3}], v2, {SWS}, s53 offen" + LDF, 'D', rd=["v2", "s53"], wr=[f"v[{d}:{d+3}]"]))
            if j < 7: E(salu("s_add_u32", "s53", "s53", str(108 * 1024)))
    def red(k):
        acc = 8
        for j in range(8):
            d = 32 + 32 * k + 4 * j
            for c in range(4):
                E(valu("v_dot2_f32_bf16", f"v{acc+2*c}", f"v{d+c}", "v24", "0" if j == 0 else f"v{acc+2*c}"))
                E(valu("v_dot2_f32_bf16", f"v{acc+2*c+1}", f"v{d+c}", "v25", "0" if j == 0 else f"v{acc+2*c+1}"))
        E(raw("s_nop 2", 'W'))
        o = 16 + 4 * (k & 1)
        for c in range(4): E(valu("v_cvt_pk_bf16_f32", f"v{o+c}", f"v{acc+2*c}", f"v{acc+2*c+1}"))
        E(raw(f"buffer_store_dwordx2 v[{o}:{o+1}], v6, s[64:67], s{56+k} offen", 'D', rd=[f"v[{o}:{o+1}]"]))
        E(raw(f"buffer_store_dwordx2 v[{o+2}:{o+3}], v6, s[64:67], s{56+k} offen offset:32", 'D', rd=[f"v[{o+2}:{o+3}]"]))
        E(raw("s_nop 2", 'W'))
    poll(4, "A", not OPT['epoll'])
    if OPT['epoll']:
        E(raw("v_cmp_eq_u32 vcc, 1, v5", 'V')); E(raw("s_nop 1", 'W')); E(raw("s_or_b64 vcc, vcc, s[48:49]", 'S'))
        E(raw("s_cmp_eq_u64 vcc, -1", 'S')); E(raw("s_cbranch_scc0 L_two", 'S'))
        for k in range(4): loads(k)
        E(stamp_ops(nst))
        for k in range(4): red(k)
        E(raw("s_branch L_fin", 'S'))
        E(raw("L_two:", 'X')); P.vm = []
    loads(0); loads(1)
    E(raw(PL, 'D', wr=["v[4:5]"]))
    red(0); red(1)
    E(raw("s_waitcnt vmcnt(4)", 'W'))
    poll(5, "B", False)
    E(stamp_ops(nst)); nst += 1
    loads(2); loads(3)
    red(2); red(3)
    E(raw("L_fin:", 'X'))
    if OPT['stamp']:
        E(raw("s_waitcnt vmcnt(0)", 'W'))
        E(stamp_ops(nst)); nst += 1
        E(salu("s_lshl_b32", "s40", "s2", "2")); E(salu("s_add_u32", "s40", "s40", f"s{S_W}")); E(salu("s_lshl_b32", "s40", "s40", "7"))
        E(salu("s_add_u32", "s40", "s40", hex(64 << 20)))
        E(salu("s_add_u32", "s72", "s72", "s40")); E(salu("s_addc_u32", "s73", "s73", "0"))
        E(valu("v_mov_b32", "v1", "0"))
        for k in range(nst):
            E(valu("v_mov_b32", "v2", f"s{78+k}")); E(valu("v_mov_b32", "v3", f"s{89+k}"))
            E(raw(f"global_store_dword v1, v2, s[72:73] offset:{4*k}", 'D', rd=['v1', 'v2']))
            E(raw(f"global_store_dword v1, v3, s[72:73] offset:{64+4*k}", 'D', rd=['v1', 'v3'])); E(raw("s_nop 1", 'W'))
        sys.stderr.write(f"stamps {nst}\n")
    E(raw("s_endpgm", 'X'))
    return P


import re
d = Build({}); d.build(dry=True); al = d.allocate()
b = Build(al); P = b.build()
parts = [P0.text(), P.text(), final(b.nst, b.CORD).text()]
if OPT['slow']: parts.append(slow_path().text())
parts.append("L_end0:\ns_endpgm")
if OPT['two']:
    OPT['early'], OPT['e0'], OPT['estep'] = OPT['earlyB'], OPT['e0B'], OPT['estepB']
    d = Build({}); d.build(dry=True); al = d.allocate()
    b2 = Build(al); P2 = b2.build()
    t2_ = re.sub(r"\bL_(ok|hs|hc|nz|npa|hok|hp|tailcode)(\d*)\b", r"LB_\1\2", P2.text())
    parts.append("L_progB:\n" + t2_ + "\ns_branch L_final")
parts.append("L_codeend:")
body = "\n".join(parts)

import re
MAC = """.macro mf d,a,b,c
v_mfma_f32_16x16x32_bf16 \\d,\\a,\\b,\\c
.endm
.macro tr d,a,o
ds_read_b64_tr_b16 \\d,\\a offset:\\o
.endm
.macro rq d,a,o
ds_read_b128 \\d,\\a offset:\\o
.endm
.macro dn v,r,s,o
buffer_load_dwordx4 \\v,\\r,\\s offen offset:\\o nt lds
.endm
.macro dl v,r,s,o
buffer_load_dwordx4 \\v,\\r,\\s offen offset:\\o lds
.endm
.macro wl n
s_waitcnt lgkmcnt(\\n)
.endm
.macro cv d,a,b
v_cvt_pk_bf16_f32 \\d,\\a,\\b
.endm
.macro ex d
v_exp_f32 \\d,\\d
.endm
"""
def compact(l):
    if l.startswith("v_mfma_f32_16x16x32_bf16 "): return "mf " + l[25:].replace(", ", ",")
    m = re.fullmatch(r"ds_read_b64_tr_b16 (\S+), (\S+) offset:(\d+)", l)
    if m: return f"tr {m.group(1)},{m.group(2)},{m.group(3)}"
    m = re.fullmatch(r"ds_read_b128 (\S+), (\S+) offset:(\d+)", l)
    if m: return f"rq {m.group(1)},{m.group(2)},{m.group(3)}"
    m = re.fullmatch(r"buffer_load_dwordx4 (\S+), (\S+), (\S+) offen offset:(\d+) (nt )?lds", l)
    if m: return f"{'dn' if m.group(5) else 'dl'} {m.group(1)},{m.group(2)},{m.group(3)},{m.group(4)}"
    m = re.fullmatch(r"s_waitcnt lgkmcnt\((\d+)\)", l)
    if m: return f"wl {m.group(1)}"
    m = re.fullmatch(r"v_cvt_pk_bf16_f32 (\S+), (\S+), (\S+)", l)
    if m: return f"cv {m.group(1)},{m.group(2)},{m.group(3)}"
    m = re.fullmatch(r"v_exp_f32 (\S+), (\S+)", l)
    if m and m.group(1) == m.group(2): return f"ex {m.group(1)}"
    return l
if OPT.get('compact', 1): body = "\n".join(compact(l) for l in body.split("\n"))
else: MAC = ""

def kd(name, vg, acc):
    return f""".amdhsa_kernel {name}
  .amdhsa_next_free_vgpr {vg}
  .amdhsa_next_free_sgpr 102
  .amdhsa_accum_offset {acc}
  .amdhsa_group_segment_fixed_size 0
  .amdhsa_kernarg_size 104
  .amdhsa_user_sgpr_count 2
  .amdhsa_user_sgpr_kernarg_segment_ptr 1
  .amdhsa_system_sgpr_workgroup_id_x 1
.end_amdhsa_kernel
"""
txt = f"""; generated by gen/gen6.py (hand-written generator; fused Qproj + attention + Oproj + in-kernel reduction)
; @launch grid=(256,1,1) block=(256,1,1) lds=163840
.amdgcn_target "amdgcn-amd-amdhsa--gfx950"
{MAC}.text
.globl {NAME}_kernel
.p2align 8
.type {NAME}_kernel,@function
{NAME}_kernel:
""" + body + '\n.section .rodata,"a"\n.p2align 6\n' + kd(NAME + "_kernel", 512, 256)
open(sys.argv[1], "w").write(txt)
```

```python
import sys, math, struct, re
from asmlib import *

NAME = "concat_heads__mha_block_cached__mha_block_cached__near_ridge"
OPT = dict(LA=13, LAT=7, dlate=8, llate=3, wah=4, hz=5, nt_kv=1, stamp=0, cpf=1, fake=0, slow=1, forceslow=0, compact=1, rot=1, psleep=8,
           leadh=110, cord=0, unpw=60, swin=0, two=0, earlyB=6, e0B=-1, estepB=0, popm=1, epoll=1, epg=30, rdm=4, std1=40, std2=46, pfsc=1, q0t=0, q0tw=4, q0tx=9, pf2=0, pfa=12, pfb=8, pfc=8, up=0, krot=1, plead=70, ptb=1, xb2=3, nost=0, puba=2, ntt=0, ntw0=0, cpf2=0, cps=10, ntq0=0, pfw=0, pft0=6, pfd=2, early=3, e0=150, estep=48, pft=0, pfs=10, ntx=0, npl0=3, npl1=0, hb=0, h0=1, h1=30, l0=45, l1=62, stf=1, ldf=1, wb=0, maxlead=200, o0start=2)
for a in sys.argv[2:]:
    k, v = a.split('='); OPT[k] = int(v) if k != 'at' else [int(x) for x in v.split(',')]
LA, LAT = OPT['LA'], OPT['LAT']

V_TA, V_AO0, V_TB = 1, 2, 3
V_PFD = 'PFD'
V_AK, V_AV = 4, 8
V_KA, V_KB, V_VA, V_VB = 16, 17, 18, 19
V_L = 20; V_WO0 = 24; V_T = 25
V_QF = 28; V_O = 76; V_S = 172; V_P = 220; V_NM = 244; V_H = 248
A_L = 216; A_ONE = 228; A_FR = 232; NFR = 6
def QFr(ks, qt): return V_QF + 4 * (ks * 3 + qt)
def QF(ks, qt): return R('v', QFr(ks, qt), 4)
def Oacc(dt, qt): return V_O + 4 * (dt * 3 + qt)
def Sreg(buf, t, qt): return V_S + 24 * buf + 4 * (t * 3 + qt)
def Preg(buf, qt): return V_P + 12 * buf + 4 * qt
NMR = R('v', V_NM, 4)
RL = [V_NM, V_NM + 2, V_H + 6]
def XFr(p, qt): return 12 * p + 4 * qt
def QaccQS(dt, qt): return QFr(dt >> 1, qt) if dt % 2 == 0 else (V_S + 4 * ((dt >> 1) * 3 + qt))
OBA = [96 + 4 * i for i in range(18)] + [192 + 4 * i for i in range(6)]
def OBa(hh, ks, qt): return OBA[(hh * 4 + ks) * 3 + qt]
ACCB = [0, 24]
PARK = [48, 60, 72, 84, 168, 180]
S_W, S_W4K, S_W3K = 3, 4, 5
SK, SV, SWQ, SWO, SX, SWS = 's[8:11]', 's[12:15]', 's[16:19]', 's[20:23]', 's[24:27]', 's[28:31]'
S_OFF, S_C, S_T0, S_T1, S_HD, S_QH, S_ST = 32, 34, 36, 37, 38, 39, 33
S_RET = 's[6:7]'
SLOT = 16384
KPW = [52 + p for p in range(9)]
KPX = [61, 62, 63, 64, 65, 66, 67, 43, 45]
def lit(x): return hex(x & 0xffffffff)
cval = struct.unpack('<I', struct.pack('<f', math.log2(math.e) / math.sqrt(128.0)))[0]
NT = "nt" if OPT['nt_kv'] else ""
def win(slot): return (2, (slot - 6) * SLOT) if slot >= 6 else ((1, (slot - 3) * SLOT) if slot >= 3 else (0, slot * SLOT))
WBASE = [0, 3 * SLOT, 6 * SLOT]
AW = {2: V_H, 1: V_P}
AX = {2: V_H + 4, 0: V_P + 4}
AO = {2: V_H, 1: V_H + 2, 0: V_H + 4}

class Tile:
    def __init__(s, name, slot, ops, cands=None, lead=None):
        s.name = name; s.slot = slot; s.ops = ops; s.cands = cands; s.lead = lead
        s.last_use = None; s.first_need = None
def touch(v, srd, so, off=0): return raw(f"buffer_load_dword v{V_H+7}, {v}, {srd}, {so} offen offset:{off}" + (" sc1 nt" if OPT['pfsc'] else " nt"), 'D', rd=[v, srd, so], wr=[], tag="pf")
def x_ops(n, i, slot):
    return ([touch(f"v{V_TA}", SX, f"s{KPX[i]}")] if OPT['q0t'] and n.startswith("X0") and i < OPT['q0tx'] else []) + [salu("s_add_u32", "m0", f"s{S_W3K}", lit(slot * SLOT))] + [dma(f"v{V_T+j}", SX, f"s{KPX[i]}", 1024 * j, "nt" if (OPT['ntx'] or (OPT['ntq0'] and n.startswith("X0"))) else "", tag=n, slot=slot) for j in range(3)]
def w_ops(srd, n, sreg, off, slot):
    ops = [salu("s_add_u32", "m0", f"s{S_W4K}", lit(slot * SLOT))]; so = f"s{sreg}"
    if off: ops.append(salu("s_add_u32", f"s{S_OFF}", so, lit(off))); so = f"s{S_OFF}"
    if OPT['q0t'] and n.startswith("WQ0") and int(n[4:]) < OPT['q0tw']: ops.append(touch(f"v{V_TB}", srd, so))
    return ops + [dma(f"v{V_L+j}", srd, so, 1024 * j, "nt" if (((OPT['ntq0'] or OPT['ntw0']) and n.startswith("WQ0")) or (OPT['ntt'] and n.startswith(("WO2", "WO3")))) else "", tag=n, slot=slot) for j in range(4)]
def wq_ops(r, p, slot): return w_ops(SWQ, f"WQ{r}_{p}", KPW[p >> 1], (p & 1) * 262144 + r * 512, slot)
def wo_ops(h4, nb, slot): return w_ops(SWO, f"WO{h4}_{nb}", KPW[nb], h4 * 128 * 1152, slot)
def kv_ops(kind, r, n_, slot):
    n = f"{kind}{r}_{n_}"
    va, vb, srd = (V_KA, V_KB, SK) if kind == 'K' else (V_VA, V_VB, SV)
    ops = [salu("s_add_u32", "m0", f"s{S_W4K}", lit(slot * SLOT)), salu("s_mov_b32", f"s{S_OFF}", lit((n_ & 1) * 8192 if OPT['fake'] in (1, 2) else r * 262144 + n_ * 8192))]
    if OPT['krot'] and OPT['fake'] not in (1, 2):
        ops = ops[:1] + [salu("s_add_u32", f"s{S_OFF}", "s98", lit(n_ * 8192)), salu("s_and_b32", f"s{S_OFF}", f"s{S_OFF}", "0x1ffff")]
        if r == 1 and n_ == 0: ops = [valu("v_add_u32", f"v{va}", "0x40000", f"v{va}"), valu("v_add_u32", f"v{vb}", "0x40000", f"v{vb}")] + ops
    return ops + [dma(f"v{va}", srd, f"s{S_OFF}", 0, NT, tag=n, slot=slot), dma(f"v{va}", srd, f"s{S_OFF}", 1024, NT, tag=n, slot=slot),
                  dma(f"v{vb}", srd, f"s{S_OFF}", 2048, NT, tag=n, slot=slot), dma(f"v{vb}", srd, f"s{S_OFF}", 3072, NT, tag=n, slot=slot)]
def set_L_wo():
    ops = [valu("v_mov_b32", f"v{V_L}", f"v{V_WO0}")] + [valu("v_add_u32", f"v{V_L+j}", str(8192 * j), f"v{V_WO0}") for j in (1, 2, 3)]
    for p in range(9):
        if OPT['fake'] > 1: ops.append(salu("s_mov_b32", f"s{KPW[p]}", str((p & 1) * 128))); continue
        ops.append(raw(f"s_add_u32 s{KPW[p]}, s41, {128*p}\ns_sub_u32 s{S_OFF}, s{KPW[p]}, 1152\ns_min_u32 s{KPW[p]}, s{KPW[p]}, s{S_OFF}", 'X', rd=["s41"], wr=[f"s{KPW[p]}", f"s{S_OFF}"]))
    return ops
def set_addr_o(w):
    return [valu("v_add_u32", f"v{AO[w]}", lit(WBASE[w]), f"v{V_AO0}"), valu("v_xor_b32", f"v{AO[w]+1}", "32", f"v{AO[w]}")]
def stamp_ops(k):
    if not OPT['stamp']: return []
    return [lambda p: p.wait_lgkm(0), raw("s_memrealtime s[74:75]", 'S'), raw("s_memtime s[76:77]", 'S'), raw("s_waitcnt lgkmcnt(0)", 'W'),
            raw(f"s_mov_b32 s{78+k}, s74", 'S'), raw(f"s_mov_b32 s{89+k}, s76", 'S')]
PRE = {"X0_0": 0, "WQ0_0": 6, "WQ0_1": 7, "X0_1": 1}
if OPT['two']: PRE = {"X0_0": 8, "WQ0_0": 6, "WQ0_1": 7, "X0_1": 9}
if OPT['up'] >= 3: PRE.update({"WQ0_2": 3, "WQ0_3": 4})

P0 = Prog(); E = P0.emit
E(raw("s_cmp_ge_u32 s2, 256", 'S')); E(raw("s_cbranch_scc1 L_end0", 'S'))
E(raw("s_load_dwordx16 s[80:95], s[0:1], 0", 'S'))
E(raw("s_load_dwordx4 s[96:99], s[0:1], 64", 'S'))
E(raw("s_load_dwordx4 s[68:71], s[0:1], 80", 'S'))
E(raw("s_load_dwordx2 s[72:73], s[0:1], 96", 'S'))
if OPT['stamp']: E(raw("s_memrealtime s[74:75]", 'S')); E(raw("s_memtime s[76:77]", 'S'))
E(valu("v_lshrrev_b32", "v1", "6", "v0")); E(valu("v_and_b32", "v0", "63", "v0"))
E(valu("v_readfirstlane_b32", f"s{S_W}", "v1"))
E(salu("s_and_b32", "s40", "s2", "7")); E(salu("s_lshr_b32", "s41", "s2", "3"))
E(salu("s_lshr_b32", "s42", "s40", "2")); E(salu("s_and_b32", "s43", "s40", "3"))
E(salu("s_lshr_b32", "s44", "s41", "1")); E(salu("s_and_b32", "s45", "s41", "1"))
E(salu("s_lshl_b32", "s46", "s43", "1")); E(salu("s_add_u32", "s46", "s46", "s45"))
E(salu("s_mul_i32", "s48", "s45", "5")); E(salu("s_add_u32", "s48", "s48", "s44"))
for _ in range(2):
    E(salu("s_sub_u32", "s49", "s48", "9")); E(raw("s_cmp_ge_u32 s48, 9", 'S')); E(raw("s_cselect_b32 s48, s49, s48", 'S', wr=["s48"]))
if not OPT['rot'] or OPT['fake'] > 1: E(salu("s_mov_b32", "s48", "0"))
E(salu("s_lshl_b32", f"s{KPW[0]}", "s48", "19")); E(salu("s_lshl_b32", f"s{KPX[0]}", "s48", "7"))
E(salu("s_lshl_b32", f"s{S_W4K}", f"s{S_W}", "12")); E(salu("s_mul_i32", f"s{S_W3K}", f"s{S_W}", "3072"))
T = V_S
i16, g4, r4, c4, i5, t0, t1, t2 = (f"v{T+k}" for k in range(8))
E(valu("v_lshrrev_b32", i5, "5", "v0")); E(valu("v_and_b32", t2, "7", "v0"))
E(salu("s_mul_i32", f"s{S_T0}", f"s{S_W}", "24"))
for j in range(3):
    E(valu("v_lshrrev_b32", t0, "3", "v0")); E(valu("v_add3_u32", t0, t0, f"s{S_T0}", str(8 * j)))
    E(valu("v_bfe_u32", t1, t0, "1", "3")); E(valu("v_xor_b32", t1, t1, t2))
    E(valu("v_mul_u32_u24", t0, "1152", t0)); E(valu("v_lshl_add_u32", f"v{V_T+j}", t1, "4", t0))
    if j: E(valu("v_subrev_u32", f"v{V_T+j}", str(1024 * j), f"v{V_T+j}"))
E(salu("s_lshl_b32", f"s{S_T0}", f"s{S_W}", "3"))
E(valu("v_add_u32", t0, f"s{S_T0}", i5)); E(valu("v_lshlrev_b32", t0, "13", t0))
E(valu("v_and_b32", t1, "31", "v0")); E(valu("v_lshlrev_b32", t2, "2", i5)); E(valu("v_xor_b32", t1, t1, t2))
E(valu("v_lshl_add_u32", f"v{V_L}", t1, "4", t0))
E(valu("v_xor_b32", f"v{V_L+1}", "0x80", f"v{V_L}")); E(valu("v_add_u32", f"v{V_L+2}", str(2 * 15360), f"v{V_L}"))
E(valu("v_add_u32", f"v{V_L+3}", str(3 * 15360), f"v{V_L+1}")); E(valu("v_add_u32", f"v{V_L+1}", str(15360), f"v{V_L+1}"))
if OPT['q0t']:
    E(valu("v_min_u32", t0, "23", "v0")); E(salu("s_mul_i32", f"s{S_T1}", f"s{S_W}", "24")); E(valu("v_add_u32", t0, f"s{S_T1}", t0)); E(valu("v_mul_u32_u24", f"v{V_TA}", "1152", t0))
    E(valu("v_bfe_u32", t0, "v0", "2", "3")); E(valu("v_add_u32", t0, f"s{S_T0}", t0)); E(valu("v_lshlrev_b32", t0, "13", t0))
    E(valu("v_and_b32", t1, "3", "v0")); E(valu("v_lshl_add_u32", f"v{V_TB}", t1, "7", t0))
E(salu("s_mul_i32", f"s{S_T0}", "s44", "110592")); E(salu("s_lshl_b32", f"s{S_T1}", "s46", "10"))
E(salu("s_mov_b32", "s26", lit(110592))); E(salu("s_mov_b32", "s27", "0x20000"))
E(salu("s_sub_u32", "s18", lit(576 * 8192), f"s{S_T1}")); E(salu("s_mov_b32", "s19", "0x20000"))
E(raw("s_waitcnt lgkmcnt(0)", 'W'))
E(raw("s_cmp_eq_u32 s42, 0", 'S'))
for (d, a, b) in [(24, 80, 90), (16, 86, 96), (8, 82, 92), (12, 84, 94), (20, 88, 98)]:
    E(raw(f"s_cselect_b64 s[{d}:{d+1}], s[{a}:{a+1}], s[{b}:{b+1}]", 'S', wr=[f"s[{d}:{d+1}]"]))
if OPT['stamp']: E(raw("s_mov_b32 s78, s74", 'S')); E(raw("s_mov_b32 s89, s76", 'S'))
def srd_base(E, d, off_s):
    E(salu("s_add_u32", f"s{d}", f"s{d}", off_s)); E(salu("s_addc_u32", f"s{d+1}", f"s{d+1}", "0")); E(salu("s_and_b32", f"s{d+1}", f"s{d+1}", "0xffff"))
def srd_finish(E, d, off_s, size):
    srd_base(E, d, off_s); E(salu("s_mov_b32", f"s{d+2}", lit(size))); E(salu("s_mov_b32", f"s{d+3}", "0x20000"))
srd_base(E, 24, f"s{S_T0}"); E(x_ops("X0_0", 0, PRE["X0_0"]))
srd_base(E, 16, f"s{S_T1}"); E(wq_ops(0, 0, PRE["WQ0_0"]))
if OPT['up'] >= 1: E(wq_ops(0, 1, PRE["WQ0_1"]))
if OPT['up'] >= 2:
    E(salu("s_add_u32", f"s{KPX[1]}", f"s{KPX[0]}", "128")); E(salu("s_sub_u32", "s49", f"s{KPX[1]}", "1152")); E(salu("s_min_u32", f"s{KPX[1]}", f"s{KPX[1]}", "s49"))
    E(x_ops("X0_1", 1, PRE["X0_1"]))
if OPT['cpf']:
    E(raw("s_getpc_b64 s[28:29]", 'S', wr=["s[28:29]"])); E(raw("L_pc0:", 'X'))
    E(salu("s_and_b32", "s29", "s29", "0xffff")); E(raw("s_mov_b32 s30, L_codeend-L_pc0", 'S', wr=["s30"])); E(salu("s_mov_b32", "s31", "0x20000"))
    E(salu("s_lshl_b32", "s47", "s41", "2")); E(salu("s_add_u32", "s47", "s47", f"s{S_W}")); E(salu("s_mul_i32", "s47", "s47", "1408" if OPT['two'] else "640"))
    E(valu("v_min_u32", "v2", "10" if OPT['two'] else "4", "v0")); E(valu("v_lshlrev_b32", "v2", "7", "v2"))
    E(raw(f"buffer_load_dword v{V_NM+2}, v2, s[28:31], s47 offen", 'D', rd=["v2", "s[28:31]", "s47"], wr=[f"v{V_NM+2}"], tag="pf"))
E(salu("s_lshr_b32", f"s{S_HD}", f"s{S_W}", "1")); E(salu("s_and_b32", f"s{S_QH}", f"s{S_W}", "1"))
E(salu("s_sub_u32", "s49", "s44", "9")); E(salu("s_min_u32", "s41", "s44", "s49")); E(salu("s_lshl_b32", "s41", "s41", "7"))
if not OPT['rot']: E(salu("s_mov_b32", "s41", "0"))
for p in range(1, 9):
    if OPT['fake'] > 1: E(salu("s_mov_b32", "s48", str(p & 1)))
    else:
        E(salu("s_add_u32", "s48", "s48", "1")); E(raw("s_cmp_eq_u32 s48, 9", 'S')); E(raw("s_cselect_b32 s48, 0, s48", 'S', wr=["s48"]))
    E(salu("s_lshl_b32", f"s{KPW[p]}", "s48", "19")); E(salu("s_lshl_b32", f"s{KPX[p]}", "s48", "7"))
E(valu("v_and_b32", i16, "15", "v0")); E(valu("v_lshrrev_b32", g4, "4", "v0"))
E(valu("v_bfe_u32", r4, "v0", "2", "2")); E(valu("v_and_b32", c4, "3", "v0"))
E(valu("v_lshl_add_u32", t0, g4, "3", r4)); E(valu("v_lshlrev_b32", t0, "9", t0))
E(valu("v_lshl_add_u32", t1, r4, "2", c4)); E(valu("v_lshl_add_u32", t0, t1, "4", t0))
E(salu("s_lshl_b32", f"s{S_T0}", f"s{S_HD}", "8")); E(valu("v_add_u32", t0, f"s{S_T0}", t0))
for w in (2, 1):
    E(valu("v_add_u32", f"v{AW[w]}", lit(WBASE[w]), t0))
    for k in (1, 2, 3): E(valu("v_xor_b32", f"v{AW[w]+k}", str(k << 6), f"v{AW[w]}"))
E(salu("s_mul_i32", f"s{S_T0}", f"s{S_QH}", str(48 * 128)))
E(valu("v_lshlrev_b32", t0, "7", i16)); E(valu("v_add_u32", t0, f"s{S_T0}", t0))
E(valu("v_lshrrev_b32", t1, "1", i16)); E(valu("v_xor_b32", t1, t1, g4)); E(valu("v_lshl_add_u32", f"v{AX[0]}", t1, "4", t0))
E(valu("v_xor_b32", f"v{AX[0]+1}", "64", f"v{AX[0]}"))
E(valu("v_add_u32", f"v{AX[2]}", lit(WBASE[2]), f"v{AX[0]}")); E(valu("v_add_u32", f"v{AX[2]+1}", lit(WBASE[2]), f"v{AX[0]+1}"))
E(salu("s_lshl_b32", f"s{S_T0}", "s44", "22")); E(salu("s_lshl_b32", f"s{S_T1}", "s46", "19")); E(salu("s_add_u32", f"s{S_T0}", f"s{S_T0}", f"s{S_T1}"))
if OPT['fake'] in (1, 2): E(salu("s_mov_b32", f"s{S_T0}", "0"))
srd_finish(E, 8, f"s{S_T0}", 524288); srd_finish(E, 12, f"s{S_T0}", 524288)
E(salu("s_mul_i32", f"s{S_T0}", "s46", str(512 * 1152))); srd_finish(E, 20, f"s{S_T0}", 512 * 1152)
E(salu("s_lshl_b32", "s40", "s42", "4")); E(salu("s_add_u32", "s40", "s40", "s44"))
E(salu("s_mul_i32", f"s{S_T0}", "s40", str(8 * 108 * 1024 + 1024)))
E(raw("s_mov_b64 s[28:29], s[72:73]", 'S', wr=["s[28:29]"], rd=["s[28:29]"])); srd_finish(E, 28, f"s{S_T0}", 8 * 108 * 1024 + 1024)
E(salu("s_lshr_b32", "s49", "s2", "3")); E(salu("s_and_b32", "s49", "s49", "7")); E(salu("s_lshl_b32", "s100", f"s{S_W}", "8")); E(salu("s_add_u32", "s100", "s100", "s49"))
E(salu("s_lshl_b32", "s98", "s46", "1")); E(salu("s_add_u32", "s98", "s98", "s44")); E(salu("s_and_b32", "s98", "s98", "15")); E(salu("s_lshl_b32", "s98", "s98", "13"))
E(salu("s_lshl_b32", "s101", "s46", "3")); E(salu("s_add_u32", "s101", "s101", lit(8 * 108 * 1024)))
E(salu("s_mul_i32", "s47", "s46", str(108 * 1024))); E(salu("s_add_u32", "s47", "s47", f"s{S_W3K}"))
E(salu("s_mov_b32", f"s{S_C}", hex(cval))); E(salu("s_mov_b32", f"s{S_C+1}", hex(cval)))
E(salu("s_lshl_b32", f"s{S_T0}", f"s{S_W}", "3"))
E(valu("v_add_u32", t0, f"s{S_T0}", g4)); E(valu("v_lshlrev_b32", t0, "8", t0))
E(salu("s_lshl_b32", f"s{S_T1}", f"s{S_W}", "2"))
E(valu("v_or_b32", t1, f"s{S_T1}", g4)); E(valu("v_xor_b32", t1, t1, i16))
E(valu("v_lshl_add_u32", f"v{V_KA}", t1, "4", t0)); E(valu("v_add_u32", f"v{V_KB}", str(131072 - 2048), f"v{V_KA}"))
E(salu("s_lshl_b32", f"s{S_T1}", f"s{S_QH}", "2"))
E(valu("v_or_b32", t1, f"s{S_T1}", g4)); E(valu("v_lshlrev_b32", t1, "1", t1)); E(valu("v_xor_b32", t1, t1, i16))
E(valu("v_lshl_add_u32", f"v{V_VA}", t1, "4", t0)); E(valu("v_add_u32", f"v{V_VB}", str(131072 - 2048), f"v{V_VA}"))
E(salu("s_lshl_b32", f"s{S_T0}", f"s{S_W}", "5"))
E(valu("v_lshrrev_b32", t0, "3", "v0")); E(valu("v_add_u32", t0, f"s{S_T0}", t0)); E(valu("v_mul_u32_u24", t0, "1152", t0))
E(valu("v_lshlrev_b32", t1, "1", g4)); E(valu("v_and_b32", t2, "7", "v0")); E(valu("v_xor_b32", t1, t1, t2))
E(valu("v_lshl_add_u32", f"v{V_WO0}", t1, "4", t0))
E(salu("s_lshl_b32", f"s{S_T0}", f"s{S_HD}", "11"))
E(valu("v_lshrrev_b32", t0, "2", i16)); E(valu("v_lshlrev_b32", t0, "12", t0)); E(valu("v_add_u32", t0, f"s{S_T0}", t0))
E(valu("v_lshl_add_u32", t0, c4, "8", t0))
E(valu("v_xor_b32", t1, g4, i16)); E(valu("v_lshl_add_u32", f"v{V_AK}", t1, "4", t0))
for ks in (1, 2, 3): E(valu("v_xor_b32", f"v{V_AK+ks}", str(ks << 6), f"v{V_AK}"))
E(valu("v_lshlrev_b32", t0, "12", g4)); E(valu("v_add_u32", t0, f"s{S_T0}", t0)); E(valu("v_lshl_add_u32", t0, r4, "8", t0))
E(valu("v_lshl_add_u32", t0, c4, "3", t0))
E(valu("v_and_b32", t1, "1", g4)); E(valu("v_lshl_or_b32", t1, t1, "2", r4))
E(valu("v_lshl_add_u32", t0, t1, "5", t0)); E(valu("v_add_u32", f"v{V_AV}", lit(WBASE[1]), t0))
for dt in range(1, 8): E(valu("v_xor_b32", f"v{V_AV+dt}", str(dt << 5), f"v{V_AV}"))
E(valu("v_lshl_add_u32", t0, g4, "2", r4)); E(valu("v_bfe_u32", t1, t0, "1", "2"))
E(salu("s_lshl_b32", f"s{S_T0}", f"s{S_HD}", "1")); E(valu("v_xor_b32", t1, f"s{S_T0}", t1))
E(valu("v_lshlrev_b32", t0, "7", t0)); E(valu("v_lshl_add_u32", t0, t1, "5", t0)); E(valu("v_lshl_add_u32", f"v{V_AO0}", c4, "3", t0))
E(valu("v_mov_b32", t0, "0x3f803f80"))
for k in range(4): E(valu("v_accvgpr_write_b32", f"a{A_ONE+k}", t0))
if OPT['up'] < 1: E(wq_ops(0, 1, PRE["WQ0_1"]))
if OPT['up'] < 2: E(x_ops("X0_1", 1, PRE["X0_1"]))
if OPT['up'] >= 3: E(wq_ops(0, 2, PRE["WQ0_2"])); E(wq_ops(0, 3, PRE["WQ0_3"]))
if OPT['two']:
    E(salu("s_and_b32", "s49", "s44", str(OPT['popm']))); E(raw(f"s_cmp_eq_u32 s49, {OPT['popm']}", 'S')); E(raw("s_cbranch_scc1 L_progB", 'S'))

def hcheck():
    return [raw(f"s_cmp_lg_u32 s{S_W}, 0", 'S'), raw("s_cbranch_scc1 L_hok", 'S'),
            salu("s_mov_b32", "s48", "s70"), salu("s_and_b32", "s49", "s71", "0xffff"), salu("s_mov_b32", "s50", "256"), salu("s_mov_b32", "s51", "0x20000"),
            salu("s_lshl_b32", f"s{S_T0}", "s40", "3"), salu("s_mov_b32", f"s{S_T1}", "0"), valu("v_mov_b32", f"v{V_TB}", "0"),
            raw("L_hp:", 'X'),
            raw(f"v_readfirstlane_b32 s100, v{V_H+7}", 'S'), raw(f"s_add_u32 s{S_T1}, s{S_T1}, 1", 'S'), raw("s_nop 1", 'W'),
            raw("s_cmp_ge_u32 s100, 8", 'S'), raw("s_cbranch_scc1 L_hok", 'S'), raw("s_sleep 16", 'S'),
            raw(f"buffer_load_dword v{V_H+7}, v{V_TB}, s[48:51], s{S_T0} offen sc1", 'S'), raw("s_waitcnt vmcnt(0)", 'S'),
            raw(f"s_cmp_lt_u32 s{S_T1}, 0x400000", 'S'), raw("s_cbranch_scc1 L_hp", 'S'),
            raw("L_hok:", 'X')]
def cat(op): return 'X' if callable(op) else op.kind
class Build:
    def __init__(s, alloc):
        s.alloc = alloc
        s.P = Prog(); s.P.vm = list(P0.vm)
        s.MF = []; s.FL = []; s.frags = []; s.bar_req = []; s.tiles = []; s.issued = set(PRE)
        s.nst = 1; s.late = []; s.xneed = {}; s.win_after = []
        s.KT = {r: [s.fixed(f"K{r}_{n}", (16 * r + n) % 3, lambda sl, r=r, n=n: kv_ops('K', r, n, sl)) for n in range(16)] for r in (0, 1)}
        s.VT = {r: [s.fixed(f"V{r}_{n}", 3 + (16 * r + n) % 3, lambda sl, r=r, n=n: kv_ops('V', r, n, sl)) for n in range(16)] for r in (0, 1)}
        s.pending_st = []
        for i, t in enumerate([s.KT[0][0], s.KT[0][1], s.VT[0][0], s.KT[0][2], s.VT[0][1], s.VT[0][2]][:OPT['early']]): t.want_issue = OPT['e0'] + i * OPT['estep']
    def fixed(s, name, slot, mk, lead=None):
        t = Tile(name, slot, mk(slot), lead=OPT['leadh'] if lead is None else lead); s.tiles.append(t); return t
    def free(s, name, cands, mk):
        sl = PRE.get(name, s.alloc.get(name, cands[0]))
        t = Tile(name, sl, mk(sl), cands=None if name in PRE else cands, lead=0); s.tiles.append(t); return t
    def g(s): return len(s.MF) - 1
    def fill(s, ops, e, d, want=None, after=(), name=""):
        f = Fill(ops, e, max(d, e), want=want, after=[a for a in after if a is not None], name=name); s.FL.append(f); return f
    def chain(s, ops, e, d, want0=None, step=0.5, after=(), name=""):
        prev = list(after); f = None
        for k, op in enumerate(ops):
            f = s.fill(op, e, d, want=(e if want0 is None else want0) + k * step, after=prev, name=name); prev = [f]
        return f
    def forced(s, ops, gap=None, name="", after=()):
        gg = s.g() if gap is None else gap
        f = Fill(ops, gg, gg, want=-10**9 + len(s.FL), after=after, name=name); f.excl = False; s.FL.append(f); return f
    def stamp(s):
        if OPT.get('at'): return
        if OPT['stamp']: s.forced(stamp_ops(s.nst), name="stamp")
        s.nst += 1
    def add_frag(s, tile, mk_reads, mk_mfmas, after=None):
        f = len(s.frags); base = A_FR + 4 * (f % NFR)
        u0 = len(s.MF); s.MF.extend(mk_mfmas(R('a', base, 4))); u1 = len(s.MF) - 1
        s.frags.append(dict(reads=mk_reads(base), u0=u0, u1=u1, tile=tile, after=after))
        tile.last_use = u1
        if tile.first_need is None: tile.first_need = u0
    def want_bar(s, tiles): s.bar_req.append([len(s.MF), list(tiles)]); return len(s.bar_req) - 1
    def q_frag(s, T_, dt, acc, xr, first):
        w, ib = win(T_.slot); ksp, odd = dt >> 1, dt & 1
        s.add_frag(T_, lambda b: [ds_read("ds_read_b64_tr_b16", R('a', b + 2 * hf, 2), f"v{AW[w]+ksp}", ib + hf * 2048 + odd * 8, slot=T_.slot) for hf in range(2)],
                   lambda a: [mfma(acc(dt, qt), a, R('a', xr + 4 * qt, 4), "0" if first else acc(dt, qt)) for qt in range(3)])
    def x_reads(s, X_, regs, e_list, need_list):
        X_.last_use = max(need_list) + 2
        def mk():
            b = s.tile_bar[X_.name]; w, ib = win(X_.slot); k = 0
            for ksl in range(2):
                for qt in range(3):
                    op = ds_read("ds_read_b128", R('a', regs[ksl] + 4 * qt, 4), f"v{AX[w]+ksl}", ib + qt * 2048, slot=X_.slot)
                    s.xneed[id(op)] = need_list[ksl]
                    e = max(b.earliest, e_list[ksl])
                    s.fill(op, e, need_list[ksl] - 1, want=max(e - 2, min(need_list[ksl] - LA - 6, e + 4)) + k * 0.7, after=[b], name="xrd"); k += 1
        s.late.append(mk)
    def conv(s, even, odd, scale, dst=None, pk=False):
        dst = even if dst is None else dst
        if pk: ops = [valu("v_pk_mul_f32", R('v', b, 2), R('v', b, 2), scale, extra="" if scale[0] == 's' else " op_sel_hi:[1,0]") for b in (even, even + 2, odd, odd + 2)]
        else:
            sc = scale[0] + scale[2:].split(':')[0]
            ops = [valu("v_mul_f32", f"v{b+k}", sc, f"v{b+k}") for b in (even, odd) for k in range(4)]
        ops += [valu("v_cvt_pk_bf16_f32", f"v{dst}", f"v{even}", f"v{even+1}"), valu("v_cvt_pk_bf16_f32", f"v{dst+1}", f"v{even+2}", f"v{even+3}"),
                valu("v_cvt_pk_bf16_f32", f"v{dst+2}", f"v{odd}", f"v{odd+1}"), valu("v_cvt_pk_bf16_f32", f"v{dst+3}", f"v{odd+2}", f"v{odd+3}")]
        return ops
    def k_frag(s, r, n, t, ks, dst, cinit):
        T_ = s.KT[r][n]
        s.add_frag(T_, lambda b: [ds_read("ds_read_b128", R('a', b, 4), f"v{V_AK+ks}", T_.slot * SLOT + t * 1024, slot=T_.slot)],
                   lambda a: [mfma(R('v', dst(qt), 4), a, QF(ks, qt), cinit if ks == 0 else R('v', dst(qt), 4)) for qt in range(3)])
    def m0(s, r, after=()):
        bi = s.want_bar([s.KT[r][0]])
        for ks in range(4): s.k_frag(r, 0, 0, ks, lambda qt: Sreg(1, 0, qt), "0")
        x = Sreg(1, 0, 0); a, b = f"v{x}", f"v{x+1}"
        ops = [valu("v_max3_f32", a, a, b, f"v{x+2}"), valu("v_max3_f32", f"v{x+3}", f"v{x+3}", f"v{x+4}", f"v{x+5}"), valu("v_max3_f32", f"v{x+6}", f"v{x+6}", f"v{x+7}", f"v{x+8}"),
               valu("v_max3_f32", f"v{x+9}", f"v{x+9}", f"v{x+10}", f"v{x+11}"), valu("v_max3_f32", a, a, f"v{x+3}", f"v{x+6}"), valu("v_max_f32", a, a, f"v{x+9}"),
               valu("v_mov_b32", b, a), valu("v_permlane16_swap_b32", a, b), valu("v_max_f32", a, a, b), valu("v_mov_b32", b, a),
               valu("v_permlane32_swap_b32", a, b), valu("v_max_f32", a, a, b)] + [valu("v_sub_f32", f"v{V_NM+k}", "0", a) for k in range(4)]
        f = s.forced(ops, name="m0v", after=after); f.want = 10**7
        return bi
    def phase_a(s, r, lwork, haslw):
        done_at = {}; info = {'bar': [], 'step0': []}
        def qk(n):
            for t in range(2):
                for ks in range(4): s.k_frag(r, n, t, ks, lambda qt: Sreg(n & 1, t, qt), NMR)
                for qt in range(3): done_at[(n, t, qt)] = len(s.MF) - 3 + qt
        qk(0)
        for n in range(16):
            if OPT['ptb'] and n < 15:
                bi = s.want_bar([s.KT[r][n + 1]])
            else: bi = s.want_bar(([s.KT[r][n + 1]] if n < 15 else []) + [s.VT[r][n]])
            info['bar'].append(bi); info['step0'].append(len(s.MF))
            if n < 15: qk(n + 1)
            if OPT['ptb'] and n < 15: s.want_bar([s.VT[r][n]]); s.bar_req[-1][0] += 3
            pv0 = len(s.MF); k = 0
            for t in range(2):
                for qt in range(3):
                    sr = Sreg(n & 1, t, qt); ef = []; e = done_at[(n, t, qt)] + 4
                    for c in range(4):
                        w = e + k * 0.01; k += 1
                        ef.append(s.fill(valu("v_exp_f32", f"v{sr+c}", f"v{sr+c}"), e, pv0 - 2, want=w, name="exp"))
                        if c & 1:
                            s.fill(valu("v_cvt_pk_bf16_f32", f"v{Preg(n&1,qt)+2*t+(c>>1)}", f"v{sr+c-1}", f"v{sr+c}"), e, pv0 - 1, want=w, after=ef[-2:], name="cvt")
            for qt in range(3):
                l = R('a', A_L + 4 * qt, 4)
                s.MF.append(mfma(l, R('a', A_ONE, 4), R('v', Preg(n & 1, qt), 4), "0" if n == 0 else l))
            T_ = s.VT[r][n]
            for dt in range(8):
                s.add_frag(T_, lambda b: [ds_read("ds_read_b64_tr_b16", R('a', b + 2 * t, 2), f"v{V_AV+dt}", (T_.slot - 3) * SLOT + t * 1024, slot=T_.slot) for t in range(2)],
                           lambda a: [mfma(R('v', Oacc(dt, qt), 4), a, R('v', Preg(n & 1, qt), 4), "0" if n == 0 else R('v', Oacc(dt, qt), 4)) for qt in range(3)])
                info[dt] = s.g()
            if n == 0: info['pv_first'] = pv0
            info['pv_last'] = pv0; info['pv_end'] = s.g()
            if OPT['ptb'] and haslw(n): bi = s.want_bar([])
            lwork(n, bi)
        return info
    def o_finish(s, r, info, dl):
        pv0 = info['pv_last']; ta, tb = f"v{V_NM+1}", f"v{V_NM+3}"
        ops = [valu("v_accvgpr_read_b32", f"v{RL[qt]}", f"a{A_L+4*qt}") for qt in range(3)]
        if OPT['slow']:
            lab = f"L_ok{r}"
            ops += [valu("v_add_f32", ta, f"v{RL[0]}", f"v{RL[1]}"), valu("v_min3_f32", tb, f"v{RL[0]}", f"v{RL[1]}", f"v{RL[2]}"), valu("v_add_f32", ta, ta, f"v{RL[2]}"),
                    salu("s_mov_b32", "s48", "0x5d800000" if not OPT['forceslow'] else "0"), salu("s_mov_b32", "s49", "0x21800000"),
                    raw(f"v_cmp_nge_f32 vcc, s48, {ta}", 'V', rd=[ta, "s48"], wr=['vcc']),
                    raw(f"v_cmp_nle_f32 s[50:51], s49, {tb}", 'V', rd=[tb, "s49"], wr=['s[50:51]']),
                    raw("s_nop 1", 'W'), raw("s_or_b64 vcc, vcc, s[50:51]", 'S'),
                    raw(f"s_cbranch_vccz {lab}", 'S', rd=['vcc']),
                    salu("s_mov_b32", "s48", lit(r * 262144)),
                    raw(f"s_getpc_b64 {S_RET}", 'S'), raw("s_add_u32 s6, s6, 12", 'S'), raw("s_addc_u32 s7, s7, 0", 'S'), raw("s_branch L_slow", 'S'),
                    raw(f"{lab}:", 'X')]
        chk = s.forced(ops, gap=pv0 + 5, name="lchk")
        rc = s.chain([valu("v_rcp_f32", f"v{RL[qt]}", f"v{RL[qt]}") for qt in range(3)], pv0 + 5, pv0 + 9, after=[chk], name="rcp")
        last = {}
        for ks in range(4):
            for qt in range(3):
                e = min(info[2 * ks + 1] + 3, dl(ks, qt))
                last[(ks, qt)] = s.chain(s.conv(Oacc(2 * ks, qt), Oacc(2 * ks + 1, qt), R('v', RL[qt], 2)), e, dl(ks, qt), want0=e + (ks * 3 + qt) * 0.01, step=0.5, after=[rc], name="ocv")
        return last
    def xaddr(s, e, stride):
        return s.chain([valu("v_lshlrev_b32", f"v{V_T}", "4", "v0"), salu("s_mul_i32", f"s{S_T1}", f"s{S_W}", str(stride)),
                        valu("v_add_u32", f"v{V_T+1}", f"s{S_T1}", f"v{V_T}"), salu("s_mul_i32", f"s{S_T1}", f"s{S_QH}", str(stride)),
                        valu("v_add_u32", f"v{V_T+2}", f"s{S_T1}", f"v{V_T}")], e, e + 8, name="xpre")
    def xround(s, name, fr, slots, stride, last, pre, bar_w, bar_pub, dst, rdead, addr_bias=0):
        res = [s.fixed(f"{name}_{sl}", sl, lambda sl: [], lead=0) for sl in slots]
        for t in res:
            t.first_need = s.bar_req[bar_w][0]; t.last_use = rdead + 1; t.scratch = bar_w
            s.issued.add(t.name)
        base = slots[0] * SLOT - addr_bias
        out = {}
        def mk():
            bw, bp = s.barfill[bar_w], s.barfill[bar_pub]
            for i, (ks, qt) in enumerate(fr):
                lf = last[(ks, qt)]
                op = ds_write("ds_write_b128", f"v{V_T+1}", R('v', Oacc(2 * ks, qt), 4), base + i * 1024); op.note = tuple(slots)
                w_ = s.fill(op, max(lf.earliest, bw.earliest), bp.earliest, want=max(lf.want, bw.earliest) + 0.1 + i * 0.01, after=[lf, pre, bw], name="xw")
                bp.after.append(w_)
            k = 0
            for i, (ks, qt) in enumerate(fr):
                for hh in range(2):
                    op = ds_read("ds_read_b128", dst(hh, ks, qt), f"v{V_T+2}", base + hh * 2 * stride + i * 1024, slot=('X',) + tuple(slots))
                    out[(hh, ks, qt)] = s.fill(op, bp.earliest, rdead, want=bp.earliest + 1 + k * 1.5, after=[bp], name="xr"); k += 1
        s.late.append(mk)
        return out
    def o_tile(s, T_, bfr, accr, first):
        w, ib = win(T_.slot)
        for ks in range(4):
            for ntl in range(2):
                s.add_frag(T_, lambda b: [ds_read("ds_read_b64_tr_b16", R('a', b + 2 * hf, 2), f"v{AO[w]+ntl}", ib + ks * 4096 + hf * 2048, slot=T_.slot) for hf in range(2)],
                           lambda a: [mfma(accr(ntl, qt), a, bfr(ks, qt), "0" if (first and ks == 0) else accr(ntl, qt)) for qt in range(3)], after=('O', w))
    def store_ops(s, src0, src1, tmp, c, qt, from_acc):
        ops = []
        if from_acc:
            for k in range(4): ops.append(valu("v_accvgpr_read_b32", f"v{tmp+k}", f"a{src0+k}"))
            for k in range(4): ops.append(valu("v_accvgpr_read_b32", f"v{tmp+4+k}", f"a{src1+k}"))
            src0, src1 = tmp, tmp + 4
        d = src0
        ops += [valu("v_cvt_pk_bf16_f32", f"v{d}", f"v{src0}", f"v{src0+1}"), valu("v_cvt_pk_bf16_f32", f"v{d+1}", f"v{src0+2}", f"v{src0+3}"),
                valu("v_cvt_pk_bf16_f32", f"v{d+2}", f"v{src1}", f"v{src1+1}"), valu("v_cvt_pk_bf16_f32", f"v{d+3}", f"v{src1+2}", f"v{src1+3}")]
        if qt == 0: ops += [salu("s_add_u32", f"s{S_ST}", "s47", lit(c * 12288))]
        ops += [raw(f"buffer_store_dwordx4 v[{d}:{d+3}], v{V_T}, {SWS}, s{S_ST} offen offset:{qt*1024}" + ["", " sc1", " sc0 sc1", " sc1 nt", " nt", " sc0 sc1 nt"][OPT['stf']], 'D', rd=[f"v[{d}:{d+3}]", f"v{V_T}", SWS, f"s{S_ST}"], tag="stA" if c <= 5 else "st", wide_store=True)]
        if OPT['nost']: ops = ops[:-1]
        return ops
    def pfpair(s, kind, e, dreg):
        tmp, dst = f"v{V_H+6}", f"v{V_NM+0}"
        tmp = f"v{V_H+6}"
        if kind == 'q':
            t2_ = f"v{V_NM+3}"
            ops = [valu("v_min_u32", tmp, "35", "v0"), valu("v_lshrrev_b32", t2_, "2", tmp),
                   salu("s_mul_i32", f"s{S_T0}", "s44", "36"), salu("s_mul_i32", f"s{S_T1}", f"s{S_W}", "9"), salu("s_add_u32", f"s{S_T0}", f"s{S_T0}", f"s{S_T1}"),
                   valu("v_add_u32", t2_, f"s{S_T0}", t2_), valu("v_lshlrev_b32", t2_, "13", t2_),
                   valu("v_and_b32", tmp, "3", tmp), valu("v_lshl_add_u32", tmp, tmp, "7", t2_)]
            srd, off = SWQ, 512
        else:
            ops = [valu("v_min_u32", tmp, "35", "v0"),
                   salu("s_mul_i32", f"s{S_T0}", "s44", "144"), salu("s_mul_i32", f"s{S_T1}", f"s{S_W}", "36"), salu("s_add_u32", f"s{S_T0}", f"s{S_T0}", f"s{S_T1}"),
                   salu("s_add_u32", f"s{S_T0}", f"s{S_T0}", str(kind * 2304)), valu("v_add_u32", tmp, f"s{S_T0}", tmp), valu("v_lshlrev_b32", tmp, "7", tmp)]
            srd, off = SWO, 0
        ops += [raw(f"buffer_load_dword v{dreg}, {tmp}, {srd}, 0 offen offset:{off}" + (" sc1 nt" if OPT['pfsc'] else " nt"), 'D', rd=[tmp, srd], wr=[], tag="pf"),
                raw(f"buffer_load_dword v{dreg}, {tmp}, {srd}, 0 offen offset:{off}" + (" sc1" if OPT['pfsc'] else ""), 'D', rd=[tmp, srd], wr=[f"v{dreg}"], tag="pf")]
        s.forced(ops, gap=e, name="pf")
    def build(s, dry=False):
        LHI = [6, 7, 8, 9]
        accq = lambda dt, qt: R('v', QaccQS(dt, qt), 4)
        W0 = [s.free(f"WQ0_{p}", [3, 4, 5, 6, 7, 8, 9], lambda sl, p=p: wq_ops(0, p, sl)) for p in range(18)]
        X0 = [s.free(f"X0_{i}", [0, 1, 2, 6, 7, 8, 9], lambda sl, i=i: x_ops(f"X0_{i}", i, sl)) for i in range(9)]
        done = {}
        for p in range(16):
            u = len(s.MF)
            s.want_bar([W0[p]] + ([X0[p // 2]] if p % 2 == 0 else []))
            if p % 2 == 0:
                X0[p // 2].first_need = u - 0.5; s.x_reads(X0[p // 2], [XFr(p, 0), XFr(p + 1, 0)], [-1, -1], [u, u + 24])
            if OPT['pfw'] and p >= OPT['pft0'] and (p - OPT['pft0']) % OPT['pfd'] == 0 and (p - OPT['pft0']) // OPT['pfd'] < 3:
                k_ = (p - OPT['pft0']) // OPT['pfd']; tmp, dst = f"v{V_TA}", f"v{V_TB}"
                if k_ == 0:
                    ops = [valu("v_min_u32", tmp, "35", "v0"), valu("v_lshrrev_b32", dst, "2", tmp),
                           salu("s_mul_i32", f"s{S_T0}", "s44", "36"), salu("s_mul_i32", f"s{S_T1}", f"s{S_W}", "9"), salu("s_add_u32", f"s{S_T0}", f"s{S_T0}", f"s{S_T1}"),
                           valu("v_add_u32", dst, f"s{S_T0}", dst), valu("v_lshlrev_b32", dst, "13", dst),
                           valu("v_and_b32", tmp, "3", tmp), valu("v_lshl_add_u32", tmp, tmp, "7", dst),
                           raw(f"buffer_load_dword v{V_H+7}, {tmp}, {SWQ}, 0 offen offset:512 nt", 'D', rd=[tmp, SWQ], wr=[], tag="pf")]
                else:
                    ops = [valu("v_min_u32", tmp, "35", "v0"),
                           salu("s_mul_i32", f"s{S_T0}", "s44", "144"), salu("s_mul_i32", f"s{S_T1}", f"s{S_W}", "36"), salu("s_add_u32", f"s{S_T0}", f"s{S_T0}", f"s{S_T1}"),
                           salu("s_add_u32", f"s{S_T0}", f"s{S_T0}", str((k_ - 1) * 2304)), valu("v_add_u32", tmp, f"s{S_T0}", tmp), valu("v_lshlrev_b32", tmp, "7", tmp),
                           raw(f"buffer_load_dword v{V_H+7}, {tmp}, {SWO}, 0 offen nt", 'D', rd=[tmp, SWO], wr=[], tag="pf")]
                s.chain(ops, u, u + 20, step=1.5, name="pf")
            if OPT['pf2'] & 1 and p == OPT['pfa']: s.pfpair('q', u + 3, V_NM + 1)
            for dt in range(8): s.q_frag(W0[p], dt, accq, XFr(p, 0), p == 0)
        u = len(s.MF); s.want_bar([W0[16], W0[17], X0[8]]); X0[8].first_need = u - 0.5
        s.x_reads(X0[8], [XFr(16, 0), XFr(17, 0)], [-1, -1], [u, u + 3])
        for dt in range(8):
            s.q_frag(W0[16], dt, accq, XFr(16, 0), False); s.q_frag(W0[17], dt, accq, XFr(17, 0), False); done[dt] = s.g()
        gq = s.g()
        for ks in range(4):
            for qt in range(3):
                pk = ks * 3 + qt >= OPT['npl0']
                e = gq if pk else min(done[2 * ks + 1] + 3, gq)
                s.chain(s.conv(QaccQS(2 * ks, qt), QaccQS(2 * ks + 1, qt), f"s[{S_C}:{S_C+1}]", pk=pk), e, gq, want0=e + (ks * 3 + qt) * 0.01, name="qcv")
        s.stamp()
        s.m0(0)
        order = list(range(8, 18)) + list(range(0, 8))
        xreg = {p: XFr(p, 0) for p in range(8, 18)}; xreg.update({p: XFr(8 + p, 0) for p in range(8)})
        acc1 = lambda dt, qt: R('a', 4 * (dt * 3 + qt), 4)
        W1 = {p: s.free(f"WQ1_{p}", LHI, lambda sl, p=p: wq_ops(1, p, sl)) if p not in (4, 5, 6, 7) else s.fixed(f"WQ1_{p}", {4: 8, 5: 9, 6: 6, 7: 7}[p], lambda sl, p=p: wq_ops(1, p, sl), lead=70) for p in order}
        X1 = [s.free(f"X1_{i}", LHI, lambda sl, i=i: x_ops(f"X1_{i}", i, sl)) for i in range(4)]
        lend = {}; lstart = {}
        def dbgsrd(): return [salu("s_mov_b32", "s48", "s70"), salu("s_and_b32", "s49", "s71", "0xffff"), salu("s_mov_b32", "s50", "256"), salu("s_mov_b32", "s51", "0x20000"),
                             salu("s_lshl_b32", f"s{S_T0}", "s40", "3")]
        def site(k, lab, ops):
            s.forced([raw(f"s_cmp_lg_u32 s100, {k}", 'S'), raw(f"s_cbranch_scc1 {lab}", 'S')] + ops + [raw(f"{lab}:", 'X')], name="site")
        def lw0(n, bi):
            if OPT['pf2'] & 2 and n == OPT['pfb'] + 5: s.pfpair(0, s.g() - 8, V_TA)
            if n == 0:
                s.forced([raw(f"s_cmp_lg_u32 s{S_W}, 0", 'S'), raw("s_cbranch_scc1 L_nz", 'S'), valu("v_mov_b32", f"v{V_H+6}", "0"), valu("v_mov_b32", f"v{V_H+7}", "0"), raw("s_mov_b64 exec, 1", 'S'),
                          raw(f"buffer_store_dwordx2 v[{V_H+6}:{V_H+7}], v{V_H+6}, {SWS}, s101 offen sc1", 'S'), raw("s_mov_b64 exec, -1", 'S'), raw("L_nz:", 'X')], name="fz")
            if 4 <= n < 12:
                site(n - 4, f"L_hs{n}", dbgsrd() + [valu("v_mov_b32", f"v{V_H+6}", "0"), valu("v_mov_b32", f"v{V_H+7}", "1"), raw("s_mov_b64 exec, 1", 'S'),
                     raw(f"buffer_atomic_add v{V_H+7}, v{V_H+6}, s[48:51], s{S_T0} offen sc1", 'S'), raw("s_mov_b64 exec, -1", 'S')])
            p = order[n]; s.bar_req[bi][1].append(W1[p]); lstart[p] = len(s.MF)
            for dt in range(8): s.q_frag(W1[p], dt, acc1, xreg[p], n == 0)
            lend[p] = s.g()
        i0 = s.phase_a(0, lw0, lambda n: True)
        s.stamp()
        bT = s.want_bar([W1[6], W1[7]]); lstart[6] = len(s.MF); lstart[7] = len(s.MF) + 3
        for dt in range(8):
            s.q_frag(W1[6], dt, acc1, xreg[6], False); s.q_frag(W1[7], dt, acc1, xreg[7], False); done[dt] = s.g()
        gT = s.g()
        for i, X_ in enumerate(X1):
            n = 3 + 2 * i
            s.bar_req[i0['bar'][n]][1].append(X_); X_.first_need = i0['step0'][n] - 0.5
            s.x_reads(X_, [xreg[2 * i], xreg[2 * i + 1]], [lend[8 + 2 * i] + 1, lend[9 + 2 * i] + 1], [i0['step0'][n] + 40, i0['step0'][n] + 44])
        qcv = []
        for ks in range(4):
            for qt in range(3):
                pk = ks * 3 + qt >= OPT['npl1']
                e = gT if pk else min(done[2 * ks + 1] + 3, gT); tmp = V_S + 8 * ((ks * 3 + qt) % 3)
                ops = [valu("v_accvgpr_read_b32", f"v{tmp+4*o+k}", f"a{4*((2*ks+o)*3+qt)+k}") for o in range(2) for k in range(4)]
                ops += s.conv(tmp, tmp + 4, f"s[{S_C}:{S_C+1}]", dst=QFr(ks, qt), pk=pk)
                qcv.append(s.chain(ops, e, gT, want0=e + (ks * 3 + qt) * 0.01, step=0.25, after=qcv[-3:-2] if len(qcv) >= 3 else [], name="qcv1"))
        wdl = gT - LA - 2
        last0 = s.o_finish(0, i0, lambda ks, qt: wdl - 2 if ks * 3 + qt < 4 else gT)
        pre0 = s.xaddr(i0['pv_last'] + 6, 4096)
        bias = s.chain([valu("v_add_u32", f"v{V_T+1}", lit(8 * SLOT), f"v{V_T+1}"), valu("v_add_u32", f"v{V_T+2}", lit(8 * SLOT), f"v{V_T+2}")], i0['pv_last'] + 8, i0['pv_last'] + 16, after=[pre0], name="xb")
        s.stamp()
        bM = s.m0(1, after=list(last0.values()))
        aoh = s.chain(set_addr_o(2), gT, gT + 30, name="ao2"); s.win_after.append((('O', 2), aoh))
        o0s = OPT['o0start']; nblk = (16 - o0s) // 2
        blk_done = {}
        def accA(nb): return ACCB[nb & 1]
        parkf = {}
        def lw1(n, bi):
            if OPT['pf2'] & 4 and n == OPT['pfc']: s.pfpair(1, s.g() - 8, V_T)
            if 4 <= n < 12:
                site(n - 4, f"L_hc{n}", dbgsrd() + [valu("v_mov_b32", f"v{V_H+7}", "0"), raw("s_nop 0", 'W'),
                     raw(f"buffer_load_dword v{V_H+7}, v{V_H+7}, s[48:51], s{S_T0} offen sc1", 'S')])
            if OPT['cpf2'] and n == OPT['cps']:
                tmp = f"v{V_H+7}"
                ops = [raw("s_getpc_b64 s[48:49]", 'S', wr=["s[48:49]"]), raw("L_pc2:", 'X'),
                       raw("s_add_u32 s48, s48, L_tailcode-L_pc2", 'S', wr=["s48"]), raw("s_addc_u32 s49, s49, 0", 'S', wr=["s49"]),
                       salu("s_and_b32", "s49", "s49", "0xffff"), raw("s_mov_b32 s50, L_slow-L_tailcode", 'S', wr=["s50"]), salu("s_mov_b32", "s51", "0x20000"),
                       salu("s_lshl_b32", f"s{S_T0}", "s41", "2"), salu("s_add_u32", f"s{S_T0}", f"s{S_T0}", f"s{S_W}"), salu("s_lshl_b32", f"s{S_T0}", f"s{S_T0}", "8"),
                       valu("v_and_b32", tmp, "1", "v0"), valu("v_lshlrev_b32", tmp, "7", tmp),
                       raw(f"buffer_load_dword {tmp}, {tmp}, s[48:51], s{S_T0} offen", 'D', rd=[tmp, "s[48:51]", f"s{S_T0}"], wr=[], tag="pf")]
                s.forced(ops, name="cpf2")
            if n == 14: s.forced([raw("L_tailcode:", 'X')], name="lab")
            if OPT['pft'] and n == OPT['pfs']:
                tmp = f"v{V_H+7}"
                s.chain([valu("v_min_u32", tmp, "35", "v0"),
                         salu("s_mul_i32", f"s{S_T0}", "s44", "144"), salu("s_mul_i32", f"s{S_T1}", f"s{S_W}", "36"), salu("s_add_u32", f"s{S_T0}", f"s{S_T0}", f"s{S_T1}"),
                         salu("s_add_u32", f"s{S_T0}", f"s{S_T0}", "2304"), valu("v_add_u32", tmp, f"s{S_T0}", tmp), valu("v_lshlrev_b32", tmp, "7", tmp),
                         raw(f"buffer_load_dword {tmp}, {tmp}, {SWO}, 0 offen", 'D', rd=[tmp, SWO], wr=[], tag="pf")], s.g(), s.g() + 40, step=2, name="pf")
            if n < o0s or (n - o0s) // 2 >= nblk: return
            nb, hh = (n - o0s) >> 1, (n - o0s) & 1
            T_ = s.free(f"WO{hh}_{nb}", LHI, lambda sl: wo_ops(hh, nb, sl)); s.bar_req[bi][1].append(T_)
            st = len(s.MF)
            if hh == 0 and nb >= 2:
                pb = nb - 2; ops = []
                for i in range(12):
                    ta, tb = (V_TA, V_TB) if i & 1 else (V_T + 1, V_T + 2)
                    ops += [valu("v_accvgpr_read_b32", f"v{ta}", f"a{accA(pb)+2*i}"), valu("v_accvgpr_read_b32", f"v{tb}", f"a{accA(pb)+2*i+1}"),
                            valu("v_cvt_pk_bf16_f32", f"v{ta}", f"v{ta}", f"v{tb}"), valu("v_accvgpr_write_b32", f"a{PARK[pb]+i}", f"v{ta}")]
                e = blk_done[pb] + 4
                pd = blk_done[pb + 1] + 3
                parkf[pb] = s.chain(ops, e, pd, want0=e, step=(pd - e - 20) / 48.0, after=[parkf.get(pb - 1)], name="park")
            s.o_tile(T_, lambda ks, qt: R('a', OBa(hh, ks, qt), 4), lambda ntl, qt: R('a', accA(nb) + 4 * (ntl * 3 + qt), 4), hh == 0)
            if hh == 1: blk_done[nb] = s.g()
        i1 = s.phase_a(1, lw1, lambda n: n >= o0s and (n - o0s) // 2 < nblk)
        gA1 = s.g()
        fr = [(ks, qt) for ks in range(4) for qt in range(3)]
        dstA = lambda hh, ks, qt: R('a', OBa(hh, ks, qt), 4)
        s.xround("XA", fr[:4], [8], 4096, last0, bias, bT, bM, dstA, i1['step0'][0] - LA - 9, addr_bias=8 * SLOT)
        s.xround("XB", fr[4:8], [9], 4096, last0, bias, bM, i1['bar'][0], dstA, i1['step0'][0] + 30, addr_bias=8 * SLOT)
        s.xround("XD", fr[8:], [8], 4096, last0, bias, i1['bar'][0], i1['bar'][1], dstA, i1['step0'][1] + 30, addr_bias=8 * SLOT)
        s.xb_dead = i1['pv_first'] - 1
        s.stamp()
        rest = list(range(nblk, 9))
        VB = [V_S, V_S + 24, V_QF, V_QF + 24]
        ALL = list(range(10))
        seq = [(nb, h) for nb in rest for h in (0, 1)]
        inacc = [nb for nb in range(nblk) if nb >= nblk - 2]; parked = [nb for nb in range(nblk) if nb < nblk - 2]
        CORD = rest + inacc + parked
        if OPT['cord'] == 1: CORD = rest + parked[:2] + inacc[:1] + parked[2:3] + inacc[1:] + parked[3:]
        if OPT['cord'] == 2: CORD = rest + parked[:1] + inacc[:1] + parked[1:3] + inacc[1:] + parked[3:]
        if OPT['cord'] == 3: CORD = inacc[:1] + rest + parked[:2] + inacc[1:] + parked[2:]
        s.CORD = CORD
        seq += [(nb, h) for nb in CORD for h in (2, 3)]
        vb = {}; vfree = {b: i1['pv_last'] + 6 for b in VB}; tst = {}; tbar = {}
        for nb in rest: vb[nb] = VB[rest.index(nb)]
        ao_lo = s.chain(set_addr_o(1) + set_addr_o(0), i1['pv_last'], i1['pv_last'] + 20, name="ao10"); s.win_after += [(('O', 1), ao_lo), (('O', 0), ao_lo)]
        PAIRS = [6, 4, 8, 2, 0]
        AP = {0: V_AK, 1: V_AV, 2: V_AV + 4}
        def pwin(sa): return (0, sa * SLOT) if sa < 4 else ((1, (sa - 3) * SLOT) if sa < 6 else (2, (sa - 6) * SLOT))
        ops = [salu("s_lshl_b32", f"s{S_T0}", f"s{S_HD}", "14"), valu("v_add_u32", f"v{V_AK}", f"s{S_T0}", f"v{V_AO0}"),
               valu("v_xor_b32", f"v{V_AK+1}", "32", f"v{V_AK}"), valu("v_xor_b32", f"v{V_AK+2}", "0x4000", f"v{V_AK}"), valu("v_xor_b32", f"v{V_AK+3}", "0x4020", f"v{V_AK}")]
        ops += [valu("v_add_u32", f"v{AP[w]+k}", lit(WBASE[w]), f"v{V_AK+k}") for w in (2, 1) for k in range(4)]
        apf = s.chain(ops, i1['pv_end'], i1['pv_end'] + 60, name="ap"); s.win_after.append((('P', 0), apf))
        live = set(rest); s.unp = []; s.pairbar = []
        p0s = len(s.MF) + 48 * len(rest)
        def wstart(c): return p0s + 48 * (3 if c <= 2 else max(5, c + 1)) - LA + (22 if c <= 4 else 0)
        for (nb, h4) in seq:
            st = len(s.MF); tst[(nb, h4)] = st; hh = h4 & 1
            if h4 < 2:
                T_ = s.free(f"WO{h4}_{nb}", ALL, lambda sl: wo_ops(h4, nb, sl)); tbar[(nb, h4)] = s.want_bar([T_])
            elif h4 == 2:
                sa = PAIRS[CORD.index(nb) % 5]
                TP = [s.fixed(f"WO{2+k}_{nb}", sa + k, lambda sl, k=k: wo_ops(2 + k, nb, sl), lead=OPT['plead']) for k in range(2)]
                tbar[(nb, 2)] = tbar[(nb, 3)] = s.want_bar(TP); TP[1].first_need = st + 0.5
                s.pairbar.append(tbar[(nb, 2)])
                for t_ in TP: t_.pidx = CORD.index(nb)
            if nb in parked and h4 == 2:
                b = min((x for x in VB if x not in [vb[k] for k in vb if k in live]), key=lambda x: vfree[x]); vb[nb] = b
                ops = []
                for i in range(12):
                    ops += [valu("v_accvgpr_read_b32", f"v{b+2*i+1}", f"a{PARK[nb]+i}"), valu("v_lshlrev_b32", f"v{b+2*i}", "16", f"v{b+2*i+1}"),
                            valu("v_and_b32", f"v{b+2*i+1}", "0xffff0000", f"v{b+2*i+1}")]
                e = max(vfree[b], st - OPT['unpw'])
                s.unp.append((ops, e, st - 2, b))
            if nb in inacc: accr = lambda ntl, qt: R('a', accA(nb) + 4 * (ntl * 3 + qt), 4)
            else: accr = lambda ntl, qt: R('v', vb[nb] + 4 * (ntl * 3 + qt), 4); live.add(nb)
            if h4 < 2: s.o_tile(T_, lambda ks, qt: R('a', OBa(hh, ks, qt), 4), accr, h4 == 0)
            else:
                w, ib = pwin(sa)
                for ks in range(4):
                    for ntl in range(2):
                        if nb == CORD[0] and h4 == 3 and ks * 2 + ntl == OPT['xb2']: pubx = s.want_bar([])
                        s.add_frag(TP[0], lambda b: [ds_read("ds_read_b64_tr_b16", R('a', b + 2 * hf, 2), f"v{AP[w]+2*hh+ntl}", ib + ks * 4096 + hf * 2048, slot=('P', sa, sa + 1)) for hf in range(2)],
                                   lambda a: [mfma(accr(ntl, qt), a, R('v', Oacc(2 * ks + hh, qt), 4), accr(ntl, qt)) for qt in range(3)], after=('P', 0))
                TP[1].last_use = TP[0].last_use
            if h4 == 3:
                dn = s.g()
                for qt in range(3):
                    c_ = CORD.index(nb)
                    if nb in inacc: ops = s.store_ops(accA(nb) + 4 * qt, accA(nb) + 12 + 4 * qt, V_P + 8 * qt, c_, qt, True)
                    else: ops = s.store_ops(vb[nb] + 4 * qt, vb[nb] + 12 + 4 * qt, None, c_, qt, False)
                    e_ = max(dn + 4, wstart(c_)) if OPT['swin'] else dn + 4
                    s.pending_st.append((ops, dn + 4, e_ - 4 + (OPT['std2'] if nb in inacc else OPT['std1']), vb.get(nb), e_))
                if nb in vb: vfree[vb[nb]] = e_ - 4 + OPT['std1'] + 2; live.discard(nb)
        s.pubA = tbar[seq[-1]]
        first2 = seq[2 * len(rest)]
        pub1 = tbar[first2]; pub2 = pubx
        wd = lambda ks: min(s.bar_req[pub1 if ks < 2 else pub2][0] - LA - 4, tst[first2] + 6 * ks - 3)
        last1 = s.o_finish(1, i1, lambda ks, qt: wd(ks))
        g0 = i1['pv_last'] + 6
        pre1 = s.chain([valu("v_lshlrev_b32", f"v{V_T}", "4", "v0"), salu("s_mul_i32", f"s{S_T1}", f"s{S_W}", "12288"),
                        valu("v_add_u32", f"v{V_T+1}", f"s{S_T1}", f"v{V_T}"), salu("s_xor_b32", f"s{S_T1}", f"s{S_W}", "2"), salu("s_mul_i32", f"s{S_T1}", f"s{S_T1}", "12288"),
                        valu("v_add_u32", f"v{V_T+2}", f"s{S_T1}", f"v{V_T}")], g0, g0 + 8, name="xpre")
        rd_end = tst[first2] + 48 - LA - 1 - OPT['rdm']
        res = [s.fixed(f"XC_{sl}", sl, lambda sl: [], lead=0) for sl in (0, 1, 2)]
        for t in res:
            t.first_need = s.bar_req[i1['bar'][15]][0]; t.last_use = rd_end + 1; t.scratch = i1['bar'][15]; s.issued.add(t.name)
        def mkx():
            bw = s.barfill[i1['bar'][15]]
            for i, (ks, qt) in enumerate(fr):
                bp = s.barfill[pub1 if ks < 2 else pub2]; lf = last1[(ks, qt)]
                op = ds_write("ds_write_b128", f"v{V_T+1}", R('v', Oacc(2 * ks, qt), 4), i * 1024); op.note = (0, 1, 2)
                w_ = s.fill(op, max(lf.earliest, bw.earliest), bp.earliest, want=max(lf.want, bw.earliest) + 0.1 + i * 0.01, after=[lf, pre1, bw], name="xw1")
                bp.after.append(w_)
                op = ds_read("ds_read_b128", R('v', Oacc(2 * ks + 1, qt), 4), f"v{V_T+2}", i * 1024, slot=('X', 100))
                need = tst[first2] + 24 + 6 * ks
                s.xneed[id(op)] = need
                s.fill(op, bp.earliest, min(need - 6, rd_end), want=bp.earliest + 1 + (i % 6) * (2 if ks < 2 else 1.2), after=[bp], name="xr1")
        s.late.append(mkx)
        NG = len(s.MF)
        if dry: return None
        for gp in OPT.get('at', []): s.forced(stamp_ops(s.nst), gap=gp, name="stamp"); s.nst += 1
        s.tile_bar = {}; s.bars = []; s.barfill = []; prev = -2
        for (need, tiles) in s.bar_req:
            gg = max(need - LA - 1, prev + 1, -1)
            def mk(tiles, fence, stA):
                def f(p):
                    names = [t.name for t in tiles]
                    for t in tiles: assert t.name in s.issued, t.name
                    idx = max((i for i, op in enumerate(p.vm) if op.tag in names), default=-1)
                    if idx >= 0: p.wait_vm_tag(p.vm[idx].tag)
                    if stA:
                        p.wait_vm_tag("stA")
                        if OPT['epoll']: p.emit(hcheck())
                    if fence:
                        ix = max((i for i, op in enumerate(p.lgkm) if isinstance(op.slot, tuple) and op.slot[0] == 'X'), default=-1)
                        if ix >= 0: p.wait_lgkm(len(p.lgkm) - 1 - ix)
                    p.barrier()
                    if stA:
                        p.emit([valu("v_mov_b32", f"v{V_TA}", "1"), valu("v_mov_b32", f"v{V_TB}", "0"),
                                raw(f"s_cmp_lg_u32 s{S_W}, 0", 'S'), raw("s_cbranch_scc1 L_npa", 'S'), raw("s_mov_b64 exec, 1", 'S'),
                                raw(f"buffer_store_dword v{V_TA}, v{V_TB}, {SWS}, s101 offen sc1", 'S'), raw("s_mov_b64 exec, -1", 'S'), raw("L_npa:", 'X')])
                        if OPT['epoll']:
                            p.emit([valu("v_min_u32", f"v{V_NM+2}", "7", "v0"), valu("v_lshlrev_b32", f"v{V_NM+2}", "3", f"v{V_NM+2}"), salu("s_mov_b32", "s99", lit(8 * 108 * 1024))])
                            s.epoll_gap = True
                return f
            fence = any(hasattr(t, 'scratch') and prev < t.last_use <= gg for t in s.tiles)
            fl = Fill([mk(tiles, fence, len(s.barfill) == s.pubA)], gg, gg, want=-10**9, name="bar"); s.FL.append(fl); s.bars.append((gg, fl)); s.barfill.append(fl)
            for t in tiles: s.tile_bar[t.name] = fl
            prev = gg
        if OPT['epoll']:
            s.fill(raw(f"buffer_load_dwordx2 v[{V_NM}:{V_NM+1}], v{V_NM+2}, {SWS}, s99 offen sc1", 'D', rd=[f"v{V_NM+2}", SWS], wr=[], tag="ep"), NG - OPT['epg'], NG - OPT['epg'] + 4, after=[s.barfill[s.pubA]], name="epoll")
        for cb in s.late: cb()
        for f in s.FL:
            if f.name == "xw" and f.deadline > s.xb_dead and f.earliest < s.xb_dead: f.deadline = s.xb_dead
        last = None
        for f, fr_ in enumerate(s.frags):
            e = s.frags[f - NFR]['u1'] if f >= NFR else -1
            b = s.tile_bar[fr_['tile'].name]; e = max(e, b.earliest)
            aft = [b, last] + [v for k, v in s.win_after if k == fr_['after']]
            for k, op in enumerate(fr_['reads']):
                last = s.fill(op, e, fr_['u0'] - 1, want=fr_['u0'] - LA + k, after=aft, name="rd"); aft = [last]
        prevf = None; stf = {}
        tmpuse = {}
        for (ops, e, d, b, e_) in s.pending_st:
            if OPT['swin'] and b is not None:
                pk_ = s.chain([o for o in ops if o.kind == 'V'], min(e, NG - 1), min(d, NG - 1), want0=e, step=1.0, name="stp")
                prevf = s.chain([o for o in ops if o.kind != 'V'], min(e_, NG - 1), min(d, NG - 1), want0=e_, step=1.0, after=[prevf, pk_], name="st")
            else:
                prevf = s.chain(ops, min(e_, NG - 1), min(d, NG - 1), want0=e_, step=1.0, after=[prevf], name="st")
            stf.setdefault(b, []).append(prevf)
        for (ops, e, d, b) in s.unp:
            aft = [f for f in stf.get(b, []) if f.deadline <= e]
            s.chain(ops, e, d, want0=e, step=1.0, after=aft[-1:], name="unp")
        order_t = sorted(s.tiles, key=lambda t: t.first_need)
        occ = {}; plan = []; floor = (-1, s.bars[0][1])
        for t in order_t:
            pv = occ.get(t.slot); occ[t.slot] = t
            if hasattr(t, 'scratch'):
                assert pv.last_use <= s.barfill[t.scratch].earliest, (t.name, pv.name, pv.last_use, s.barfill[t.scratch].earliest)
            if t.name in s.issued: continue
            lu = pv.last_use if pv else -1
            bg = next(x for x in s.bars if x[0] >= lu)
            if bg[0] < floor[0] and not hasattr(t, 'want_issue'): bg = floor
            if t.name.startswith(("WQ0", "X0")): floor = bg
            ml = next((x for x in s.bars if x[0] >= getattr(t, 'want_issue', t.first_need - OPT['maxlead'])), bg)
            if ml[0] > bg[0] and ml[0] < s.tile_bar[t.name].earliest: bg = ml
            if OPT['swin'] and getattr(t, 'pidx', 0) >= 5:
                bf_ = s.barfill[s.pairbar[3 if t.pidx <= 6 else 5]]
                assert bf_.earliest >= next(x for x in s.bars if x[0] >= lu)[0]
                bg = (bf_.earliest, bf_)
            plan.append((int(bg[0]), t.first_need, t, bg[1]))
        plan.sort(key=lambda x: (x[0], (x[2].name[0] not in 'KV') if OPT['hb'] and x[0] > 440 else 0, x[1]))
        lastd = None; cur = 'WQ'
        groups = {}
        for x in plan: groups.setdefault(x[0], []).append(x)
        for (gg, need, t, bf) in plan:
            ops = list(t.ops)
            if t.name.startswith('WO') and cur == 'WQ': ops = set_L_wo() + ops; cur = 'WO'
            assert not (t.name.startswith('WQ') and cur == 'WO')
            same = groups[gg]; k0 = [x[2] for x in same].index(t)
            nextbar = next((x[0] for x in s.bars if x[0] > gg), NG)
            span = max(nextbar - gg - 4, 1); tot = 6 * len(same)
            dl = s.tile_bar[t.name].earliest - 1
            assert dl >= gg, (t.name, dl, gg)
            if OPT.get('verbose'): sys.stderr.write(f"{t.name} slot {t.slot} issue@{gg} pub@{dl+1} lead {dl+1-gg}\n")
            for k, op in enumerate(ops):
                w = gg + 1 + ((k0 * 6 + min(k, 5)) * span) / tot
                if gg < 0: w = -12 + (k0 * 6 + k) * 1.0
                elif OPT['swin'] and getattr(t, 'pidx', 0) >= 5: w = gg - OPT['dlate'] + (k0 * 6 + k) * 0.8
                elif OPT['hb'] and span > 60:
                    isH = t.name[0] in 'KV'
                    grp = [x[2] for x in same if (x[2].name[0] in 'KV') == isH]
                    a_, b_ = (OPT['h0'], OPT['h1']) if isH else (OPT['l0'], OPT['l1'])
                    w = gg + a_ + (grp.index(t) * 6 + min(k, 5)) * (b_ - a_) / (6.0 * len(grp)) - OPT['dlate'] * (op.kind == 'D')
                o = [op]
                if k == len(ops) - 1: o = [op, (lambda nm: (lambda p: s.issued.add(nm)))(t.name)]
                lastd = s.fill(o, gg, dl, want=w, after=[bf, lastd], name="dma " + t.name)
        s.weave()
        s.P.emit(stamp_ops(s.nst)); s.nst += 1
        return s.P
    def allocate(s):
        bars = []; pub = {}; prev = -2
        for (need, tiles) in s.bar_req:
            gg = max(need - LA - 1, prev + 1, -1); bars.append(gg); prev = gg
            for t in tiles: pub[t.name] = gg
        for t in s.tiles:
            if hasattr(t, 'scratch'): pub[t.name] = bars[t.scratch] + 0.5
        def nb(x): return next((b for b in bars if b >= x), 10**7)
        tl = sorted(s.tiles, key=lambda t: t.first_need)
        fixed = {}
        for t in tl:
            if t.cands is None: fixed.setdefault(t.slot, []).append(t)
        rel = {sl: -1 for sl in range(10)}; al = {}
        for t in tl:
            if t.cands is None: rel[t.slot] = t.last_use; continue
            best = None
            for sl in t.cands:
                nx = next((f for f in fixed.get(sl, []) if f.first_need > t.first_need), None)
                cost = 0
                if nx:
                    r_ = nb(t.last_use)
                    if r_ >= pub[nx.name]: cost += 10**8
                    cost += 4 * max(0, r_ - min(pub[nx.name] - nx.lead, getattr(nx, 'want_issue', 10**9)))
                ib = nb(rel[sl])
                if ib >= pub[t.name]: cost += 10**9
                cost += max(0, ib - (pub[t.name] - 100))
                key = (cost, ib, sl)
                if best is None or key < best[0]: best = (key, sl)
            assert best[0][0] < 10**8, (t.name, best)
            al[t.name] = best[1]; rel[best[1]] = t.last_use
        return al
    def weave(s):
        P = s.P; mf = s.MF; by_e = {}
        for f in s.FL: by_e.setdefault(max(int(f.earliest), -1), []).append(f)
        act = []; pen = 0
        need_at = dict(s.xneed)
        for fr in s.frags:
            for op in fr['reads']: need_at[id(op)] = fr['u0']
        issue_gap = {}
        HZ = OPT['hz']; DLATE = OPT['dlate']; LLATE = OPT['llate']; WAH = OPT['wah']
        def ready(f): return all(a.done for a in f.after)
        def kind(f): return cat(f.ops[0]) if len([o for o in f.ops if not callable(o)]) == 1 and not callable(f.ops[0]) else 'X'
        def put(f, g):
            P.emit(f.ops); f.done = True; act.remove(f)
            for o in f.ops:
                if not callable(o) and o.kind == 'L': issue_gap[id(o)] = g
        for g in range(-1, len(mf)):
            if g >= 0: P.emit(mf[g])
            act += by_e.get(g, [])
            used = []
            while True:
                fo = [f for f in act if f.deadline <= g]
                if not fo: break
                def pick(f):
                    for a in f.after:
                        if not a.done: return pick(a)
                    return f
                fo.sort(key=lambda f: f.want)
                f = pick(fo[0]); assert f in act, (f.name, f.earliest, g, fo[0].name)
                put(f, g); used.append(kind(f))
            if g >= 0:
                def room(k):
                    if not used: return True
                    if len(used) >= 2 or used[0] in 'EDX': return False
                    return True
                def best(kinds, lim):
                    c = [f for f in act if kind(f) in kinds and f.want <= lim and ready(f)]
                    return min(c, key=lambda f: f.want) if c else None
                def take(f): put(f, g); used.append(kind(f))
                if not used:
                    f = best('L', g) or best('E', g + 10**6) or best('D', g + HZ) or best('L', g + HZ) or best('X', g + HZ)
                    if f: take(f)
                if len(used) == 1 and used[0] == 'L':
                    f = best('D', g - DLATE) or best('L', g - LLATE)
                    if f: take(f); pen += 1
                for _ in range(2):
                    if room('V'):
                        f = best('S', g + 1) or best('VS', g + HZ)
                        if f: take(f)
                full = len(used) >= 2 or (used and used[0] in 'EDX')
                if P.lgkm:
                    nxt = min((need_at.get(id(o), 10**9) for o in P.lgkm), default=10**9)
                    if (not full and nxt - g <= WAH) or nxt <= g + 1:
                        k = 0
                        for o in P.lgkm:
                            if issue_gap.get(id(o), g) <= g - LAT or need_at.get(id(o), 10**9) <= g + 1: k += 1
                            else: break
                        for q_, o in enumerate(P.lgkm):
                            if need_at.get(id(o), 10**9) <= g + 1: k = max(k, q_ + 1)
                        covers = any(need_at.get(id(o), 10**9) == nxt for o in P.lgkm[:k]) and not any(need_at.get(id(o), 10**9) == nxt for o in P.lgkm[k:])
                        if k and covers:
                            P.wait_lgkm(len(P.lgkm) - k)
                            if full: pen += 1
            if len(used) > 2: pen += len(used) - 2
        assert not act, [(f.name, f.earliest, f.deadline) for f in act]
        sys.stderr.write(f"MFMA {len(mf)} instrs {len(P.out)} nops {P.nops} pen {pen} stats {P.stats}\n")

_old_barrier = Prog.barrier
def _barrier(p):
    idx = max((i for i, op in enumerate(p.lgkm) if op.txt.startswith('ds_write')), default=-1)
    if idx >= 0: p.wait_lgkm(len(p.lgkm) - 1 - idx)
    _old_barrier(p)
Prog.barrier = _barrier
_old_emit = Prog.emit
def _emit(p, ins):
    if isinstance(ins, I):
        tgt = []
        if ins.kind == 'D' and ins.slot is not None: tgt = [ins.slot]
        if ins.kind == 'L' and ins.txt.startswith('ds_write') and getattr(ins, 'note', None): tgt = list(ins.note)
        for sl in tgt:
            for u in p.unsafe:
                assert not (u == sl or (isinstance(u, tuple) and sl in u)), f"write into slot {sl} while reads unfenced ({u}): {ins.txt}"
    _old_emit(p, ins)
Prog.emit = _emit

def slow_path():
    P = Prog(); E = P.emit
    E(raw("L_slow:", 'X'))
    E(raw("s_nop 15", 'W')); E(raw("s_waitcnt vmcnt(0) lgkmcnt(0)", 'W'))
    SS = V_S; KF = V_S + 12; NMX = V_S + 28; ta, tv = V_S + 40, V_S + 41
    MX = Preg(1, 0); PB = Preg(1, 0) + 6
    E(salu("s_lshl_b32", "s50", f"s{S_HD}", "17")); E(salu("s_add_u32", "s48", "s48", "s50"))
    E(valu("v_and_b32", f"v{tv}", "15", "v0")); E(valu("v_lshlrev_b32", f"v{ta}", "8", f"v{tv}"))
    E(valu("v_lshrrev_b32", f"v{KF}", "4", "v0")); E(valu("v_lshl_add_u32", f"v{ta}", f"v{KF}", "4", f"v{ta}"))
    E(valu("v_lshlrev_b32", f"v{tv}", "1", f"v{tv}")); E(valu("v_lshl_add_u32", f"v{tv}", f"v{KF}", "10", f"v{tv}"))
    for qt in range(3): E(valu("v_mov_b32", f"v{MX+2*qt}", "0xff7fffff"))
    def scores(c):
        for ks in range(4):
            E(raw(f"buffer_load_dwordx4 v[{KF+4*ks}:{KF+4*ks+3}], v{ta}, {SK}, s49 offen offset:{64*ks}", 'D', rd=[f"v{ta}"], wr=[f"v[{KF+4*ks}:{KF+4*ks+3}]"]))
        for ks in range(4):
            for qt in range(3):
                E(mfma(R('v', SS + 4 * qt, 4), R('v', KF + 4 * ks, 4), QF(ks, qt), c(qt) if ks == 0 else R('v', SS + 4 * qt, 4)))
    def loop_end(lab):
        E(raw("s_nop 15", 'W')); E(raw("s_waitcnt vmcnt(0) lgkmcnt(0)", 'W')); P.vm = []; P.lgkm = []
        E(salu("s_add_u32", "s49", "s49", "4096")); E(salu("s_add_u32", "s51", "s51", "1"))
        E(raw("s_cmp_lt_u32 s51, 32", 'S')); E(raw(f"s_cbranch_scc1 {lab}", 'S'))
    E(salu("s_mov_b32", "s49", "s48")); E(salu("s_mov_b32", "s51", "0"))
    E(raw("L_sl1:", 'X'))
    scores(lambda qt: "0")
    for qt in range(3):
        x = SS + 4 * qt
        E(valu("v_max3_f32", f"v{MX+2*qt}", f"v{MX+2*qt}", f"v{x}", f"v{x+1}")); E(valu("v_max3_f32", f"v{MX+2*qt}", f"v{MX+2*qt}", f"v{x+2}", f"v{x+3}"))
    loop_end("L_sl1")
    for qt in range(3):
        a, b = f"v{MX+2*qt}", f"v{MX+2*qt+1}"
        E(valu("v_mov_b32", b, a)); E(valu("v_permlane16_swap_b32", a, b)); E(valu("v_max_f32", a, a, b))
        E(valu("v_mov_b32", b, a)); E(valu("v_permlane32_swap_b32", a, b)); E(valu("v_max_f32", a, a, b))
        for k in range(4): E(valu("v_sub_f32", f"v{NMX+4*qt+k}", "0", a))
    for k in range(96): E(valu("v_mov_b32", f"v{V_O+k}", "0"))
    for k in range(12): E(valu("v_accvgpr_write_b32", f"a{A_L+k}", "0"))
    E(salu("s_mov_b32", "s49", "s48")); E(salu("s_mov_b32", "s51", "0"))
    E(raw("L_sl2:", 'X'))
    scores(lambda qt: R('v', NMX + 4 * qt, 4))
    for k in range(12): E(valu("v_exp_f32", f"v{SS+k}", f"v{SS+k}"))
    for qt in range(3):
        for h in range(2): E(valu("v_cvt_pk_bf16_f32", f"v{PB+2*qt+h}", f"v{SS+4*qt+2*h}", f"v{SS+4*qt+2*h+1}"))
    E(raw("s_nop 7", 'W'))
    M16 = "v_mfma_f32_16x16x16_bf16"
    for qt in range(3): E(mfma(R('a', A_L + 4 * qt, 4), R('a', A_ONE, 2), R('v', PB + 2 * qt, 2), R('a', A_L + 4 * qt, 4), op=M16))
    for dh in range(2):
        for d4 in range(4):
            for h in range(2):
                for half in range(2):
                    E(raw(f"buffer_load_ushort v{KF+8*half+2*d4+h}, v{tv}, {SV}, s49 offen offset:{(2*h+half)*256+32*(4*dh+d4)}", 'D', rd=[f"v{tv}"], wr=[f"v{KF+8*half+2*d4+h}"]))
        for k in range(8): E(valu("v_lshl_or_b32", f"v{KF+k}", f"v{KF+8+k}", "16", f"v{KF+k}"))
        for d4 in range(4):
            for qt in range(3): E(mfma(R('v', Oacc(4 * dh + d4, qt), 4), R('v', KF + 2 * d4, 2), R('v', PB + 2 * qt, 2), R('v', Oacc(4 * dh + d4, qt), 4), op=M16))
        E(raw("s_nop 7", 'W'))
    loop_end("L_sl2")
    for k in range(12): E(valu("v_mov_b32", f"v{Preg(1,0)+k}", "0"))
    for qt in range(3): E(valu("v_accvgpr_read_b32", f"v{RL[qt]}", f"a{A_L+4*qt}"))
    E(raw("s_nop 7", 'W'))
    E(raw(f"s_setpc_b64 {S_RET}", 'S'))
    return P

def final(nst, CORD):
    P = Prog(); E = P.emit
    LDF = ["", " sc1", " sc0 sc1", " sc1 nt"][OPT["ldf"]]
    E(raw("L_final:", 'X'))
    E(valu("v_min_u32", "v26", "7", "v0")); E(valu("v_lshlrev_b32", "v26", "3", "v26")); E(salu("s_mov_b32", "s61", lit(8 * 108 * 1024)))
    PL = f"buffer_load_dwordx2 v[4:5], v26, {SWS}, s99 offen sc1"
    E(salu("s_mov_b32", "s99", lit(8 * 108 * 1024)))
    E(valu("v_lshlrev_b32", "v2", "4", "v0"))
    E(salu("s_lshl_b32", "s52", "s46", "2")); E(salu("s_add_u32", "s52", "s52", f"s{S_W}"))
    E(salu("s_mov_b32", "s64", "s68")); E(salu("s_and_b32", "s65", "s69", "0xffff")); E(salu("s_mov_b32", "s66", lit(16 * 96 * 1152 * 2))); E(salu("s_mov_b32", "s67", "0x20000"))
    E(valu("v_and_b32", "v6", "15", "v0")); E(valu("v_mul_u32_u24", "v6", "2304", "v6"))
    E(valu("v_lshrrev_b32", "v7", "4", "v0")); E(valu("v_lshl_add_u32", "v6", "v7", "3", "v6"))
    E(valu("v_mov_b32", "v24", "0x3f80")); E(valu("v_mov_b32", "v25", "0x3f800000"))
    tab = sum(p << (4 * c) for c, p in enumerate(CORD))
    E(salu("s_mov_b32", "s62", lit(tab & 0xffffffff))); E(salu("s_mov_b32", "s63", lit(tab >> 32)))
    E(salu("s_mul_i32", "s60", "s44", str(96 * 2304))); E(salu("s_mul_i32", "s61", "s42", "1152")); E(salu("s_add_u32", "s60", "s60", "s61"))
    for k in range(4):
        E(salu("s_add_u32", "s53", "s52", str(32 * k)))
        E(salu("s_mul_hi_u32", "s54", "s53", str((2**32 + 11) // 12)))
        E(salu("s_mul_i32", "s55", "s54", "12")); E(salu("s_sub_u32", "s55", "s53", "s55"))
        E(salu("s_lshl_b32", "s54", "s54", "2")); E(raw("s_lshr_b64 s[36:37], s[62:63], s54", 'S', wr=["s[36:37]"])); E(salu("s_and_b32", "s36", "s36", "15"))
        E(salu("s_lshl_b32", "s36", "s36", "7")); E(salu("s_add_u32", "s36", "s36", "s41")); E(salu("s_sub_u32", "s37", "s36", "1152")); E(salu("s_min_u32", "s36", "s36", "s37"))
        E(raw("s_cmp_ge_u32 s55, 6", 'S')); E(raw("s_cselect_b32 s37, 64, 0", 'S', wr=["s37"])); E(raw("s_cselect_b32 s54, 6, 0", 'S', wr=["s54"]))
        E(salu("s_sub_u32", "s55", "s55", "s54")); E(salu("s_mul_i32", "s55", "s55", str(16 * 2304)))
        E(salu("s_add_u32", "s55", "s55", "s36")); E(salu("s_add_u32", "s55", "s55", "s37")); E(salu("s_add_u32", f"s{56+k}", "s55", "s60"))
        if k == 3: E(raw("s_cmp_lt_u32 s52, 12", 'S')); E(raw("s_cselect_b32 s59, s59, 0x70000000", 'S', wr=["s59"]))
    E(raw("s_waitcnt vmcnt(0) lgkmcnt(0)", 'W'))
    E(stamp_ops(nst)); nst += 1
    if OPT['epoll']:
        E(valu("v_mov_b32", "v4", f"v{V_NM}")); E(valu("v_mov_b32", "v5", f"v{V_NM+1}"))
    else: E(hcheck())
    E(salu("s_lshl_b32", "s53", "s46", "3")); E(raw("v_cmp_eq_u32 s[48:49], s53, v26", 'V', rd=["v26", "s53"]))
    E(raw("s_barrier", 'B'))
    E(raw(f"s_cmp_lg_u32 s{S_W}, 0", 'S')); E(raw("s_cbranch_scc1 L_npb", 'S'))
    E(raw("s_mov_b64 exec, 1", 'S'))
    E(raw(f"buffer_store_dword v{V_TA}, v{V_TB}, {SWS}, s101 offen offset:4 sc1", 'D'))
    E(raw("s_mov_b64 exec, -1", 'S'))
    E(raw("L_npb:", 'X'))
    def poll(reg, tag, first):
        E(salu("s_mov_b32", "s53", "0"))
        if first: E(raw(f"s_branch L_pl{tag}", 'S'))
        E(raw(f"L_poll{tag}:", 'X'))
        E(raw(f"v_cmp_eq_u32 vcc, 1, v{reg}", 'V')); E(raw("s_add_u32 s53, s53, 1", 'S')); E(raw("s_nop 1", 'W'))
        E(raw("s_or_b64 vcc, vcc, s[48:49]", 'S'))
        E(raw("s_cmp_eq_u64 vcc, -1", 'S')); E(raw(f"s_cbranch_scc1 L_pd{tag}", 'S'))
        if OPT['psleep']: E(raw(f"s_sleep {OPT['psleep']}", 'S'))
        E(raw(f"L_pl{tag}:", 'X'))
        E(raw(PL, 'D')); E(raw("s_waitcnt vmcnt(0)", 'W'))
        E(raw("s_cmp_lt_u32 s53, 0x400000", 'S')); E(raw(f"s_cbranch_scc1 L_poll{tag}", 'S'))
        E(raw(f"L_pd{tag}:", 'X'))
        P.vm = []
    def loads(k):
        E(salu("s_add_u32", "s53", "s52", str(32 * k))); E(salu("s_lshl_b32", "s53", "s53", "10"))
        if k == 3: E(raw("s_cmp_lt_u32 s52, 12", 'S')); E(raw("s_cselect_b32 s53, s53, 0x70000000", 'S', wr=["s53"]))
        for j in range(8):
            d = 32 + 32 * k + 4 * j
            E(raw(f"buffer_load_dwordx4 v[{d}:{d+3}], v2, {SWS}, s53 offen" + LDF, 'D', rd=["v2", "s53"], wr=[f"v[{d}:{d+3}]"]))
            if j < 7: E(salu("s_add_u32", "s53", "s53", str(108 * 1024)))
    def red(k):
        acc = 8
        for j in range(8):
            d = 32 + 32 * k + 4 * j
            for c in range(4):
                E(valu("v_dot2_f32_bf16", f"v{acc+2*c}", f"v{d+c}", "v24", "0" if j == 0 else f"v{acc+2*c}"))
                E(valu("v_dot2_f32_bf16", f"v{acc+2*c+1}", f"v{d+c}", "v25", "0" if j == 0 else f"v{acc+2*c+1}"))
        E(raw("s_nop 2", 'W'))
        o = 16 + 4 * (k & 1)
        for c in range(4): E(valu("v_cvt_pk_bf16_f32", f"v{o+c}", f"v{acc+2*c}", f"v{acc+2*c+1}"))
        E(raw(f"buffer_store_dwordx2 v[{o}:{o+1}], v6, s[64:67], s{56+k} offen", 'D', rd=[f"v[{o}:{o+1}]"]))
        E(raw(f"buffer_store_dwordx2 v[{o+2}:{o+3}], v6, s[64:67], s{56+k} offen offset:32", 'D', rd=[f"v[{o+2}:{o+3}]"]))
        E(raw("s_nop 2", 'W'))
    poll(4, "A", not OPT['epoll'])
    if OPT['epoll']:
        E(raw("v_cmp_eq_u32 vcc, 1, v5", 'V')); E(raw("s_nop 1", 'W')); E(raw("s_or_b64 vcc, vcc, s[48:49]", 'S'))
        E(raw("s_cmp_eq_u64 vcc, -1", 'S')); E(raw("s_cbranch_scc0 L_two", 'S'))
        for k in range(4): loads(k)
        E(stamp_ops(nst))
        for k in range(4): red(k)
        E(raw("s_branch L_fin", 'S'))
        E(raw("L_two:", 'X')); P.vm = []
    loads(0); loads(1)
    E(raw(PL, 'D', wr=["v[4:5]"]))
    red(0); red(1)
    E(raw("s_waitcnt vmcnt(4)", 'W'))
    poll(5, "B", False)
    E(stamp_ops(nst)); nst += 1
    loads(2); loads(3)
    red(2); red(3)
    E(raw("L_fin:", 'X'))
    if OPT['stamp']:
        E(raw("s_waitcnt vmcnt(0)", 'W'))
        E(stamp_ops(nst)); nst += 1
        E(salu("s_lshl_b32", "s40", "s2", "2")); E(salu("s_add_u32", "s40", "s40", f"s{S_W}")); E(salu("s_lshl_b32", "s40", "s40", "7"))
        E(salu("s_add_u32", "s40", "s40", hex(64 << 20)))
        E(salu("s_add_u32", "s72", "s72", "s40")); E(salu("s_addc_u32", "s73", "s73", "0"))
        E(valu("v_mov_b32", "v1", "0"))
        for k in range(nst):
            E(valu("v_mov_b32", "v2", f"s{78+k}")); E(valu("v_mov_b32", "v3", f"s{89+k}"))
            E(raw(f"global_store_dword v1, v2, s[72:73] offset:{4*k}", 'D', rd=['v1', 'v2']))
            E(raw(f"global_store_dword v1, v3, s[72:73] offset:{64+4*k}", 'D', rd=['v1', 'v3'])); E(raw("s_nop 1", 'W'))
        sys.stderr.write(f"stamps {nst}\n")
    E(raw("s_endpgm", 'X'))
    return P


import re
d = Build({}); d.build(dry=True); al = d.allocate()
b = Build(al); P = b.build()
parts = [P0.text(), P.text(), final(b.nst, b.CORD).text()]
if OPT['slow']: parts.append(slow_path().text())
parts.append("L_end0:\ns_endpgm")
if OPT['two']:
    OPT['early'], OPT['e0'], OPT['estep'] = OPT['earlyB'], OPT['e0B'], OPT['estepB']
    d = Build({}); d.build(dry=True); al = d.allocate()
    b2 = Build(al); P2 = b2.build()
    t2_ = re.sub(r"\bL_(ok|hs|hc|nz|npa|hok|hp|tailcode)(\d*)\b", r"LB_\1\2", P2.text())
    parts.append("L_progB:\n" + t2_ + "\ns_branch L_final")
parts.append("L_codeend:")
body = "\n".join(parts)

import re
MAC = """.macro mf d,a,b,c
v_mfma_f32_16x16x32_bf16 \\d,\\a,\\b,\\c
.endm
.macro tr d,a,o
ds_read_b64_tr_b16 \\d,\\a offset:\\o
.endm
.macro rq d,a,o
ds_read_b128 \\d,\\a offset:\\o
.endm
.macro dn v,r,s,o
buffer_load_dwordx4 \\v,\\r,\\s offen offset:\\o nt lds
.endm
.macro dl v,r,s,o
buffer_load_dwordx4 \\v,\\r,\\s offen offset:\\o lds
.endm
.macro wl n
s_waitcnt lgkmcnt(\\n)
.endm
.macro cv d,a,b
v_cvt_pk_bf16_f32 \\d,\\a,\\b
.endm
.macro ex d
v_exp_f32 \\d,\\d
.endm
"""
def compact(l):
    if l.startswith("v_mfma_f32_16x16x32_bf16 "): return "mf " + l[25:].replace(", ", ",")
    m = re.fullmatch(r"ds_read_b64_tr_b16 (\S+), (\S+) offset:(\d+)", l)
    if m: return f"tr {m.group(1)},{m.group(2)},{m.group(3)}"
    m = re.fullmatch(r"ds_read_b128 (\S+), (\S+) offset:(\d+)", l)
    if m: return f"rq {m.group(1)},{m.group(2)},{m.group(3)}"
    m = re.fullmatch(r"buffer_load_dwordx4 (\S+), (\S+), (\S+) offen offset:(\d+) (nt )?lds", l)
    if m: return f"{'dn' if m.group(5) else 'dl'} {m.group(1)},{m.group(2)},{m.group(3)},{m.group(4)}"
    m = re.fullmatch(r"s_waitcnt lgkmcnt\((\d+)\)", l)
    if m: return f"wl {m.group(1)}"
    m = re.fullmatch(r"v_cvt_pk_bf16_f32 (\S+), (\S+), (\S+)", l)
    if m: return f"cv {m.group(1)},{m.group(2)},{m.group(3)}"
    m = re.fullmatch(r"v_exp_f32 (\S+), (\S+)", l)
    if m and m.group(1) == m.group(2): return f"ex {m.group(1)}"
    return l
if OPT.get('compact', 1): body = "\n".join(compact(l) for l in body.split("\n"))
else: MAC = ""

def kd(name, vg, acc):
    return f""".amdhsa_kernel {name}
  .amdhsa_next_free_vgpr {vg}
  .amdhsa_next_free_sgpr 102
  .amdhsa_accum_offset {acc}
  .amdhsa_group_segment_fixed_size 0
  .amdhsa_kernarg_size 104
  .amdhsa_user_sgpr_count 2
  .amdhsa_user_sgpr_kernarg_segment_ptr 1
  .amdhsa_system_sgpr_workgroup_id_x 1
.end_amdhsa_kernel
"""
txt = f"""; generated by gen/gen6.py (hand-written generator; fused Qproj + attention + Oproj + in-kernel reduction)
; @launch grid=(256,1,1) block=(256,1,1) lds=163840
.amdgcn_target "amdgcn-amd-amdhsa--gfx950"
{MAC}.text
.globl {NAME}_kernel
.p2align 8
.type {NAME}_kernel,@function
{NAME}_kernel:
""" + body + '\n.section .rodata,"a"\n.p2align 6\n' + kd(NAME + "_kernel", 512, 256)
open(sys.argv[1], "w").write(txt)
```
